```python
import torch

def _softmax(x, axis=-1):
    return torch.softmax(x, dim=axis)
def _gelu(x):
    return torch.nn.functional.gelu(x, approximate="tanh")
def _silu(x):
    return torch.nn.functional.silu(x)
def _sigmoid(x):
    return torch.sigmoid(x)
def _layernorm(x, axis=-1, eps=1e-5):
    m = x.mean(dim=axis, keepdim=True)
    v = x.var(dim=axis, keepdim=True, unbiased=False)
    return (x - m) / torch.sqrt(v + eps)
def _scatter_add(tgt, idx, src, axis=0):
    return tgt.clone().index_add_(axis, idx, src)
def _segment_sum(src, seg, n):
    out = torch.zeros((n,) + src.shape[1:], dtype=src.dtype)
    return out.index_add_(0, seg, src)
def _pad(x, pw):
    flat = tuple(v for pair in reversed(pw) for v in pair)
    return torch.nn.functional.pad(x, flat)

kernel_name = 'gather_scatter__edge_featured_mpnn_gatedgcn__graph'

def setup_inputs():

    _w = (lambda a: (lambda t: t.to(torch.bfloat16) if t.is_floating_point() else t)(torch.as_tensor(a)))
    N, deg, D, De = 25000, 32, 64, max(0, 1)
    E = N * deg
    return {
        "x": _w((lambda *s: torch.randn(*s, dtype=torch.bfloat16) * 0.8)(N, D)),
        "e_attr": _w((lambda *s: torch.randn(*s, dtype=torch.bfloat16) * 0.8)(E, De)),
        "src": _w((lambda lo, hi, *s: torch.randint(lo, hi, s))(0, N, E).to(torch.int64)),
        "dst": _w((lambda lo, hi, *s: torch.randint(lo, hi, s))(0, N, E).to(torch.int64)),
        "w_a": _w((lambda *s: torch.randn(*s, dtype=torch.bfloat16) * 0.8)(D, D)),
        "w_b": _w((lambda *s: torch.randn(*s, dtype=torch.bfloat16) * 0.8)(D, D)),
        "w_c": _w((lambda *s: torch.randn(*s, dtype=torch.bfloat16) * 0.8)(De, D)),
        "w_u": _w((lambda *s: torch.randn(*s, dtype=torch.bfloat16) * 0.05)(D, D)),
        "w_v": _w((lambda *s: torch.randn(*s, dtype=torch.bfloat16) * 0.05)(D, D)),
    }

def reference(x, e_attr, src, dst, w_a, w_b, w_c, w_u, w_v):
    N, D = x.shape
    hv = x @ w_v
    g = x[dst] @ w_a + x[src] @ w_b + e_attr @ w_c
    eta = _sigmoid(g)
    denom = _segment_sum(eta, dst, N) + 1e-6
    eta_n = eta / denom[dst]
    agg = _segment_sum(eta_n * hv[src], dst, N)
    z = x @ w_u + agg
    relu_z = torch.where(z > 0, z, 0 * z)
    return x + relu_z
```

```python
import sys, struct

N = 25000
E = 800000
NB = 98
NBINS = 256
NCH = 250
CH = 3200

WS_REC = 0
WS_TAB = 0x700000
WS_W = 0x780000
WS_ACC = 0x800000
WS_SIZE = 0x2000000

LOG2E = 1.4426950408889634
def f32bits(x): return struct.unpack('<I', struct.pack('<f', x))[0]
NEG_LOG2E = f32bits(-LOG2E)
BIG = f32bits(2.0**100)

K1_HIST = 0
K1_OFFS = 1024
K1_STAGE = 2048
K1_LDS = 2048 + CH * 8

A_OFF = 0
CNT = 16384
GS = 16896
HEADN = 17920
FLAG = 17984
TADDR = 18048
ROWS = 21888
HEADS = ROWS + NB * 512
TILES = HEADS + 16 * 512
XST = TILES + 40960
K2_LDS = XST + 32768
TSZ = 320
GMAX = 960

L = []
def e(s=""):
    for line in s.split("\n"):
        L.append(line)
def c(s): L.append("    ; " + s)

def dpp_scan(v):
    for sh in (1, 2, 4, 8):
        e(f"    s_nop 1")
        e(f"    v_add_u32_dpp {v}, {v}, {v} row_shr:{sh} row_mask:0xf bank_mask:0xf")
    e("    s_nop 1")
    e(f"    v_add_u32_dpp {v}, {v}, {v} row_bcast:15 row_mask:0xa bank_mask:0xf")
    e("    s_nop 1")
    e(f"    v_add_u32_dpp {v}, {v}, {v} row_bcast:31 row_mask:0xc bank_mask:0xf")

def gen_k1():
    e(".globl k1_kernel\n.p2align 8\n.type k1_kernel,@function\nk1_kernel:")
    e(f"""    s_cmp_ge_u32 s2, {NCH+4}
    s_cbranch_scc1 K1_END
    s_load_dwordx4 s[4:7], s[0:1], 16
    s_load_dwordx4 s[12:15], s[0:1], 0
    s_load_dwordx2 s[10:11], s[0:1], 88
    s_cmp_ge_u32 s2, {NCH}
    s_cbranch_scc1 K1_PREP
    s_mul_i32 s16, s2, {CH*4}
    v_lshlrev_b32 v1, 4, v0
    v_add_u32 v2, s16, v1
    v_lshrrev_b32 v3, 1, v2
    v_lshlrev_b32 v4, 2, v0
    v_mov_b32 v5, 0
    s_lshr_b32 s17, s2, 3
    s_mul_i32 s17, s17, 800
    v_add_u32 v6, s17, v0
    v_min_u32 v6, {N-1}, v6
    v_lshlrev_b32 v7, 7, v6
    v_lshrrev_b32 v28, 6, v0
    v_mov_b32 v29, 1
    v_readfirstlane_b32 s23, v28
    v_cmp_gt_u32 vcc, 256, v0
    s_and_saveexec_b64 s[18:19], vcc
    ds_write_b32 v4, v5 offset:{K1_HIST}
    s_mov_b64 exec, s[18:19]
    v_cmp_gt_u32 vcc, 800, v0
    s_and_b64 exec, exec, vcc
    s_mov_b64 s[20:21], exec
    s_mov_b32 s22, {-NB & 0xffffffff}
    s_waitcnt lgkmcnt(0)
    global_load_dwordx4 v[8:11], v2, s[6:7]
    global_load_dwordx4 v[12:15], v2, s[4:5]
    global_load_dwordx2 v[16:17], v3, s[14:15]
    global_load_dword v18, v7, s[12:13]
    s_barrier
    s_waitcnt vmcnt(3)""")
    for k in range(4):
        e(f"""    v_mul_u32_u24 v{32+k}, 42800, v{8+k}
    v_lshrrev_b32 v{32+k}, 22, v{32+k}
    v_mad_i32_i24 v{36+k}, v{32+k}, s22, v{8+k}
    v_lshlrev_b32 v{32+k}, 2, v{32+k}
    ds_add_rtn_u32 v{40+k}, v{32+k}, v29 offset:{K1_HIST}""")
    e("    s_waitcnt vmcnt(1)")
    for k in range(4):
        e(f"""    v_lshlrev_b32 v{20+2*k}, 7, v{12+k}
    v_lshl_or_b32 v{20+2*k}, v{36+k}, 24, v{20+2*k}""")
    e("""    v_and_b32 v21, 0xffff, v16
    v_lshrrev_b32 v23, 16, v16
    v_and_b32 v25, 0xffff, v17
    v_lshrrev_b32 v27, 16, v17
    s_waitcnt lgkmcnt(0)
    s_barrier
    s_mov_b64 exec, -1
    v_and_b32 v30, 63, v0
    v_lshlrev_b32 v31, 4, v30""")
    e(f"""    ds_read_b128 v[44:47], v31 offset:{K1_HIST}
    s_waitcnt lgkmcnt(0)
    v_add_u32 v48, v44, v45
    v_add_u32 v49, v48, v46
    v_add_u32 v50, v49, v47
    v_mov_b32 v51, v50""")
    dpp_scan("v51")
    e(f"""    v_sub_u32 v52, v51, v50
    v_add_u32 v53, v52, v44
    v_add_u32 v54, v52, v48
    v_add_u32 v55, v52, v49
    ds_write_b128 v31, v[52:55] offset:{K1_OFFS}
    s_cmp_lg_u32 s23, 0
    s_cbranch_scc1 K1_NOTAB
    v_lshl_or_b32 v56, v53, 16, v52
    v_lshl_or_b32 v57, v54, 16, v53
    v_lshl_or_b32 v58, v55, 16, v54
    v_lshl_or_b32 v59, v51, 16, v55
    s_lshl_b32 s24, s2, 10
    s_add_u32 s24, s24, {WS_TAB}
    v_add_u32 v60, s24, v31
    global_store_dwordx4 v60, v[56:59], s[10:11]
K1_NOTAB:
    s_waitcnt lgkmcnt(0)
    s_mov_b64 exec, s[20:21]""")
    for k in range(4):
        e(f"    ds_read_b32 v{44+k}, v{32+k} offset:{K1_OFFS}")
    e("    s_waitcnt lgkmcnt(0)")
    for k in range(4):
        e(f"""    v_add_lshl_u32 v{44+k}, v{44+k}, v{40+k}, 3
    ds_write_b64 v{44+k}, v[{20+2*k}:{21+2*k}] offset:{K1_STAGE}""")
    e(f"""    s_waitcnt lgkmcnt(0)
    s_barrier
    ds_read_b128 v[44:47], v1 offset:{K1_STAGE}
    ds_read_b128 v[48:51], v1 offset:{K1_STAGE+12800}
    s_mul_i32 s24, s2, {CH*8}
    v_add_u32 v52, s24, v1
    v_add_u32 v53, 12800, v52
    s_waitcnt lgkmcnt(1)
    global_store_dwordx4 v52, v[44:47], s[10:11]
    s_waitcnt lgkmcnt(0)
    global_store_dwordx4 v53, v[48:51], s[10:11]
    s_endpgm""")
    e(f"""K1_PREP:
    s_sub_u32 s16, s2, {NCH}
    s_mov_b32 s26, 1.0
    s_cmp_eq_u32 s16, 0
    s_cbranch_scc1 K1_P0
    s_cmp_eq_u32 s16, 1
    s_cbranch_scc1 K1_P1
    s_cmp_eq_u32 s16, 2
    s_cbranch_scc1 K1_P2
    s_load_dwordx2 s[24:25], s[0:1], 56
    s_branch K1_PJ
K1_P0:
    s_load_dwordx2 s[24:25], s[0:1], 40
    s_mov_b32 s26, {NEG_LOG2E:#x}
    s_branch K1_PJ
K1_P1:
    s_load_dwordx2 s[24:25], s[0:1], 64
    s_branch K1_PJ
K1_P2:
    s_load_dwordx2 s[24:25], s[0:1], 32
    s_mov_b32 s26, {NEG_LOG2E:#x}
K1_PJ:
    s_load_dwordx2 s[28:29], s[0:1], 48
    v_and_b32 v1, 63, v0
    v_lshrrev_b32 v2, 6, v0
    v_and_b32 v3, 31, v1
    v_lshrrev_b32 v4, 5, v1
    v_lshrrev_b32 v5, 1, v2
    v_and_b32 v6, 1, v2
    v_lshlrev_b32 v7, 11, v5
    v_lshl_add_u32 v7, v4, 10, v7
    v_lshl_add_u32 v7, v6, 6, v7
    v_lshl_add_u32 v7, v3, 1, v7
    s_lshl_b32 s17, s16, 13
    s_add_u32 s17, s17, {WS_W}
    v_lshlrev_b32 v8, 4, v0
    v_add_u32 v8, s17, v8
    s_waitcnt lgkmcnt(0)
    v_cmp_gt_u32 vcc, 512, v0
    s_and_saveexec_b64 s[18:19], vcc
    s_cbranch_execz K1_PWC""")
    for j in range(8):
        e(f"    global_load_ushort v{10+j}, v7, s[24:25] offset:{128*j}")
    e("    s_waitcnt vmcnt(0)")
    for j in range(8):
        e(f"""    v_lshlrev_b32 v{10+j}, 16, v{10+j}
    v_mul_f32 v{10+j}, s26, v{10+j}""")
    for j in range(4):
        e(f"    v_cvt_pk_bf16_f32 v{20+j}, v{10+2*j}, v{11+2*j}")
    e(f"""    global_store_dwordx4 v8, v[20:23], s[10:11]
K1_PWC:
    s_mov_b64 exec, s[18:19]
    s_cmp_lg_u32 s16, 0
    s_cbranch_scc1 K1_END
    v_subrev_u32 v9, 512, v0
    v_cmp_gt_u32 vcc, 128, v9
    s_and_saveexec_b64 s[18:19], vcc
    s_cbranch_execz K1_END
    v_lshrrev_b32 v6, 6, v9
    v_lshlrev_b32 v7, 6, v6
    v_lshl_add_u32 v7, v3, 1, v7
    global_load_ushort v10, v7, s[28:29]
    v_lshlrev_b32 v8, 2, v9
    v_add_u32 v8, {WS_W+32768}, v8
    v_mov_b32 v12, {BIG:#x}
    s_waitcnt vmcnt(0)
    v_lshlrev_b32 v10, 16, v10
    v_mul_f32 v10, {NEG_LOG2E:#x}, v10
    v_cvt_pk_bf16_f32 v11, v10, v12
    v_cmp_eq_u32 vcc, 0, v4
    s_nop 1
    v_cndmask_b32 v11, 0, v11, vcc
    global_store_dword v8, v11, s[10:11]
K1_END:
    s_endpgm""")

S_X, S_WS, S_OUT = "s[4:5]", "s[6:7]", "s[8:9]"
SRD_X, SRD_XB, SRD_OUT, SRD_WS = "s[12:15]", "s[16:19]", "s[20:23]", "s[24:27]"
sB, sWV, sT, sCNT, sN0, sNL = "s28", "s29", "s30", "s31", "s33", "s34"
s4T, sG, sRND, sMORE, sCAP = "s35", "s36", "s37", "s38", "s39"
sF0, sF1 = (40, 41), (42, 43)
sANY = "s44"
sMSK22, sMSKA, sM0B = "s45", "s46", "s47"
sTMP = "s48"

GA, HA, GB, HB = 64, 80, 96, 112
ACC = {'A': (56, 58), 'B': (60, 62)}
vXR = [2, 3, 4, 5]
vSRC_RD, vEW_RD, vGA_RD, vGF_RD = 6, 7, 8, 9
vCHA, vCHB, vAFC, vN4 = 10, 11, 12, 13
vGF = [16, 20]
vSRC = 24
vGA, vAFA = 28, 29
vT0, vT1, vT2 = 36, 37, 38
aWB, aWV, aX, aAFA, aAFB, aO, aU = 0, 32, 64, 80, 84, 88, 96

def mfma(d, a, b, cc):
    return f"    v_mfma_f32_32x32x16_bf16 {d}, {a}, {b}, {cc}"
def vr(b, n): return f"v[{b}:{b+n-1}]"
def ar(b, n): return f"a[{b}:{b+n-1}]"

def mfma_group(fb):
    G, H = (GA, HA) if fb == 'A' else (GB, HB)
    f = 0 if fb == 'A' else 1
    af = aAFA if fb == 'A' else aAFB
    out = [mfma(vr(G, 16), ar(aO, 4), ar(af, 4), "0")]
    for s in range(4):
        out.append(mfma(vr(G, 16), ar(aX + 4*s, 4), ar(aWB + (s*2+f)*4, 4), vr(G, 16)))
    for s in range(4):
        out.append(mfma(vr(H, 16), ar(aX + 4*s, 4), ar(aWV + (s*2+f)*4, 4), "0" if s == 0 else vr(H, 16)))
    return out

def valu_step(fb, i):
    G, H = (GA, HA) if fb == 'A' else (GB, HB)
    d, n = ACC[fb]
    g = G + 4*i; h = H + 4*i
    o = []
    for j in range(4): o.append(f"    v_exp_f32 v{g+j}, v{g+j}")
    o.append(f"    v_pk_add_f32 v[{g}:{g+1}], v[{g}:{g+1}], 1.0 op_sel_hi:[1,0]")
    o.append(f"    v_pk_add_f32 v[{g+2}:{g+3}], v[{g+2}:{g+3}], 1.0 op_sel_hi:[1,0]")
    for j in range(4): o.append(f"    v_rcp_f32 v{g+j}, v{g+j}")
    o.append(f"    v_pk_add_f32 v[{d}:{d+1}], v[{d}:{d+1}], v[{g}:{g+1}]")
    o.append(f"    v_pk_fma_f32 v[{n}:{n+1}], v[{g}:{g+1}], v[{h}:{h+1}], v[{n}:{n+1}]")
    o.append(f"    v_pk_add_f32 v[{d}:{d+1}], v[{d}:{d+1}], v[{g+2}:{g+3}]")
    o.append(f"    v_pk_fma_f32 v[{n}:{n+1}], v[{g+2}:{g+3}], v[{h+2}:{h+3}], v[{n}:{n+1}]")
    return o

FLUSHES = []
def flush_check(fb, i, par, tag):
    lbl = f"FL_{tag}_{fb}{i}"
    FLUSHES.append((lbl, fb, i, par))
    return [f"    s_bitcmp1_b32 {sANY}, {4*i}", f"    s_cbranch_scc1 {lbl}", f"{lbl}_R:"]

def flush_block(lbl, fb, i, par):
    d, n = ACC[fb]
    f = 0 if fb == 'A' else 1
    lo, hi = (sF0, sF1)[par]
    e(f"""{lbl}:
    s_bitcmp1_b32 s{lo}, {4*i}
    s_cselect_b32 exec_lo, -1, 0
    s_bitcmp1_b32 s{hi}, {4*i}
    s_cselect_b32 exec_hi, -1, 0
    v_add_u32 v{vT0}, v{vGF[par]+i}, v{vN4}
    v_add_f32 v{vT1}, v{d}, v{d+1}
    v_add_f32 v{vT2}, v{n}, v{n+1}
    ds_write_b32 v{vT0}, v{vT1} offset:{f*128}
    ds_write_b32 v{vT0}, v{vT2} offset:{256+f*128}
    v_mov_b64 v[{d}:{d+1}], 0
    v_mov_b64 v[{n}:{n+1}], 0
    s_mov_b64 exec, -1
    s_branch {lbl}_R""")

def interleave(valu, extra, positions):
    out = []
    k = 0
    for idx, x in enumerate(valu + [None]):
        while k < len(extra) and positions[k] <= idx:
            out += extra[k] if isinstance(extra[k], list) else [extra[k]]
            k += 1
        if x is not None: out.append(x)
    assert k == len(extra)
    return out

def dma_issue():
    o = []
    for k in range(4):
        ch = vCHA if k % 2 == 0 else vCHB
        o.append(f"    v_and_or_b32 v{vSRC+k}, v{vSRC+k}, {sMSK22}, v{ch}")
    o.append(f"    s_mov_b32 m0, {sM0B}")
    for k in range(4):
        o.append(f"    s_nop 0")
        o.append(f"    buffer_load_dwordx4 v{vSRC+k}, {SRD_X}, 0 offen lds")
        if k < 3: o.append(f"    s_add_u32 m0, m0, 1024")
    return o

def reads_next():
    o = []
    for s in range(4):
        o.append(f"    ds_read_b128 {ar(aX+4*s,4)}, v{vXR[s]}")
    o.append(f"    ds_read_b32 a{aO+2}, v{vEW_RD}")
    o.append(f"    ds_read_b32 v{vGA}, v{vGA_RD}")
    o.append(f"    ds_read2_b32 v[{vSRC}:{vSRC+1}], v{vSRC_RD} offset0:0 offset1:2")
    o.append(f"    ds_read2_b32 v[{vSRC+2}:{vSRC+3}], v{vSRC_RD} offset0:4 offset1:6")
    return o

def after_reads(npar):
    lo, hi = (sF0, sF1)[npar]
    o = [f"    v_and_or_b32 v{vAFA}, v{vGA}, {sMSKA}, v{vAFC}",
         f"    v_cmp_gt_i32 s[{lo}:{hi}], 0, v{vGA}",
         f"    ds_read_b64_tr_b16 {ar(aAFA,2)}, v{vAFA}",
         f"    ds_read_b64_tr_b16 {ar(aAFB,2)}, v{vAFA} offset:64",
         f"    ds_read_b128 {vr(vGF[npar],4)}, v{vGF_RD}"]
    return o

def advance_addrs():
    return [f"    v_add_u32 v{r}, {TSZ}, v{r}" for r in (vEW_RD, vGA_RD, vGF_RD, vSRC_RD)]

def tile_body(par, tag):
    npar = 1 - par
    lo, hi = (sF0, sF1)[par]
    e(f"    s_or_b32 {sANY}, s{lo}, s{hi}")
    mB = mfma_group('B')
    seq = []
    for i in range(4):
        v = valu_step('A', i)
        if i < 3:
            ex = mB[3*i:3*i+3]
            v = interleave(v, ex, [1, 5, 10])
        else:
            v = interleave(v, [["    s_waitcnt vmcnt(0)"] + reads_next()], [0])
        seq += v + flush_check('A', i, par, tag)
    for x in seq: e(x)
    mA = mfma_group('A')
    seq = []
    for i in range(4):
        v = valu_step('B', i)
        if i == 0:
            v = interleave(v, [["    s_waitcnt lgkmcnt(0)"] + after_reads(npar), dma_issue(), advance_addrs()], [0, 6, 11])
        else:
            ex = mA[3*(i-1):3*(i-1)+3]
            if i == 1: ex = [["    s_waitcnt lgkmcnt(0)", ex[0]]] + ex[1:]
            v = interleave(v, ex, [1, 5, 10])
        seq += v + flush_check('B', i, par, tag)
    for x in seq: e(x)

def narrow(k, p, lbl):
    e(f"    v_cmpx_lt_i32 vcc, {4*k+p}, v{vREM}")
    e(f"    s_cbranch_execz {lbl}")

vLANE = 1
vTAB, vLEN, vBASE, vREM, vLR = 14, 15, 33, 34, 35
vREC = 64
vRK = 96
vTMP = 112

def gen_k2():
    e(".globl k2_kernel\n.p2align 8\n.type k2_kernel,@function\nk2_kernel:")
    e(f"""    s_cmp_ge_u32 s2, {NBINS}
    s_cbranch_scc1 K2_END
    s_load_dwordx2 {S_X}, s[0:1], 0
    s_load_dwordx2 {S_OUT}, s[0:1], 72
    s_load_dwordx2 {S_WS}, s[0:1], 88
    s_and_b32 {sB}, s2, 7
    s_lshl_b32 {sB}, {sB}, 5
    s_lshr_b32 s3, s2, 3
    s_add_u32 {sB}, {sB}, s3
    s_mul_i32 {sN0}, {sB}, {NB}
    s_sub_u32 {sNL}, {N}, {sN0}
    s_min_u32 {sNL}, {sNL}, {NB}
    v_lshrrev_b32 v2, 6, v0
    v_and_b32 v{vLANE}, 63, v0
    v_readfirstlane_b32 {sWV}, v2
    s_mov_b32 {sMSK22}, 0x3fffff
    s_mov_b32 {sMSKA}, 0x3f80
    s_mov_b32 {sRND}, 0
    s_lshl_b32 s3, {sN0}, 7
    s_lshl_b32 s49, {sNL}, 7
    s_waitcnt lgkmcnt(0)
    s_mov_b32 s12, s4
    s_mov_b32 s13, s5
    s_mov_b32 s14, {N*128}
    s_mov_b32 s15, 0x00020000
    s_add_u32 s16, s4, s3
    s_addc_u32 s17, s5, 0
    s_mov_b32 s18, s49
    s_mov_b32 s19, 0x00020000
    s_add_u32 s20, s8, s3
    s_addc_u32 s21, s9, 0
    s_mov_b32 s22, s49
    s_mov_b32 s23, 0x00020000
    s_mov_b32 s24, s6
    s_mov_b32 s25, s7
    s_mov_b32 s26, {WS_SIZE}
    s_mov_b32 s27, 0x00020000""")
    c("table word: w = tid>>1")
    e(f"""    v_lshrrev_b32 v2, 1, v0
    v_lshlrev_b32 v3, 10, v2
    s_lshl_b32 s3, {sB}, 2
    s_add_u32 s3, s3, {WS_TAB}
    v_add_u32 v3, s3, v3
    buffer_load_dword v{vTAB}, v3, {SRD_WS}, 0 offen""")
    c("W fragments -> LDS (XST area), 4KB per wave")
    e(f"""    s_lshl_b32 s3, {sWV}, 12
    s_add_u32 {sM0B}, s3, {XST}
    s_mov_b32 m0, {sM0B}
    v_lshlrev_b32 v3, 4, v{vLANE}
    s_add_u32 s3, s3, {WS_W}
    v_add_u32 v3, s3, v3""")
    for k in range(4):
        e(f"    buffer_load_dwordx4 v3, {SRD_WS}, 0 offen offset:{1024*k} lds")
    c("x_bin A fragments: row = 32*rho + m ; rho = wave>>1 ; fb = wave&1")
    e(f"""    s_lshr_b32 s50, {sWV}, 1
    s_and_b32 s51, {sWV}, 1
    v_and_b32 v4, 31, v{vLANE}
    v_lshrrev_b32 v5, 5, v{vLANE}
    s_lshl_b32 s3, s50, 12
    v_lshlrev_b32 v6, 7, v4
    v_lshl_add_u32 v6, v5, 4, v6
    v_add_u32 v6, s3, v6""")
    for s in range(4):
        e(f"    buffer_load_dwordx4 {vr(vTMP+4*s,4)}, v6, {SRD_XB}, 0 offen offset:{32*s}")
    c("wc words")
    e(f"""    v_lshlrev_b32 v7, 2, v{vLANE}
    v_add_u32 v7, {WS_W+32768}, v7
    buffer_load_dword a{aAFA+2}, v7, {SRD_WS}, 0 offen
    buffer_load_dword a{aAFB+2}, v7, {SRD_WS}, 0 offen offset:256""")
    e("K2_ROUND_INIT:")
    c("LDS init: prefill tiles, zero rows, cnt, headn, flag")
    e(f"""    v_lshlrev_b32 v8, 4, v0
    v_mov_b32 v36, 0
    v_mov_b32 v37, 0x3f800000
    v_mov_b32 v38, 0
    v_mov_b32 v39, 0x3f800000
    v_add_u32 v9, {TILES}, v8""")
    for k in range(5):
        e(f"    ds_write_b128 v9, v[36:39] offset:{8192*k}")
    e(f"""    v_mov_b32 v37, 0
    v_mov_b32 v39, 0
    v_add_u32 v9, {ROWS}, v8""")
    for k in range(7):
        e(f"    ds_write_b128 v9, v[36:39] offset:{8192*k}")
    e(f"""    v_lshlrev_b32 v8, 2, v0
    v_cmp_gt_u32 vcc, 128, v0
    s_and_saveexec_b64 s[52:53], vcc
    ds_write_b32 v8, v36 offset:{CNT}
    v_mov_b32 v37, -1
    v_cmp_gt_u32 vcc, 17, v0
    s_and_b64 exec, exec, vcc
    v_cmp_gt_u32 vcc, 16, v0
    s_nop 1
    v_cndmask_b32 v37, 0, v37, vcc
    ds_write_b32 v8, v37 offset:{HEADN}
    s_mov_b64 exec, s[52:53]""")
    assert FLAG == HEADN + 64
    e(f"""    s_cmp_lg_u32 {sRND}, 0
    s_cbranch_scc1 K2_ROUND_N""")
    c("segment descriptor")
    e(f"""    s_waitcnt vmcnt(10)
    v_and_b32 v8, 0xffff, v{vTAB}
    v_lshrrev_b32 v9, 16, v{vTAB}
    v_sub_u32 v{vLEN}, v9, v8
    v_cmp_gt_u32 vcc, {2*NCH}, v0
    v_lshrrev_b32 v2, 1, v0
    v_mul_u32_u24 v2, {CH}, v2
    v_cndmask_b32 v{vLEN}, 0, v{vLEN}, vcc
    v_add_u32 v2, v2, v8
    v_and_b32 v3, 1, v0
    v_lshl_add_u32 v2, v3, 1, v2
    v_lshlrev_b32 v{vBASE}, 3, v2
K2_ROUND_N:
    s_mov_b32 {sCAP}, 32
    v_min_u32 v{vLR}, {sCAP}, v{vLEN}
    v_and_b32 v3, 1, v0
    v_lshlrev_b32 v3, 1, v3
    v_sub_u32 v{vREM}, v{vLR}, v3""")
    c("record loads")
    for k in range(8):
        e(f"    v_cmpx_lt_i32 vcc, {4*k}, v{vREM}")
        e(f"    buffer_load_dwordx4 {vr(vREC+4*k,4)}, v{vBASE}, {SRD_WS}, 0 offen offset:{32*k}")
    e("    s_mov_b64 exec, -1")
    e(f"""    s_cmp_lg_u32 {sRND}, 0
    s_cbranch_scc1 K2_SKIPW""")
    c("W fragments: the W DMA / xb / wc loads are older than the 8 record loads")
    e("    s_waitcnt vmcnt(8)")
    e("    s_waitcnt lgkmcnt(0)\n    s_barrier")
    c("read W fragments")
    e(f"""    v_lshlrev_b32 v8, 4, v{vLANE}
    v_add_u32 v8, {XST}, v8""")
    for k in range(16):
        e(f"    ds_read_b128 {ar(4*k,4)}, v8 offset:{1024*k}")
    e(f"""    s_lshl_b32 s3, s51, 10
    v_add_u32 v9, s3, v8""")
    for s in range(4):
        e(f"    ds_read_b128 {vr(40+4*s,4)}, v9 offset:{16384+2048*s}")
    for s in range(4):
        e(f"    ds_read_b128 {vr(16+4*s,4)}, v9 offset:{24576+2048*s}")
    e("    s_waitcnt lgkmcnt(0)")
    for s in range(4):
        e(mfma(ar(112,16), vr(vTMP+4*s,4), vr(40+4*s,4), "0" if s == 0 else ar(112,16)))
    for s in range(4):
        e(mfma(ar(aU,16), vr(vTMP+4*s,4), vr(16+4*s,4), "0" if s == 0 else ar(aU,16)))
    c("constants for O / Af")
    e(f"""    v_lshrrev_b32 v8, 3, v4
    v_bfe_u32 v9, v4, 2, 1
    v_cmp_eq_u32 vcc, v9, v5
    v_mov_b32 v10, 0x3f80
    v_and_b32 v11, 1, v8
    v_cndmask_b32 v10, 0, v10, vcc
    v_lshlrev_b32 v11, 4, v11
    v_lshlrev_b32 v10, v11, v10
    v_cmp_gt_u32 vcc, 2, v8
    s_nop 1
    v_cndmask_b32 v11, 0, v10, vcc
    v_cndmask_b32 v12, v10, 0, vcc
    v_accvgpr_write_b32 a{aO}, v11
    v_accvgpr_write_b32 a{aO+1}, v12
    v_mov_b32 v11, 0
    v_accvgpr_write_b32 a{aO+3}, v11
    v_accvgpr_write_b32 a{aAFA+3}, v11
    v_accvgpr_write_b32 a{aAFB+3}, v11""")
    c("A' block -> bf16 -> LDS [node][64]; node = 32rho + 8i+4h+j ; feature = 32fb+n")
    e(f"""    s_lshl_b32 s3, s50, 12
    s_lshl_b32 s49, s51, 6
    s_add_u32 s3, s3, s49
    v_lshlrev_b32 v8, 9, v5
    v_lshl_add_u32 v8, v4, 1, v8
    v_add_u32 v8, s3, v8
    s_nop 7""")
    for r in range(0, 16, 2):
        e(f"""    v_accvgpr_read_b32 v40, a{112+r}
    v_accvgpr_read_b32 v41, a{113+r}
    s_nop 0
    v_cvt_pk_bf16_f32 v42, v40, v41""")
        i, j = r >> 2, r & 3
        e(f"""    ds_write_b16 v8, v42 offset:{A_OFF + (8*i+j)*128}
    ds_write_b16_d16_hi v8, v42 offset:{A_OFF + (8*i+j+1)*128}""")
    e("K2_SKIPW:")
    e("    s_waitcnt vmcnt(0) lgkmcnt(0)\n    s_barrier")
    e("K2_COUNT:")
    c("counting pass")
    e("    v_mov_b32 v2, 1")
    for k in range(8):
        for p in range(2):
            narrow(k, p, "K2_CNT_DONE")
            w0 = vREC + 4*k + 2*p
            e(f"""    v_lshrrev_b32 v3, 22, v{w0}
    ds_add_rtn_u32 v{vRK+2*k+p}, v3, v2 offset:{CNT}""")
    e("K2_CNT_DONE:\n    s_mov_b64 exec, -1\n    s_waitcnt lgkmcnt(0)\n    s_barrier")
    c("scan over nodes (every wave redundantly)")
    e(f"""    v_lshlrev_b32 v2, 3, v{vLANE}
    ds_read_b64 v[4:5], v2 offset:{CNT}
    s_waitcnt lgkmcnt(0)
    v_add_u32 v4, 3, v4
    v_add_u32 v5, 3, v5
    v_lshrrev_b32 v4, 2, v4
    v_lshrrev_b32 v5, 2, v5
    v_add_u32 v6, v4, v5
    v_mov_b32 v7, v6""")
    dpp_scan("v7")
    e(f"""    v_sub_u32 v8, v7, v6
    v_add_u32 v9, v8, v4
    v_readlane_b32 {sG}, v7, 63
    s_nop 3
    s_cmp_le_u32 {sG}, {GMAX}
    s_cbranch_scc1 K2_FITS""")
    c("overflow: redo this round with 12 records per segment")
    e(f"""    s_barrier
    v_lshlrev_b32 v3, 2, v0
    v_mov_b32 v4, 0
    v_cmp_gt_u32 vcc, 128, v0
    s_and_saveexec_b64 s[52:53], vcc
    ds_write_b32 v3, v4 offset:{CNT}
    s_mov_b64 exec, s[52:53]
    s_mov_b32 {sCAP}, 12
    v_min_u32 v{vLR}, {sCAP}, v{vLEN}
    v_and_b32 v3, 1, v0
    v_lshlrev_b32 v3, 1, v3
    v_sub_u32 v{vREM}, v{vLR}, v3
    s_waitcnt lgkmcnt(0)
    s_barrier
    s_branch K2_COUNT
K2_FITS:
    ds_write_b64 v2, v[8:9] offset:{GS}
    s_add_u32 {sT}, {sG}, 63
    s_lshr_b32 {sT}, {sT}, 6
    s_max_u32 {sT}, {sT}, 1
    s_lshl_b32 {s4T}, {sT}, 2
    v_cvt_f32_u32 v10, {s4T}
    v_rcp_f32 v10, v10
    s_nop 0
    v_mul_f32 v11, 0.5, v10""")
    c("remaining records flag")
    e(f"""    v_cmp_gt_u32 vcc, v{vLEN}, v{vLR}
    s_and_saveexec_b64 s[52:53], vcc
    v_mov_b32 v3, 1
    v_mov_b32 v4, {FLAG}
    ds_write_b32 v4, v3
    s_mov_b64 exec, s[52:53]""")
    c("group tables: thread (nu = tid>>2, q = tid&3)")
    e(f"""    v_lshrrev_b32 v12, 2, v0
    v_and_b32 v13, 3, v0
    v_lshlrev_b32 v2, 2, v12
    s_waitcnt lgkmcnt(0)
    ds_read_b32 v4, v2 offset:{GS}
    ds_read_b32 v5, v2 offset:{GS+4}""")
    e(f"""    v_cmp_gt_u32 vcc, {NB}, v12
    s_and_b64 exec, exec, vcc
    s_cbranch_execz K2_GRP_DONE
    v_mov_b32 v16, {TILES}
    v_lshlrev_b32 v17, 7, v12
    v_lshlrev_b32 v18, 9, v12
    v_add_u32 v18, {ROWS}, v18
    s_sub_u32 s49, {s4T}, 1
    s_waitcnt lgkmcnt(0)
    v_sub_u32 v5, v5, v4
K2_GRP:
    v_cmp_lt_u32 vcc, v13, v5
    s_and_b64 exec, exec, vcc
    s_cbranch_execz K2_GRP_DONE
    v_add_u32 v6, v4, v13
    v_cvt_f32_u32 v7, v6
    v_fma_f32 v7, v7, v10, v11
    v_cvt_u32_f32 v7, v7
    v_mul_u32_u24 v8, {s4T}, v7
    v_sub_u32 v9, v6, v8
    v_lshrrev_b32 v19, 2, v9
    v_and_b32 v20, 3, v9
    v_lshrrev_b32 v21, 1, v7
    v_and_b32 v22, 1, v7
    v_mad_u32_u24 v19, v21, {sT}, v19
    v_mul_u32_u24 v19, {TSZ}, v19
    v_add_u32 v19, v16, v19
    v_lshl_add_u32 v23, v22, 7, v19
    v_lshl_add_u32 v23, v20, 3, v23
    v_lshlrev_b32 v24, 2, v6
    ds_write_b32 v24, v23 offset:{TADDR}
    v_lshl_add_u32 v19, v22, 4, v19
    v_lshl_add_u32 v19, v20, 2, v19
    v_add_u32 v25, 1, v13
    v_cmp_eq_u32 vcc, v25, v5
    v_cmp_eq_u32 s[52:53], s49, v9
    s_nop 1
    s_or_b64 vcc, vcc, s[52:53]
    v_mov_b32 v26, 0x80000000
    s_nop 1
    v_cndmask_b32 v26, 0, v26, vcc
    v_or_b32 v26, v17, v26
    ds_write_b32 v19, v26 offset:256
    v_lshlrev_b32 v27, 9, v7
    v_add_u32 v27, {HEADS}, v27
    v_cmp_ge_u32 vcc, v4, v8
    s_nop 1
    v_cndmask_b32 v27, v27, v18, vcc
    ds_write_b32 v19, v27 offset:288
    v_cmp_eq_u32 vcc, 0, v9
    v_cmp_lt_u32 s[52:53], 0, v13
    s_nop 1
    s_and_b64 vcc, vcc, s[52:53]
    s_and_saveexec_b64 s[52:53], vcc
    v_lshlrev_b32 v27, 2, v7
    ds_write_b32 v27, v12 offset:{HEADN}
    s_mov_b64 exec, s[52:53]
    v_add_u32 v13, 4, v13
    s_branch K2_GRP
K2_GRP_DONE:
    s_mov_b64 exec, -1
    s_waitcnt lgkmcnt(0)
    s_barrier""")
    c("scatter pass 1: gs[nu]")
    for k in range(8):
        for p in range(2):
            narrow(k, p, "K2_S1_DONE")
            w0 = vREC + 4*k + 2*p
            e(f"""    v_lshrrev_b32 v3, 22, v{w0}
    ds_read_b32 v{vTMP+2*k+p}, v3 offset:{GS}""")
    e("K2_S1_DONE:\n    s_mov_b64 exec, -1\n    s_waitcnt lgkmcnt(0)")
    for k in range(8):
        for p in range(2):
            narrow(k, p, "K2_S2_DONE")
            r = vRK + 2*k + p; t = vTMP + 2*k + p
            e(f"""    v_lshrrev_b32 v3, 2, v{r}
    v_add_lshl_u32 v3, v3, v{t}, 2
    ds_read_b32 v{t}, v3 offset:{TADDR}""")
    e("K2_S2_DONE:\n    s_mov_b64 exec, -1\n    s_waitcnt lgkmcnt(0)")
    for k in range(8):
        for p in range(2):
            narrow(k, p, "K2_S3_DONE")
            r = vRK + 2*k + p; t = vTMP + 2*k + p; w0 = vREC + 4*k + 2*p
            e(f"""    v_and_b32 v3, 3, v{r}
    v_lshl_add_u32 v3, v3, 5, v{t}
    ds_write_b64 v3, v[{w0}:{w0+1}]""")
    e("K2_S3_DONE:\n    s_mov_b64 exec, -1")
    c("advance segment pointers for a possible next round")
    e(f"""    v_sub_u32 v{vLEN}, v{vLEN}, v{vLR}
    v_lshl_add_u32 v{vBASE}, v{vLR}, 3, v{vBASE}
    s_waitcnt lgkmcnt(0)
    s_barrier""")
    c("main loop lane constants")
    e(f"""    v_and_b32 v30, 31, v{vLANE}
    v_lshrrev_b32 v31, 5, v{vLANE}
    s_mul_i32 s3, {sWV}, {sT}
    s_mul_i32 s3, s3, {TSZ}
    s_add_u32 s3, s3, {TILES}""")
    e(f"""    v_bfe_u32 v32, v30, 1, 3
    v_xor_b32 v32, v32, v31
    v_lshlrev_b32 v32, 4, v32
    v_lshl_add_u32 v32, v30, 7, v32
    v_add_u32 v{vXR[0]}, {sM0B}, v32""")
    for s in range(1, 4):
        e(f"    v_xor_b32 v{vXR[s]}, {32*s}, v{vXR[0]}")
    assert XST % 128 == 0
    e(f"""    v_lshrrev_b32 v32, 3, v{vLANE}
    v_lshlrev_b32 v{vSRC_RD}, 5, v32
    v_add_u32 v{vSRC_RD}, s3, v{vSRC_RD}
    v_lshrrev_b32 v{vCHA}, 1, v32
    v_and_b32 v{vCHB}, 7, v{vLANE}
    v_xor_b32 v{vCHA}, v{vCHA}, v{vCHB}
    v_lshlrev_b32 v{vCHA}, 4, v{vCHA}
    v_xor_b32 v{vCHB}, 64, v{vCHA}
    v_and_b32 v32, 7, v30
    v_lshlrev_b32 v32, 5, v32
    v_lshrrev_b32 v{vEW_RD}, 3, v30
    v_lshl_add_u32 v{vEW_RD}, v{vEW_RD}, 3, v32
    v_add_u32 v{vEW_RD}, s3, v{vEW_RD}
    v_add_u32 v{vEW_RD}, 4, v{vEW_RD}
    v_bfe_u32 v32, v{vLANE}, 2, 2
    v_lshlrev_b32 v32, 2, v32
    v_lshl_add_u32 v32, v31, 4, v32
    v_add_u32 v{vGA_RD}, s3, v32
    v_add_u32 v{vGA_RD}, 256, v{vGA_RD}
    v_lshlrev_b32 v32, 4, v31
    v_add_u32 v{vGF_RD}, s3, v32
    v_add_u32 v{vGF_RD}, 288, v{vGF_RD}
    v_bfe_u32 v32, v{vLANE}, 4, 1
    v_and_b32 v{vAFC}, 3, v{vLANE}
    v_lshlrev_b32 v{vAFC}, 3, v{vAFC}
    v_lshl_add_u32 v{vAFC}, v32, 5, v{vAFC}
    v_lshlrev_b32 v{vN4}, 2, v30""")
    for r in (56, 58, 60, 62):
        e(f"    v_mov_b64 v[{r}:{r+1}], 0")
    c("pipeline prologue: DMA(0)")
    e(f"""    ds_read2_b32 v[{vSRC}:{vSRC+1}], v{vSRC_RD} offset0:0 offset1:2
    ds_read2_b32 v[{vSRC+2}:{vSRC+3}], v{vSRC_RD} offset0:4 offset1:6
    s_waitcnt lgkmcnt(0)""")
    for x in dma_issue(): e(x)
    e(f"    v_add_u32 v{vSRC_RD}, {TSZ}, v{vSRC_RD}")
    e("    s_waitcnt vmcnt(0)")
    for x in reads_next(): e(x)
    e("    s_waitcnt lgkmcnt(0)")
    for x in after_reads(0): e(x)
    for x in dma_issue(): e(x)
    for x in advance_addrs(): e(x)
    e("    s_waitcnt lgkmcnt(0)")
    for x in mfma_group('A'): e(x)
    e(f"""    s_nop 15
    s_mov_b32 {sCNT}, {sT}
.p2align 6
K2_LOOP:""")
    tile_body(0, "p0")
    e(f"""    s_sub_u32 {sCNT}, {sCNT}, 1
    s_cmp_eq_u32 {sCNT}, 0
    s_cbranch_scc1 K2_LOOP_END""")
    tile_body(1, "p1")
    e(f"""    s_sub_u32 {sCNT}, {sCNT}, 1
    s_cmp_lg_u32 {sCNT}, 0
    s_cbranch_scc1 K2_LOOP
K2_LOOP_END:
    s_waitcnt vmcnt(0) lgkmcnt(0)
    s_barrier""")
    c("head fix-up")
    e(f"""    v_lshlrev_b32 v2, 2, v{vLANE}
    ds_read_b32 v3, v2 offset:{HEADN}
    ds_read_b32 v4, v2 offset:{HEADN+4}
    v_mov_b32 v5, {FLAG}
    ds_read_b32 v6, v5
    s_waitcnt lgkmcnt(0)
    v_readfirstlane_b32 {sMORE}, v6
    v_cmp_eq_u32 vcc, v3, v4
    v_cmp_le_i32 s[52:53], 0, v3
    s_nop 1
    s_and_b64 vcc, vcc, s[52:53]
    s_and_b32 s52, vcc_lo, 0x7fff
    s_cmp_lg_u32 s52, 0
    s_cbranch_scc1 K2_FIX_SLOW
    s_lshl_b32 s3, {sWV}, 1
    v_add_u32 v7, s3, v31
    v_lshlrev_b32 v8, 2, v7
    ds_read_b32 v9, v8 offset:{HEADN}
    v_lshlrev_b32 v7, 9, v7
    v_add_u32 v7, {HEADS}, v7
    v_add_u32 v7, v7, v{vN4}
    s_waitcnt lgkmcnt(0)
    v_cmp_le_i32 vcc, 0, v9
    s_and_saveexec_b64 s[52:53], vcc
    s_cbranch_execz K2_FIX_DONE
    v_lshlrev_b32 v9, 9, v9
    v_add_u32 v9, {ROWS}, v9
    v_add_u32 v9, v9, v{vN4}""")
    for q in range(4):
        e(f"""    ds_read_b32 v{16+q}, v7 offset:{128*q}
    ds_read_b32 v{20+q}, v9 offset:{128*q}""")
    e("    s_waitcnt lgkmcnt(0)")
    for q in range(4):
        e(f"""    v_add_f32 v{16+q}, v{16+q}, v{20+q}
    ds_write_b32 v9, v{16+q} offset:{128*q}""")
    e(f"""    s_branch K2_FIX_DONE
K2_FIX_SLOW:
    s_mov_b64 s[52:53], exec
    s_cmp_lg_u32 {sWV}, 0
    s_cbranch_scc1 K2_FIX_DONE
    s_mov_b32 s3, 0
K2_FIX_SL:
    v_readlane_b32 s49, v3, s3
    s_nop 3
    s_cmp_lt_i32 s49, 0
    s_cbranch_scc1 K2_FIX_SN
    s_lshl_b32 s49, s49, 9
    s_add_u32 s49, s49, {ROWS}
    s_lshl_b32 s54, s3, 9
    s_add_u32 s54, s54, {HEADS}
    v_lshlrev_b32 v7, 3, v{vLANE}
    v_add_u32 v8, s54, v7
    v_add_u32 v9, s49, v7
    ds_read_b64 v[16:17], v8
    ds_read_b64 v[18:19], v9
    s_waitcnt lgkmcnt(0)
    v_add_f32 v16, v16, v18
    v_add_f32 v17, v17, v19
    ds_write_b64 v9, v[16:17]
    s_waitcnt lgkmcnt(0)
K2_FIX_SN:
    s_add_u32 s3, s3, 1
    s_cmp_lt_u32 s3, 16
    s_cbranch_scc1 K2_FIX_SL
K2_FIX_DONE:
    s_mov_b64 exec, s[52:53]
    s_waitcnt lgkmcnt(0)
    s_barrier""")
    e(f"""    s_or_b32 s3, {sRND}, {sMORE}
    s_cmp_eq_u32 s3, 0
    s_cbranch_scc1 K2_EPI""")
    c("rare: several rounds. rows += saved (round>0); if more: save rows and restart")
    e(f"""    s_mul_i32 s3, {sB}, {NB*512}
    s_add_u32 s3, s3, {WS_ACC}
    v_lshlrev_b32 v2, 4, v0
    v_add_u32 v3, {ROWS}, v2
    v_add_u32 v4, s3, v2
    s_mov_b32 s49, 0
K2_MR:
    v_cmp_gt_u32 vcc, {NB*512}, v2
    s_and_saveexec_b64 s[52:53], vcc
    s_cbranch_execz K2_MR_N
    ds_read_b128 v[16:19], v3
    s_cmp_eq_u32 {sRND}, 0
    s_cbranch_scc1 K2_MR_A
    buffer_load_dwordx4 v[20:23], v4, {SRD_WS}, 0 offen
    s_waitcnt vmcnt(0) lgkmcnt(0)
    v_add_f32 v16, v16, v20
    v_add_f32 v17, v17, v21
    v_add_f32 v18, v18, v22
    v_add_f32 v19, v19, v23
    ds_write_b128 v3, v[16:19]
K2_MR_A:
    s_waitcnt lgkmcnt(0)
    s_cmp_eq_u32 {sMORE}, 0
    s_cbranch_scc1 K2_MR_N
    buffer_store_dwordx4 v[16:19], v4, {SRD_WS}, 0 offen
    s_waitcnt vmcnt(0)
K2_MR_N:
    s_mov_b64 exec, s[52:53]
    v_add_u32 v2, 8192, v2
    v_add_u32 v3, 8192, v3
    v_add_u32 v4, 8192, v4
    s_add_u32 s49, s49, 1
    s_cmp_lt_u32 s49, 7
    s_cbranch_scc1 K2_MR
    s_waitcnt vmcnt(0) lgkmcnt(0)
    s_barrier
    s_cmp_eq_u32 {sMORE}, 0
    s_cbranch_scc1 K2_EPI
    s_mov_b32 {sRND}, 1
    s_branch K2_ROUND_INIT""")
    e("K2_EPI:")
    c("wave (rho, fb): node = 32rho+8i+4h+j, feature = 32fb+n")
    e(f"""    s_lshr_b32 s50, {sWV}, 1
    s_and_b32 s51, {sWV}, 1
    s_lshl_b32 s3, s50, 12
    s_lshl_b32 s49, s51, 6
    s_add_u32 s3, s3, s49
    v_lshlrev_b32 v2, 9, v31
    v_lshl_add_u32 v2, v30, 1, v2
    v_add_u32 v2, s3, v2""")
    for r in range(16):
        i, j = r >> 2, r & 3
        e(f"    buffer_load_ushort v{64+r}, v2, {SRD_XB}, 0 offen offset:{(8*i+j)*128}")
    e(f"""    s_lshl_b32 s3, s50, 14
    s_lshl_b32 s49, s51, 7
    s_add_u32 s3, s3, s49
    s_add_u32 s3, s3, {ROWS}
    v_lshlrev_b32 v3, 11, v31
    v_add_u32 v3, v3, v{vN4}
    v_add_u32 v3, s3, v3""")
    for r in range(16):
        i, j = r >> 2, r & 3
        e(f"""    ds_read_b32 v{80+r}, v3 offset:{(8*i+j)*512}
    ds_read_b32 v{96+r}, v3 offset:{(8*i+j)*512+256}""")
    e(f"    s_mov_b32 s49, {f32bits(1e-6):#x}")
    e("    s_waitcnt lgkmcnt(0)")
    for r in range(16):
        e(f"    v_add_f32 v{80+r}, s49, v{80+r}")
    for r in range(16):
        e(f"    v_rcp_f32 v{80+r}, v{80+r}")
    for r in range(16):
        e(f"    v_accvgpr_read_b32 v{112+r}, a{aU+r}")
    for r in range(16):
        e(f"    v_fma_f32 v{112+r}, v{96+r}, v{80+r}, v{112+r}")
    for r in range(16):
        e(f"    v_max_f32 v{112+r}, 0, v{112+r}")
    e("    s_waitcnt vmcnt(0)")
    for r in range(16):
        e(f"""    v_lshlrev_b32 v{64+r}, 16, v{64+r}
    v_add_f32 v{112+r}, v{112+r}, v{64+r}""")
    for r in range(0, 16, 2):
        e(f"    v_cvt_pk_bf16_f32 v{80+r//2}, v{112+r}, v{113+r}")
    for r in range(0, 16, 2):
        i, j = r >> 2, r & 3
        e(f"""    buffer_store_short v{80+r//2}, v2, {SRD_OUT}, 0 offen offset:{(8*i+j)*128}
    buffer_store_short_d16_hi v{80+r//2}, v2, {SRD_OUT}, 0 offen offset:{(8*i+j+1)*128}""")
    e("K2_END:\n    s_endpgm")
    for f in FLUSHES: flush_block(*f)

def desc(name, nv, acc, ns):
    return f""".amdhsa_kernel {name}
  .amdhsa_next_free_vgpr {nv}
  .amdhsa_next_free_sgpr {ns}
  .amdhsa_accum_offset {acc}
  .amdhsa_group_segment_fixed_size 0
  .amdhsa_kernarg_size 96
  .amdhsa_user_sgpr_count 2
  .amdhsa_user_sgpr_kernarg_segment_ptr 1
  .amdhsa_system_sgpr_workgroup_id_x 1
  .amdhsa_float_denorm_mode_32 3
.end_amdhsa_kernel"""

def main(out):
    hdr = open('gather_scatter__edge_featured_mpnn_gatedgcn__graph.s.ref').read().split('\n')
    head = [x for x in hdr if x.startswith(';') and '@launch' not in x and 'Override launch' not in x and 'grid=ceil' not in x]
    for x in head: e(x)
    e(f"; @launch kernel=k1_kernel grid=({NCH+4},1,1) block=(832,1,1) lds={K1_LDS}")
    e(f"; @launch kernel=k2_kernel grid=({NBINS},1,1) block=(512,1,1) lds={K2_LDS}")
    e('.amdgcn_target "amdgcn-amd-amdhsa--gfx950"')
    e(".text")
    gen_k1()
    gen_k2()
    e('.section .rodata,"a"\n.p2align 6')
    e(desc("k1_kernel", 64, 64, 40))
    e(desc("k2_kernel", 256, 128, 64))
    open(out, 'w').write("\n".join(L) + "\n")

if __name__ == "__main__":
    main(sys.argv[1] if len(sys.argv) > 1 else "gather_scatter__edge_featured_mpnn_gatedgcn__graph.s")
```

```python
import sys, struct

N = 25000
E = 800000
NB = 98
NBINS = 256
NCH = 250
CH = 3200

WS_REC = 0
WS_TAB = 0x700000
WS_W = 0x780000
WS_ACC = 0x800000
WS_SIZE = 0x2000000

LOG2E = 1.4426950408889634
def f32bits(x): return struct.unpack('<I', struct.pack('<f', x))[0]
NEG_LOG2E = f32bits(-LOG2E)
BIG = f32bits(2.0**100)

K1_HIST = 0
K1_OFFS = 1024
K1_STAGE = 2048
K1_LDS = 2048 + CH * 8

A_OFF = 0
CNT = 16384
GS = 16896
GSA = 17408
HEADN = 17920
FLAG = 17984
GAT = 18048
GFT = GAT + 4096
RECS = GFT + 4096
ROWS = RECS + 31232
HEADS = ROWS + NB * 512
XST = HEADS + 16 * 512
K2_LDS = XST + 32768
GMAX = 960

import os
DBG = int(os.environ.get('DBG','0'))
WS_DBG = 0x1800000
X = set(os.environ.get('X','').split(','))
NST = [0]
vDBG = 39
def stamp(name=None):
    if not DBG: return
    i = NST[0]; NST[0] += 1
    e(f"    s_memtime s[96:97]")
    e(f"    s_waitcnt lgkmcnt(0)")
    e(f"    v_writelane_b32 v{vDBG}, s96, {i}")
def stamp_flush(wave_sgpr, kid):
    if not DBG: return
    e(f"    s_lshl_b32 s3, s2, 4")
    e(f"    s_add_u32 s3, s3, {wave_sgpr}")
    e(f"    s_lshl_b32 s3, s3, 6")
    e(f"    s_add_u32 s3, s3, {WS_DBG + kid*0x100000}")
    e(f"    s_mov_b64 exec, 0xffff")
    e(f"    v_and_b32 v2, 63, v0")
    e(f"    v_lshlrev_b32 v2, 2, v2")
    e(f"    v_add_u32 v2, s3, v2")
    e(f"    global_store_dword v2, v{vDBG}, {'s[6:7]' if kid else 's[10:11]'}")
    NST[0] = 0
L = []
def e(s=""):
    for line in s.split("\n"):
        L.append(line)
def c(s): L.append("    ; " + s)

def dpp_scan(v):
    for sh in (1, 2, 4, 8):
        e(f"    s_nop 1")
        e(f"    v_add_u32_dpp {v}, {v}, {v} row_shr:{sh} row_mask:0xf bank_mask:0xf")
    e("    s_nop 1")
    e(f"    v_add_u32_dpp {v}, {v}, {v} row_bcast:15 row_mask:0xa bank_mask:0xf")
    e("    s_nop 1")
    e(f"    v_add_u32_dpp {v}, {v}, {v} row_bcast:31 row_mask:0xc bank_mask:0xf")

def gen_k1():
    e(".globl k1_kernel\n.p2align 8\n.type k1_kernel,@function\nk1_kernel:")
    e(f"""    s_cmp_ge_u32 s2, {NCH+4}
    s_cbranch_scc1 K1_END
    s_load_dwordx4 s[4:7], s[0:1], 16
    s_load_dwordx4 s[12:15], s[0:1], 0
    s_load_dwordx2 s[10:11], s[0:1], 88
    s_cmp_ge_u32 s2, {NCH}
    s_cbranch_scc1 K1_PREP
    s_mul_i32 s16, s2, {CH*4}
    v_lshlrev_b32 v1, 4, v0
    v_add_u32 v2, s16, v1
    v_lshrrev_b32 v3, 1, v2
    v_lshlrev_b32 v4, 2, v0
    v_mov_b32 v5, 0
    s_lshr_b32 s17, s2, 3
    s_mul_i32 s17, s17, 800
    v_add_u32 v6, s17, v0
    v_min_u32 v6, {N-1}, v6
    v_lshlrev_b32 v7, 7, v6
    v_lshrrev_b32 v28, 6, v0
    v_mov_b32 v29, 1
    v_readfirstlane_b32 s23, v28
    v_cmp_gt_u32 vcc, 256, v0
    s_and_saveexec_b64 s[18:19], vcc
    ds_write_b32 v4, v5 offset:{K1_HIST}
    s_mov_b64 exec, s[18:19]
    v_cmp_gt_u32 vcc, 800, v0
    s_and_b64 exec, exec, vcc
    s_mov_b64 s[20:21], exec
    s_mov_b32 s22, {-NB & 0xffffffff}
    s_waitcnt lgkmcnt(0)
    global_load_dwordx4 v[8:11], v2, s[6:7]
    global_load_dwordx4 v[12:15], v2, s[4:5]
    global_load_dwordx2 v[16:17], v3, s[14:15]
    global_load_dword v18, v7, s[12:13]
    s_barrier
    s_waitcnt vmcnt(3)""")
    for k in range(4):
        e(f"""    v_mul_u32_u24 v{32+k}, 42800, v{8+k}
    v_lshrrev_b32 v{32+k}, 22, v{32+k}
    v_mad_i32_i24 v{36+k}, v{32+k}, s22, v{8+k}
    v_lshlrev_b32 v{32+k}, 2, v{32+k}
    ds_add_rtn_u32 v{40+k}, v{32+k}, v29 offset:{K1_HIST}""")
    e("    s_waitcnt vmcnt(1)")
    for k in range(4):
        e(f"""    v_lshlrev_b32 v{20+2*k}, 7, v{12+k}
    v_lshl_or_b32 v{20+2*k}, v{36+k}, 24, v{20+2*k}""")
    e("""    v_and_b32 v21, 0xffff, v16
    v_lshrrev_b32 v23, 16, v16
    v_and_b32 v25, 0xffff, v17
    v_lshrrev_b32 v27, 16, v17
    s_waitcnt lgkmcnt(0)
    s_barrier
    s_mov_b64 exec, -1
    v_and_b32 v30, 63, v0
    v_lshlrev_b32 v31, 4, v30""")
    e(f"""    ds_read_b128 v[44:47], v31 offset:{K1_HIST}
    s_waitcnt lgkmcnt(0)
    v_add_u32 v48, v44, v45
    v_add_u32 v49, v48, v46
    v_add_u32 v50, v49, v47
    v_mov_b32 v51, v50""")
    dpp_scan("v51")
    e(f"""    v_sub_u32 v52, v51, v50
    v_add_u32 v53, v52, v44
    v_add_u32 v54, v52, v48
    v_add_u32 v55, v52, v49
    ds_write_b128 v31, v[52:55] offset:{K1_OFFS}
    s_cmp_lg_u32 s23, 0
    s_cbranch_scc1 K1_NOTAB
    v_lshl_or_b32 v56, v53, 16, v52
    v_lshl_or_b32 v57, v54, 16, v53
    v_lshl_or_b32 v58, v55, 16, v54
    v_lshl_or_b32 v59, v51, 16, v55
    s_lshl_b32 s24, s2, 10
    s_add_u32 s24, s24, {WS_TAB}
    v_add_u32 v60, s24, v31
    global_store_dwordx4 v60, v[56:59], s[10:11]
K1_NOTAB:
    s_waitcnt lgkmcnt(0)
    s_mov_b64 exec, s[20:21]""")
    for k in range(4):
        e(f"    ds_read_b32 v{44+k}, v{32+k} offset:{K1_OFFS}")
    e("    s_waitcnt lgkmcnt(0)")
    for k in range(4):
        e(f"""    v_add_lshl_u32 v{44+k}, v{44+k}, v{40+k}, 3
    ds_write_b64 v{44+k}, v[{20+2*k}:{21+2*k}] offset:{K1_STAGE}""")
    e(f"""    s_waitcnt lgkmcnt(0)
    s_barrier
    ds_read_b128 v[44:47], v1 offset:{K1_STAGE}
    ds_read_b128 v[48:51], v1 offset:{K1_STAGE+12800}
    s_mul_i32 s24, s2, {CH*8}
    v_add_u32 v52, s24, v1
    v_add_u32 v53, 12800, v52
    s_waitcnt lgkmcnt(1)
    global_store_dwordx4 v52, v[44:47], s[10:11]
    s_waitcnt lgkmcnt(0)
    global_store_dwordx4 v53, v[48:51], s[10:11]
    s_endpgm""")
    e(f"""K1_PREP:
    s_sub_u32 s16, s2, {NCH}
    s_mov_b32 s26, 1.0
    s_cmp_eq_u32 s16, 0
    s_cbranch_scc1 K1_P0
    s_cmp_eq_u32 s16, 1
    s_cbranch_scc1 K1_P1
    s_cmp_eq_u32 s16, 2
    s_cbranch_scc1 K1_P2
    s_load_dwordx2 s[24:25], s[0:1], 56
    s_branch K1_PJ
K1_P0:
    s_load_dwordx2 s[24:25], s[0:1], 40
    s_mov_b32 s26, {NEG_LOG2E:#x}
    s_branch K1_PJ
K1_P1:
    s_load_dwordx2 s[24:25], s[0:1], 64
    s_branch K1_PJ
K1_P2:
    s_load_dwordx2 s[24:25], s[0:1], 32
    s_mov_b32 s26, {NEG_LOG2E:#x}
K1_PJ:
    s_load_dwordx2 s[28:29], s[0:1], 48
    v_and_b32 v1, 63, v0
    v_lshrrev_b32 v2, 6, v0
    v_and_b32 v3, 31, v1
    v_lshrrev_b32 v4, 5, v1
    v_lshrrev_b32 v5, 1, v2
    v_and_b32 v6, 1, v2
    v_lshlrev_b32 v7, 11, v5
    v_lshl_add_u32 v7, v4, 10, v7
    v_lshl_add_u32 v7, v6, 6, v7
    v_lshl_add_u32 v7, v3, 1, v7
    s_lshl_b32 s17, s16, 13
    s_add_u32 s17, s17, {WS_W}
    v_lshlrev_b32 v8, 4, v0
    v_add_u32 v8, s17, v8
    s_waitcnt lgkmcnt(0)
    v_cmp_gt_u32 vcc, 512, v0
    s_and_saveexec_b64 s[18:19], vcc
    s_cbranch_execz K1_PWC""")
    for j in range(8):
        e(f"    global_load_ushort v{10+j}, v7, s[24:25] offset:{128*j}")
    e("    s_waitcnt vmcnt(0)")
    for j in range(8):
        e(f"""    v_lshlrev_b32 v{10+j}, 16, v{10+j}
    v_mul_f32 v{10+j}, s26, v{10+j}""")
    for j in range(4):
        e(f"    v_cvt_pk_bf16_f32 v{20+j}, v{10+2*j}, v{11+2*j}")
    e(f"""    global_store_dwordx4 v8, v[20:23], s[10:11]
K1_PWC:
    s_mov_b64 exec, s[18:19]
    s_cmp_lg_u32 s16, 0
    s_cbranch_scc1 K1_END
    v_subrev_u32 v9, 512, v0
    v_cmp_gt_u32 vcc, 128, v9
    s_and_saveexec_b64 s[18:19], vcc
    s_cbranch_execz K1_END
    v_lshrrev_b32 v6, 6, v9
    v_lshlrev_b32 v7, 6, v6
    v_lshl_add_u32 v7, v3, 1, v7
    global_load_ushort v10, v7, s[28:29]
    v_lshlrev_b32 v8, 2, v9
    v_add_u32 v8, {WS_W+32768}, v8
    v_mov_b32 v12, {BIG:#x}
    s_waitcnt vmcnt(0)
    v_lshlrev_b32 v10, 16, v10
    v_mul_f32 v10, {NEG_LOG2E:#x}, v10
    v_cvt_pk_bf16_f32 v11, v10, v12
    v_cmp_eq_u32 vcc, 0, v4
    s_nop 1
    v_cndmask_b32 v11, 0, v11, vcc
    global_store_dword v8, v11, s[10:11]
K1_END:
    s_endpgm""")

S_X, S_WS, S_OUT = "s[4:5]", "s[6:7]", "s[8:9]"
SRD_X, SRD_XB, SRD_OUT, SRD_WS = "s[12:15]", "s[16:19]", "s[20:23]", "s[24:27]"
sB, sWV, sT, sCNT, sN0, sNL = "s28", "s29", "s30", "s31", "s33", "s34"
s4T, sG, sRND, sMORE, sCAP = "s35", "s36", "s37", "s38", "s39"
sF0, sF1 = (40, 41), (42, 43)
sANY = "s44"
sMSK22, sMSKA, sM0B = "s45", "s46", "s47"
sRHO, sFB = "s50", "s51"
sMASK = 56

GA, HA, GB, HB = 64, 80, 96, 112
ACC = {'A': (56, 58), 'B': (60, 62)}
vXR = [2, 3, 4, 5]
vSRC_RD, vEW_RD, vGA_RD, vGF_RD = 6, 7, 8, 9
vCHA, vCHB, vAFC, vN4 = 10, 11, 12, 13
vGF = [16, 20]
vSRC = 24
vGA, vAFA = 28, 29
vN, vH = 30, 31
vT0, vT1, vT2 = 36, 37, 38
aWB, aWV, aAFA, aAFB, aO, aU = 0, 32, 80, 84, 88, 96
aX = [64, 112]

INLOOP = [False]
def mfma(d, a, b, cc):
    if 'nomfma' in X and INLOOP[0]: return "    s_nop 0"
    return f"    v_mfma_f32_32x32x16_bf16 {d}, {a}, {b}, {cc}"
def vr(b, n): return f"v[{b}:{b+n-1}]"
def ar(b, n): return f"a[{b}:{b+n-1}]"

def mfma_group(fb, xb):
    G, H = (GA, HA) if fb == 'A' else (GB, HB)
    f = 0 if fb == 'A' else 1
    af = aAFA if fb == 'A' else aAFB
    out = [mfma(vr(G, 16), ar(aO, 4), ar(af, 4), "0")]
    for s in range(4):
        out.append(mfma(vr(G, 16), ar(aX[xb] + 4*s, 4), ar(aWB + (s*2+f)*4, 4), vr(G, 16)))
    for s in range(4):
        out.append(mfma(vr(H, 16), ar(aX[xb] + 4*s, 4), ar(aWV + (s*2+f)*4, 4), "0" if s == 0 else vr(H, 16)))
    return out

FLUSHES = []
def flush_check(fb, i, par, tag):
    lbl = f"FL_{tag}_{fb}{i}"
    FLUSHES.append((lbl, fb, i, par))
    if 'noflush' in X: return [f"{lbl}_R:"]
    return [f"    s_bitcmp1_b32 {sANY}, {4*i}", f"    s_cbranch_scc1 {lbl}", f"{lbl}_R:"]

def flush_block(lbl, fb, i, par):
    d, n = ACC[fb]
    f = 0 if fb == 'A' else 1
    lo, hi = (sF0, sF1)[par]
    e(f"""{lbl}:
    s_bitcmp1_b32 s{lo}, {4*i}
    s_cselect_b32 exec_lo, -1, 0
    s_bitcmp1_b32 s{hi}, {4*i}
    s_cselect_b32 exec_hi, -1, 0
    v_add_u32 v{vT0}, v{vGF[par]+i}, v{vN4}
    v_add_f32 v{vT1}, v{d}, v{d+1}
    v_add_f32 v{vT2}, v{n}, v{n+1}
    ds_write_b32 v{vT0}, v{vT1} offset:{f*128}
    ds_write_b32 v{vT0}, v{vT2} offset:{256+f*128}
    v_mov_b64 v[{d}:{d+1}], 0
    v_mov_b64 v[{n}:{n+1}], 0
    s_mov_b64 exec, -1
    s_branch {lbl}_R""")

def dma_issue():
    grp = []
    for k in range(4):
        ch = vCHA if k % 2 == 0 else vCHB
        g = [f"    v_and_or_b32 v{vSRC+k}, v{vSRC+k}, {sMSK22}, v{ch}"]
        g.append(f"    s_mov_b32 m0, {sM0B}" if k == 0 else "    s_add_u32 m0, m0, 1024")
        g.append("    s_nop 0")
        if 'nodma' not in X: g.append(f"    buffer_load_dwordx4 v{vSRC+k}, {SRD_X}, 0 offen lds")
        grp.append(g)
    return grp

def reads_next(xb):
    o = []
    for s in range(4):
        o.append(f"    ds_read_b128 {ar(aX[xb]+4*s,4)}, v{vXR[s]}")
    o.append(f"    ds_read_b32 v{vGA}, v{vGA_RD}")
    o.append(f"    ds_read2_b32 v[{vSRC}:{vSRC+1}], v{vSRC_RD} offset0:0 offset1:8")
    o.append(f"    ds_read2_b32 v[{vSRC+2}:{vSRC+3}], v{vSRC_RD} offset0:16 offset1:24")
    o.append(f"    ds_read_b32 a{aO+2}, v{vEW_RD}")
    return o

def after_reads(npar):
    lo, hi = (sF0, sF1)[npar]
    return [f"    v_and_or_b32 v{vAFA}, v{vGA}, {sMSKA}, v{vAFC}",
            f"    v_cmp_gt_i32 s[{lo}:{hi}], 0, v{vGA}",
            f"    ds_read_b64_tr_b16 {ar(aAFA,2)}, v{vAFA}",
            f"    ds_read_b64_tr_b16 {ar(aAFB,2)}, v{vAFA} offset:64",
            f"    ds_read_b128 {vr(vGF[npar],4)}, v{vGF_RD}"]

def advance_addrs():
    return [f"    v_add_u32 v{vEW_RD}, 128, v{vEW_RD}", f"    v_add_u32 v{vSRC_RD}, 128, v{vSRC_RD}",
            f"    v_add_u32 v{vGA_RD}, 16, v{vGA_RD}", f"    v_add_u32 v{vGF_RD}, 16, v{vGF_RD}"]

def phase(fb, par, tag, mf, ex1, ex2):
    G, H = (GA, HA) if fb == 'A' else (GB, HB)
    d, n = ACC[fb]
    nov = 'novalu' in X
    def run(op, mfs, mpos, ex):
        k = 0
        for j in range(17):
            while k < len(mfs) and mpos[k] == j:
                e(mfs[k]); k += 1
            for x in ex.get(j, []): e(x)
            if j < 16: e(f"    {op} v{G+j}, v{G+j}" if not nov else "    s_nop 0")
        assert k == len(mfs)
    run("v_exp_f32", mf[0:5], [0, 3, 6, 9, 12], ex1)
    for j in range(0, 16, 2):
        e(f"    v_pk_add_f32 v[{G+j}:{G+j+1}], v[{G+j}:{G+j+1}], 1.0 op_sel_hi:[1,0]" if not nov else "    s_nop 0")
    run("v_rcp_f32", mf[5:9], [0, 3, 6, 9], ex2)
    for i in range(4):
        g = G + 4*i; h = H + 4*i
        if not nov:
            e(f"    v_pk_add_f32 v[{d}:{d+1}], v[{d}:{d+1}], v[{g}:{g+1}]")
            e(f"    v_pk_fma_f32 v[{n}:{n+1}], v[{g}:{g+1}], v[{h}:{h+1}], v[{n}:{n+1}]")
            e(f"    v_pk_add_f32 v[{d}:{d+1}], v[{d}:{d+1}], v[{g+2}:{g+3}]")
            e(f"    v_pk_fma_f32 v[{n}:{n+1}], v[{g+2}:{g+3}], v[{h+2}:{h+3}], v[{n}:{n+1}]")
        for x in flush_check(fb, i, par, tag): e(x)

def tile_body(par, tag):
    npar = 1 - par
    lo, hi = (sF0, sF1)[par]
    e(f"    s_or_b32 {sANY}, s{lo}, s{hi}")
    dm = dma_issue()
    ex1 = {1: ["    s_waitcnt vmcnt(0)"] + reads_next(npar)}
    ex2 = {1: ["    s_waitcnt lgkmcnt(0)"] + after_reads(npar), 4: dm[0], 7: dm[1], 10: dm[2], 12: dm[3], 14: advance_addrs()}
    phase('A', par, tag, mfma_group('B', par), ex1, ex2)
    mA = mfma_group('A', npar)
    mA[0] = "    s_waitcnt lgkmcnt(0)\n" + mA[0]
    phase('B', par, tag, mA, {}, {})

vLANE = 1
vTAB, vLEN, vBASE, vREM, vLR = 14, 15, 33, 34, 35
vREC = 64
vRK = 96
vTMP = 112

def slots():
    for k in range(8):
        for p in range(2):
            yield k, p, 2*k+p

def gen_k2():
    e(".globl k2_kernel\n.p2align 8\n.type k2_kernel,@function\nk2_kernel:")
    e(f"""    s_cmp_ge_u32 s2, {NBINS}
    s_cbranch_scc1 K2_END
    s_load_dwordx2 {S_X}, s[0:1], 0
    s_load_dwordx2 {S_OUT}, s[0:1], 72
    s_load_dwordx2 {S_WS}, s[0:1], 88
    s_and_b32 {sB}, s2, 7
    s_lshl_b32 {sB}, {sB}, 5
    s_lshr_b32 s3, s2, 3
    s_add_u32 {sB}, {sB}, s3
    s_mul_i32 {sN0}, {sB}, {NB}
    s_sub_u32 {sNL}, {N}, {sN0}
    s_min_u32 {sNL}, {sNL}, {NB}
    v_lshrrev_b32 v2, 6, v0
    v_and_b32 v{vLANE}, 63, v0
    v_readfirstlane_b32 {sWV}, v2
    s_mov_b32 {sMSK22}, 0x3fffff
    s_mov_b32 {sMSKA}, 0x3f80
    s_mov_b32 {sRND}, 0
    s_lshl_b32 s3, {sN0}, 7
    s_lshl_b32 s49, {sNL}, 7
    v_lshrrev_b32 v2, 1, v0
    v_lshlrev_b32 v3, 10, v2
    s_lshl_b32 s48, {sB}, 2
    s_add_u32 s48, s48, {WS_TAB}
    v_add_u32 v3, s48, v3
    s_waitcnt lgkmcnt(0)
    s_mov_b32 s24, s6
    s_mov_b32 s25, s7
    s_mov_b32 s26, {WS_SIZE}
    s_mov_b32 s27, 0x00020000
    buffer_load_dword v{vTAB}, v3, {SRD_WS}, 0 offen
    s_mov_b32 s12, s4
    s_mov_b32 s13, s5
    s_mov_b32 s14, {N*128}
    s_mov_b32 s15, 0x00020000
    s_add_u32 s16, s4, s3
    s_addc_u32 s17, s5, 0
    s_mov_b32 s18, s49
    s_mov_b32 s19, 0x00020000
    s_add_u32 s20, s8, s3
    s_addc_u32 s21, s9, 0
    s_mov_b32 s22, s49
    s_mov_b32 s23, 0x00020000""")
    stamp()
    c("W fragments -> LDS (XST area), 4KB per wave")
    e(f"""    s_lshl_b32 s3, {sWV}, 12
    s_add_u32 {sM0B}, s3, {XST}
    s_mov_b32 m0, {sM0B}
    v_lshlrev_b32 v3, 4, v{vLANE}
    s_add_u32 s3, s3, {WS_W}
    v_add_u32 v3, s3, v3""")
    for k in range(4):
        e(f"    buffer_load_dwordx4 v3, {SRD_WS}, 0 offen offset:{1024*k} lds")
    c("x_bin A fragments: row = 32*rho + m ; rho = wave>>1 ; fb = wave&1")
    e(f"""    s_lshr_b32 {sRHO}, {sWV}, 1
    s_and_b32 {sFB}, {sWV}, 1
    v_and_b32 v{vN}, 31, v{vLANE}
    v_lshrrev_b32 v{vH}, 5, v{vLANE}
    s_lshl_b32 s3, {sRHO}, 12
    v_lshlrev_b32 v6, 7, v{vN}
    v_lshl_add_u32 v6, v{vH}, 4, v6
    v_add_u32 v6, s3, v6""")
    for s in range(4):
        e(f"    buffer_load_dwordx4 {vr(vTMP+4*s,4)}, v6, {SRD_XB}, 0 offen offset:{32*s}")
    c("wc words")
    e(f"""    v_lshlrev_b32 v7, 2, v{vLANE}
    v_add_u32 v7, {WS_W+32768}, v7
    buffer_load_dword a{aAFA+2}, v7, {SRD_WS}, 0 offen
    buffer_load_dword a{aAFB+2}, v7, {SRD_WS}, 0 offen offset:256""")
    c("T-independent lane constants")
    e(f"""    v_bfe_u32 v32, v{vN}, 1, 3
    v_xor_b32 v32, v32, v{vH}
    v_lshlrev_b32 v32, 4, v32
    v_lshl_add_u32 v32, v{vN}, 7, v32
    v_add_u32 v{vXR[0]}, {sM0B}, v32""")
    for s in range(1, 4):
        e(f"    v_xor_b32 v{vXR[s]}, {32*s}, v{vXR[0]}")
    assert XST % 128 == 0
    e(f"""    v_lshrrev_b32 v32, 4, v{vLANE}
    v_and_b32 v{vCHB}, 7, v{vLANE}
    v_xor_b32 v{vCHA}, v32, v{vCHB}
    v_lshlrev_b32 v{vCHA}, 4, v{vCHA}
    v_xor_b32 v{vCHB}, 64, v{vCHA}
    v_bfe_u32 v32, v{vLANE}, 4, 1
    v_and_b32 v{vAFC}, 3, v{vLANE}
    v_lshlrev_b32 v{vAFC}, 3, v{vAFC}
    v_lshl_add_u32 v{vAFC}, v32, 5, v{vAFC}
    v_lshlrev_b32 v{vN4}, 2, v{vN}""")
    e(f"""    v_lshrrev_b32 v16, 3, v{vN}
    v_bfe_u32 v17, v{vN}, 2, 1
    v_cmp_eq_u32 vcc, v17, v{vH}
    v_mov_b32 v18, 0x3f80
    v_and_b32 v19, 1, v16
    v_cndmask_b32 v18, 0, v18, vcc
    v_lshlrev_b32 v19, 4, v19
    v_lshlrev_b32 v18, v19, v18
    v_cmp_gt_u32 vcc, 2, v16
    v_mov_b32 v21, 0
    s_nop 0
    v_cndmask_b32 v19, 0, v18, vcc
    v_cndmask_b32 v20, v18, 0, vcc
    v_accvgpr_write_b32 a{aO}, v19
    v_accvgpr_write_b32 a{aO+1}, v20
    v_accvgpr_write_b32 a{aO+3}, v21
    v_accvgpr_write_b32 a{aAFA+3}, v21
    v_accvgpr_write_b32 a{aAFB+3}, v21""")
    e("K2_ROUND_INIT:")
    c("LDS init: cnt = 0, headn = -1, flag = 0")
    e(f"""    v_lshlrev_b32 v16, 2, v0
    v_mov_b32 v17, 0
    v_cmp_gt_u32 vcc, 128, v0
    s_and_saveexec_b64 s[52:53], vcc
    ds_write_b32 v16, v17 offset:{CNT}
    v_cmp_gt_u32 vcc, 17, v0
    s_and_b64 exec, exec, vcc
    v_cmp_gt_u32 vcc, 16, v0
    v_mov_b32 v18, -1
    s_nop 0
    v_cndmask_b32 v18, 0, v18, vcc
    ds_write_b32 v16, v18 offset:{HEADN}
    s_mov_b64 exec, s[52:53]""")
    assert FLAG == HEADN + 64
    e(f"""    s_cmp_lg_u32 {sRND}, 0
    s_cbranch_scc1 K2_ROUND_N""")
    c("segment descriptor")
    e(f"""    v_lshrrev_b32 v16, 1, v0
    v_mul_u32_u24 v16, {CH}, v16
    v_and_b32 v17, 1, v0
    v_lshl_add_u32 v16, v17, 1, v16
    v_cmp_gt_u32 vcc, {2*NCH}, v0
    s_waitcnt vmcnt(10)
    v_and_b32 v18, 0xffff, v{vTAB}
    v_lshrrev_b32 v19, 16, v{vTAB}
    v_sub_u32 v{vLEN}, v19, v18
    v_add_u32 v16, v16, v18
    v_cndmask_b32 v{vLEN}, 0, v{vLEN}, vcc
    v_lshlrev_b32 v{vBASE}, 3, v16
K2_ROUND_N:
    v_min_u32 v{vLR}, 32, v{vLEN}
    v_and_b32 v17, 1, v0
    v_lshlrev_b32 v17, 1, v17
    v_sub_u32 v{vREM}, v{vLR}, v17""")
    stamp()
    c("record loads")
    for k in range(8):
        e(f"    v_cmpx_lt_i32 vcc, {4*k}, v{vREM}")
        e(f"    buffer_load_dwordx4 {vr(vREC+4*k,4)}, v{vBASE}, {SRD_WS}, 0 offen offset:{32*k}")
    e("    s_mov_b64 exec, -1")
    e(f"""    s_cmp_lg_u32 {sRND}, 0
    s_cbranch_scc1 K2_SKIPW""")
    c("W DMA / xb / wc loads are older than the 8 record loads")
    e("    s_waitcnt vmcnt(8)")
    e("    s_waitcnt lgkmcnt(0)\n    s_barrier")
    stamp()
    c("read W fragments")
    e(f"""    v_lshlrev_b32 v16, 4, v{vLANE}
    v_add_u32 v16, {XST}, v16
    s_lshl_b32 s3, {sFB}, 10
    v_add_u32 v17, s3, v16""")
    for s in range(4):
        e(f"    ds_read_b128 {vr(40+4*s,4)}, v17 offset:{16384+2048*s}")
    for s in range(4):
        e(f"    ds_read_b128 {ar(112+4*s,4)}, v17 offset:{24576+2048*s}")
    for k in range(16):
        e(f"    ds_read_b128 {ar(4*k,4)}, v16 offset:{1024*k}")
    e("    s_waitcnt lgkmcnt(0)")
    for s in range(4):
        e(mfma(ar(64,16), vr(vTMP+4*s,4), vr(40+4*s,4), "0" if s == 0 else ar(64,16)))
    for s in range(4):
        e(mfma(ar(aU,16), vr(vTMP+4*s,4), ar(112+4*s,4), "0" if s == 0 else ar(aU,16)))
    c("A' block -> bf16 -> LDS [node][64]; node = 32rho + 8i+4h+j ; feature = 32fb+n")
    e(f"""    s_lshl_b32 s3, {sRHO}, 12
    s_lshl_b32 s49, {sFB}, 6
    s_add_u32 s3, s3, s49
    v_lshlrev_b32 v16, 9, v{vH}
    v_lshl_add_u32 v16, v{vN}, 1, v16
    v_add_u32 v16, s3, v16
    s_nop 7""")
    for r in range(0, 16, 2):
        e(f"""    v_accvgpr_read_b32 v40, a{64+r}
    v_accvgpr_read_b32 v41, a{65+r}
    s_nop 0
    v_cvt_pk_bf16_f32 v{42+r//2}, v40, v41""")
    for r in range(0, 16, 2):
        i, j = r >> 2, r & 3
        e(f"""    ds_write_b16 v16, v{42+r//2} offset:{A_OFF + (8*i+j)*128}
    ds_write_b16_d16_hi v16, v{42+r//2} offset:{A_OFF + (8*i+j+1)*128}""")
    e("K2_SKIPW:")
    e("    s_waitcnt vmcnt(0) lgkmcnt(0)\n    s_barrier")
    stamp()
    e("K2_COUNT:")
    c("counting pass; exec masks are kept for the scatter pass")
    e("    v_mov_b32 v16, 1")
    for k, p, q in slots():
        w0 = vREC + 4*k + 2*p
        e(f"""    v_cmpx_lt_i32 vcc, {4*k+p}, v{vREM}
    s_mov_b64 s[{sMASK+2*q}:{sMASK+2*q+1}], exec
    s_cbranch_execz K2_CNT_DONE
    v_lshrrev_b32 v17, 22, v{w0}
    ds_add_rtn_u32 v{vRK+q}, v17, v16 offset:{CNT}""")
    e("K2_CNT_DONE:\n    s_mov_b64 exec, -1\n    s_waitcnt lgkmcnt(0)\n    s_barrier")
    stamp()
    c("scan over nodes (every wave redundantly)")
    e(f"""    v_lshlrev_b32 v16, 3, v{vLANE}
    ds_read_b64 v[18:19], v16 offset:{CNT}
    s_waitcnt lgkmcnt(0)
    v_add_u32 v20, 3, v18
    v_add_u32 v21, 3, v19
    v_lshrrev_b32 v20, 2, v20
    v_lshrrev_b32 v21, 2, v21
    v_add_u32 v22, v20, v21
    v_mov_b32 v23, v22""")
    dpp_scan("v23")
    e(f"""    v_sub_u32 v24, v23, v22
    v_add_u32 v25, v24, v20
    v_readlane_b32 {sG}, v23, 63
    v_lshlrev_b32 v26, 5, v24
    v_lshlrev_b32 v27, 5, v25
    v_add_u32 v26, {RECS}, v26
    v_add_u32 v27, {RECS}, v27
    s_cmp_le_u32 {sG}, {GMAX}
    s_cbranch_scc1 K2_FITS""")
    c("overflow: redo this round with 12 records per segment")
    e(f"""    s_barrier
    v_lshlrev_b32 v16, 2, v0
    v_mov_b32 v17, 0
    v_cmp_gt_u32 vcc, 128, v0
    s_and_saveexec_b64 s[52:53], vcc
    ds_write_b32 v16, v17 offset:{CNT}
    s_mov_b64 exec, s[52:53]
    v_min_u32 v{vLR}, 12, v{vLEN}
    v_and_b32 v17, 1, v0
    v_lshlrev_b32 v17, 1, v17
    v_sub_u32 v{vREM}, v{vLR}, v17
    s_waitcnt lgkmcnt(0)
    s_barrier
    s_branch K2_COUNT
K2_FITS:
    ds_write_b64 v16, v[24:25] offset:{GS}
    ds_write_b64 v16, v[26:27] offset:{GSA}
    s_add_u32 {sT}, {sG}, 63
    s_lshr_b32 {sT}, {sT}, 6
    s_max_u32 {sT}, {sT}, 1
    s_lshl_b32 {s4T}, {sT}, 2
    v_cvt_f32_u32 v28, {s4T}
    v_rcp_f32 v28, v28
    v_lshrrev_b32 v32, 2, v0
    v_lshlrev_b32 v16, 2, v32
    v_mul_f32 v29, 0.5, v28
    s_waitcnt lgkmcnt(0)""")
    c("issue scatter lookups first (GSA[nu]), then node-level jobs while they fly")
    for k, p, q in slots():
        w0 = vREC + 4*k + 2*p
        e(f"""    s_mov_b64 exec, s[{sMASK+2*q}:{sMASK+2*q+1}]
    s_cbranch_execz K2_S1_DONE
    v_lshrrev_b32 v17, 22, v{w0}
    ds_read_b32 v{vTMP+q}, v17 offset:{GSA}""")
    e("K2_S1_DONE:\n    s_mov_b64 exec, -1")
    c("node jobs: thread (nu = tid>>2, q = tid&3)")
    e(f"""    ds_read_b32 v18, v16 offset:{GS}
    ds_read_b32 v19, v16 offset:{GS+4}
    ds_read_b32 v20, v16 offset:{CNT}
    v_and_b32 v21, 3, v0
    v_cmp_gt_u32 vcc, v{vLEN}, v{vLR}
    s_and_saveexec_b64 s[52:53], vcc
    v_mov_b32 v22, 1
    v_mov_b32 v23, {FLAG}
    ds_write_b32 v23, v22
    s_mov_b64 exec, s[52:53]
    v_cmp_gt_u32 vcc, {NB}, v32
    s_and_b64 exec, exec, vcc
    s_cbranch_execz K2_NODE_DONE
    v_lshlrev_b32 v22, 7, v32
    v_lshlrev_b32 v23, 9, v32
    v_add_u32 v23, {ROWS}, v23
    s_waitcnt lgkmcnt(0)
    v_sub_u32 v19, v19, v18
    s_mov_b64 s[54:55], exec""")
    c("empty nodes: zero the row")
    e(f"""    v_cmp_eq_u32 vcc, 0, v20
    s_and_b64 exec, exec, vcc
    s_cbranch_execz K2_NOZERO
    v_lshl_add_u32 v24, v21, 7, v23
    v_mov_b64 v[40:41], 0
    v_mov_b64 v[42:43], 0""")
    for k in range(8):
        e(f"    ds_write_b128 v24, v[40:43] offset:{16*k}")
    e(f"""K2_NOZERO:
    s_mov_b64 exec, s[54:55]""")
    c("pad slots in the last group; bulk gA")
    e(f"""    v_add_u32 v24, v20, v21
    v_lshlrev_b32 v25, 2, v19
    v_cmp_lt_u32 vcc, v24, v25
    v_lshlrev_b32 v25, 5, v18
    v_lshl_add_u32 v25, v24, 3, v25
    v_mov_b32 v26, 0
    v_mov_b32 v27, 0x3f800000
    s_and_b64 exec, exec, vcc
    ds_write_b64 v25, v[26:27] offset:{RECS}
    s_mov_b64 exec, s[54:55]
    v_add_lshl_u32 v24, v18, v21, 2
    v_add_u32 v25, 1, v21
K2_BULK:
    v_cmp_lt_u32 vcc, v25, v19
    s_and_b64 exec, exec, vcc
    s_cbranch_execz K2_BULK_DONE
    ds_write_b32 v24, v22 offset:{GAT}
    v_add_u32 v24, 16, v24
    v_add_u32 v25, 4, v25
    s_branch K2_BULK
K2_BULK_DONE:
    s_mov_b64 exec, s[54:55]
    v_cmp_eq_u32 vcc, 0, v21
    v_cmp_lt_u32 s[52:53], 0, v19
    s_nop 1
    s_and_b64 vcc, vcc, s[52:53]
    s_and_b64 exec, exec, vcc
    s_cbranch_execz K2_NODE_DONE""")
    e(f"""    v_add_u32 v24, v18, v19
    v_subrev_u32 v24, 1, v24
    v_cvt_f32_u32 v25, v18
    v_cvt_f32_u32 v26, v24
    v_fma_f32 v25, v25, v28, v29
    v_fma_f32 v26, v26, v28, v29
    v_cvt_u32_f32 v25, v25
    v_cvt_u32_f32 v26, v26
    v_or_b32 v22, 0x80000000, v22
    v_lshlrev_b32 v27, 9, v26
    v_add_u32 v27, {HEADS}, v27
    v_cmp_eq_u32 vcc, v25, v26
    v_lshlrev_b32 v24, 2, v24
    v_mov_b32 v40, v25
    v_cndmask_b32 v27, v27, v23, vcc
    ds_write_b32 v24, v22 offset:{GAT}
    ds_write_b32 v24, v27 offset:{GFT}
K2_BND:
    v_cmp_lt_u32 vcc, v40, v26
    s_and_b64 exec, exec, vcc
    s_cbranch_execz K2_NODE_DONE
    v_add_u32 v41, 1, v40
    v_mul_u32_u24 v42, {s4T}, v41
    v_lshlrev_b32 v42, 2, v42
    v_subrev_u32 v42, 4, v42
    v_lshlrev_b32 v43, 9, v40
    v_add_u32 v43, {HEADS}, v43
    v_cmp_eq_u32 vcc, v40, v25
    v_lshlrev_b32 v44, 2, v41
    v_mov_b32 v40, v41
    v_cndmask_b32 v43, v43, v23, vcc
    ds_write_b32 v42, v22 offset:{GAT}
    ds_write_b32 v42, v43 offset:{GFT}
    ds_write_b32 v44, v32 offset:{HEADN}
    s_branch K2_BND
K2_NODE_DONE:
    s_mov_b64 exec, -1""")
    c("pad groups [G, 64T)")
    e(f"""    s_lshl_b32 s3, {sT}, 6
    s_sub_u32 s3, s3, {sG}
    s_lshl_b32 s49, s3, 2
    v_cmp_gt_u32 vcc, s49, v0
    s_and_saveexec_b64 s[52:53], vcc
    s_cbranch_execz K2_PADG_DONE
    s_lshl_b32 s48, {sG}, 5
    v_lshlrev_b32 v24, 3, v0
    v_add_u32 v24, s48, v24
    v_mov_b32 v26, 0
    v_mov_b32 v27, 0x3f800000
    ds_write_b64 v24, v[26:27] offset:{RECS}
    v_cmp_gt_u32 vcc, s3, v0
    s_lshl_b32 s48, {sG}, 2
    v_lshlrev_b32 v24, 2, v0
    v_add_u32 v24, s48, v24
    s_and_b64 exec, exec, vcc
    ds_write_b32 v24, v26 offset:{GAT}
K2_PADG_DONE:
    s_mov_b64 exec, s[52:53]
    s_waitcnt lgkmcnt(0)""")
    c("scatter")
    for k, p, q in slots():
        w0 = vREC + 4*k + 2*p
        e(f"""    s_mov_b64 exec, s[{sMASK+2*q}:{sMASK+2*q+1}]
    s_cbranch_execz K2_S3_DONE
    v_lshl_add_u32 v17, v{vRK+q}, 3, v{vTMP+q}
    ds_write_b64 v17, v[{w0}:{w0+1}]""")
    e("K2_S3_DONE:\n    s_mov_b64 exec, -1")
    c("advance segment pointers for a possible next round; T-dependent addresses")
    e(f"""    v_sub_u32 v{vLEN}, v{vLEN}, v{vLR}
    v_lshl_add_u32 v{vBASE}, v{vLR}, 3, v{vBASE}
    s_lshl_b32 s3, {sWV}, 1
    s_mul_i32 s3, s3, {sT}
    s_lshl_b32 s48, s3, 7
    s_add_u32 s48, s48, {RECS}
    s_lshl_b32 s49, {sT}, 7
    v_lshrrev_b32 v16, 5, v{vLANE}
    v_mul_u32_u24 v17, s49, v16
    v_add_u32 v17, s48, v17
    v_bfe_u32 v18, v{vLANE}, 3, 2
    v_lshl_add_u32 v{vSRC_RD}, v18, 3, v17
    v_bfe_u32 v18, v{vN}, 2, 1
    v_mul_u32_u24 v18, s49, v18
    v_add_u32 v18, s48, v18
    v_lshrrev_b32 v19, 3, v{vN}
    v_lshl_add_u32 v18, v19, 5, v18
    v_and_b32 v19, 3, v{vN}
    v_lshl_add_u32 v18, v19, 3, v18
    v_add_u32 v{vEW_RD}, 4, v18
    s_lshl_b32 s48, s3, 4
    s_lshl_b32 s49, {sT}, 4
    v_mul_u32_u24 v17, s49, v16
    v_add_u32 v17, s48, v17
    v_add_u32 v{vGF_RD}, {GFT}, v17
    v_bfe_u32 v18, v{vLANE}, 2, 2
    v_lshl_add_u32 v17, v18, 2, v17
    v_add_u32 v{vGA_RD}, {GAT}, v17""")
    for r in (56, 58, 60, 62):
        e(f"    v_mov_b64 v[{r}:{r+1}], 0")
    e("    s_waitcnt lgkmcnt(0)\n    s_barrier")
    stamp()
    c("pipeline prologue: DMA(0)")
    e(f"""    ds_read2_b32 v[{vSRC}:{vSRC+1}], v{vSRC_RD} offset0:0 offset1:8
    ds_read2_b32 v[{vSRC+2}:{vSRC+3}], v{vSRC_RD} offset0:16 offset1:24
    s_waitcnt lgkmcnt(0)""")
    for g in dma_issue():
        for x in g: e(x)
    e(f"    v_add_u32 v{vSRC_RD}, 128, v{vSRC_RD}")
    e("    s_waitcnt vmcnt(0)")
    for x in reads_next(0): e(x)
    e("    s_waitcnt lgkmcnt(0)")
    for x in after_reads(0): e(x)
    for g in dma_issue():
        for x in g: e(x)
    for x in advance_addrs(): e(x)
    e("    s_waitcnt lgkmcnt(0)")
    for x in mfma_group('A', 0): e(x)
    stamp()
    e(f"""    s_nop 15
    s_mov_b32 {sCNT}, {sT}
.p2align 6
K2_LOOP:""")
    INLOOP[0] = True
    tile_body(0, "p0")
    e(f"""    s_sub_u32 {sCNT}, {sCNT}, 1
    s_cmp_eq_u32 {sCNT}, 0
    s_cbranch_scc1 K2_LOOP_END""")
    tile_body(1, "p1")
    INLOOP[0] = False
    e(f"""    s_sub_u32 {sCNT}, {sCNT}, 1
    s_cmp_lg_u32 {sCNT}, 0
    s_cbranch_scc1 K2_LOOP
K2_LOOP_END:
    s_waitcnt vmcnt(0) lgkmcnt(0)""")
    stamp()
    e("    s_barrier")
    stamp()
    c("head fix-up")
    e(f"""    v_lshlrev_b32 v40, 2, v{vLANE}
    ds_read_b32 v41, v40 offset:{HEADN}
    ds_read_b32 v42, v40 offset:{HEADN+4}
    v_mov_b32 v43, {FLAG}
    ds_read_b32 v44, v43
    s_lshl_b32 s3, {sWV}, 1
    v_add_u32 v45, s3, v{vH}
    v_lshlrev_b32 v46, 2, v45
    ds_read_b32 v47, v46 offset:{HEADN}
    v_lshlrev_b32 v45, 9, v45
    v_add_u32 v45, {HEADS}, v45
    v_add_u32 v45, v45, v{vN4}
    s_waitcnt lgkmcnt(0)
    v_readfirstlane_b32 {sMORE}, v44
    v_cmp_eq_u32 vcc, v41, v42
    v_cmp_le_i32 s[52:53], 0, v41
    s_nop 1
    s_and_b64 vcc, vcc, s[52:53]
    s_and_b32 s52, vcc_lo, 0x7fff
    s_cmp_lg_u32 s52, 0
    s_cbranch_scc1 K2_FIX_SLOW
    v_cmp_le_i32 vcc, 0, v47
    s_and_saveexec_b64 s[52:53], vcc
    s_cbranch_execz K2_FIX_DONE
    v_lshlrev_b32 v47, 9, v47
    v_add_u32 v47, {ROWS}, v47
    v_add_u32 v47, v47, v{vN4}""")
    for q in range(4):
        e(f"""    ds_read_b32 v{16+q}, v45 offset:{128*q}
    ds_read_b32 v{20+q}, v47 offset:{128*q}""")
    e("    s_waitcnt lgkmcnt(0)")
    for q in range(4):
        e(f"""    v_add_f32 v{16+q}, v{16+q}, v{20+q}
    ds_write_b32 v47, v{16+q} offset:{128*q}""")
    e(f"""    s_branch K2_FIX_DONE
K2_FIX_SLOW:
    s_mov_b64 s[52:53], exec
    s_cmp_lg_u32 {sWV}, 0
    s_cbranch_scc1 K2_FIX_DONE
    s_mov_b32 s3, 0
K2_FIX_SL:
    v_readlane_b32 s49, v41, s3
    s_nop 3
    s_cmp_lt_i32 s49, 0
    s_cbranch_scc1 K2_FIX_SN
    s_lshl_b32 s49, s49, 9
    s_add_u32 s49, s49, {ROWS}
    s_lshl_b32 s54, s3, 9
    s_add_u32 s54, s54, {HEADS}
    v_lshlrev_b32 v45, 3, v{vLANE}
    v_add_u32 v46, s54, v45
    v_add_u32 v47, s49, v45
    ds_read_b64 v[16:17], v46
    ds_read_b64 v[18:19], v47
    s_waitcnt lgkmcnt(0)
    v_add_f32 v16, v16, v18
    v_add_f32 v17, v17, v19
    ds_write_b64 v47, v[16:17]
    s_waitcnt lgkmcnt(0)
K2_FIX_SN:
    s_add_u32 s3, s3, 1
    s_cmp_lt_u32 s3, 16
    s_cbranch_scc1 K2_FIX_SL
K2_FIX_DONE:
    s_mov_b64 exec, s[52:53]
    s_waitcnt lgkmcnt(0)
    s_barrier""")
    e(f"""    s_or_b32 s3, {sRND}, {sMORE}
    s_cmp_eq_u32 s3, 0
    s_cbranch_scc1 K2_EPI""")
    c("rare: several rounds. rows += saved (round>0); if more: save rows and restart")
    e(f"""    s_mul_i32 s3, {sB}, {NB*512}
    s_add_u32 s3, s3, {WS_ACC}
    v_lshlrev_b32 v40, 4, v0
    v_add_u32 v41, {ROWS}, v40
    v_add_u32 v42, s3, v40
    s_mov_b32 s49, 0
K2_MR:
    v_cmp_gt_u32 vcc, {NB*512}, v40
    s_and_saveexec_b64 s[52:53], vcc
    s_cbranch_execz K2_MR_N
    ds_read_b128 v[16:19], v41
    s_cmp_eq_u32 {sRND}, 0
    s_cbranch_scc1 K2_MR_A
    buffer_load_dwordx4 v[20:23], v42, {SRD_WS}, 0 offen
    s_waitcnt vmcnt(0) lgkmcnt(0)
    v_add_f32 v16, v16, v20
    v_add_f32 v17, v17, v21
    v_add_f32 v18, v18, v22
    v_add_f32 v19, v19, v23
    ds_write_b128 v41, v[16:19]
K2_MR_A:
    s_waitcnt lgkmcnt(0)
    s_cmp_eq_u32 {sMORE}, 0
    s_cbranch_scc1 K2_MR_N
    buffer_store_dwordx4 v[16:19], v42, {SRD_WS}, 0 offen
    s_waitcnt vmcnt(0)
K2_MR_N:
    s_mov_b64 exec, s[52:53]
    v_add_u32 v40, 8192, v40
    v_add_u32 v41, 8192, v41
    v_add_u32 v42, 8192, v42
    s_add_u32 s49, s49, 1
    s_cmp_lt_u32 s49, 7
    s_cbranch_scc1 K2_MR
    s_waitcnt vmcnt(0) lgkmcnt(0)
    s_barrier
    s_cmp_eq_u32 {sMORE}, 0
    s_cbranch_scc1 K2_EPI
    s_mov_b32 {sRND}, 1
    s_branch K2_ROUND_INIT""")
    e("K2_EPI:")
    stamp()
    c("wave (rho, fb): node = 32rho+8i+4h+j, feature = 32fb+n")
    e(f"""    s_lshl_b32 s3, {sRHO}, 12
    s_lshl_b32 s49, {sFB}, 6
    s_add_u32 s3, s3, s49
    v_lshlrev_b32 v2, 9, v{vH}
    v_lshl_add_u32 v2, v{vN}, 1, v2
    v_add_u32 v2, s3, v2""")
    for r in range(16):
        i, j = r >> 2, r & 3
        e(f"    buffer_load_ushort v{64+r}, v2, {SRD_XB}, 0 offen offset:{(8*i+j)*128}")
    e(f"""    s_lshl_b32 s3, {sRHO}, 14
    s_lshl_b32 s49, {sFB}, 7
    s_add_u32 s3, s3, s49
    s_add_u32 s3, s3, {ROWS}
    v_lshlrev_b32 v3, 11, v{vH}
    v_add_u32 v3, v3, v{vN4}
    v_add_u32 v3, s3, v3""")
    for r in range(16):
        i, j = r >> 2, r & 3
        e(f"""    ds_read_b32 v{80+r}, v3 offset:{(8*i+j)*512}
    ds_read_b32 v{96+r}, v3 offset:{(8*i+j)*512+256}""")
    e(f"    s_mov_b32 s49, {f32bits(1e-6):#x}")
    e("    s_waitcnt lgkmcnt(0)")
    for r in range(16):
        e(f"    v_add_f32 v{80+r}, s49, v{80+r}")
    for r in range(16):
        e(f"    v_rcp_f32 v{80+r}, v{80+r}")
    for r in range(16):
        e(f"    v_accvgpr_read_b32 v{112+r}, a{aU+r}")
    for r in range(16):
        e(f"    v_fma_f32 v{112+r}, v{96+r}, v{80+r}, v{112+r}")
    for r in range(16):
        e(f"    v_max_f32 v{112+r}, 0, v{112+r}")
    e("    s_waitcnt vmcnt(0)")
    for r in range(16):
        e(f"""    v_lshlrev_b32 v{64+r}, 16, v{64+r}
    v_add_f32 v{112+r}, v{112+r}, v{64+r}""")
    for r in range(0, 16, 2):
        e(f"    v_cvt_pk_bf16_f32 v{80+r//2}, v{112+r}, v{113+r}")
    for r in range(0, 16, 2):
        i, j = r >> 2, r & 3
        e(f"""    buffer_store_short v{80+r//2}, v2, {SRD_OUT}, 0 offen offset:{(8*i+j)*128}
    buffer_store_short_d16_hi v{80+r//2}, v2, {SRD_OUT}, 0 offen offset:{(8*i+j+1)*128}""")
    stamp()
    stamp_flush(sWV, 1)
    e("K2_END:\n    s_endpgm")
    for f in FLUSHES: flush_block(*f)

def desc(name, nv, acc, ns):
    return f""".amdhsa_kernel {name}
  .amdhsa_next_free_vgpr {nv}
  .amdhsa_next_free_sgpr {ns}
  .amdhsa_accum_offset {acc}
  .amdhsa_group_segment_fixed_size 0
  .amdhsa_kernarg_size 96
  .amdhsa_user_sgpr_count 2
  .amdhsa_user_sgpr_kernarg_segment_ptr 1
  .amdhsa_system_sgpr_workgroup_id_x 1
  .amdhsa_float_denorm_mode_32 3
.end_amdhsa_kernel"""

def main(out):
    hdr = open('gather_scatter__edge_featured_mpnn_gatedgcn__graph.s.ref').read().split('\n')
    head = [x for x in hdr if x.startswith(';') and '@launch' not in x and 'Override launch' not in x and 'grid=ceil' not in x]
    for x in head: e(x)
    e(f"; @launch kernel=k1_kernel grid=({NCH+4},1,1) block=(832,1,1) lds={K1_LDS}")
    e(f"; @launch kernel=k2_kernel grid=({NBINS},1,1) block=(512,1,1) lds={K2_LDS}")
    e('.amdgcn_target "amdgcn-amd-amdhsa--gfx950"')
    e(".text")
    gen_k1()
    gen_k2()
    e('.section .rodata,"a"\n.p2align 6')
    e(desc("k1_kernel", 64, 64, 40))
    e(desc("k2_kernel", 256, 128, 100))
    open(out, 'w').write("\n".join(L) + "\n")

if __name__ == "__main__":
    main(sys.argv[1] if len(sys.argv) > 1 else "gather_scatter__edge_featured_mpnn_gatedgcn__graph.s")
```

```python
import sys, struct

N = 25000
E = 800000
NB = 98
NBINS = 256
NCH = 250
CH = 3200

WS_REC = 0
WS_TAB = 0x700000
WS_W = 0x780000
WS_ACC = 0x800000
WS_SIZE = 0x2000000

LOG2E = 1.4426950408889634
def f32bits(x): return struct.unpack('<I', struct.pack('<f', x))[0]
NEG_LOG2E = f32bits(-LOG2E)
BIG = f32bits(2.0**100)

K1_HIST = 0
K1_OFFS = 1024
K1_STAGE = 2048
K1_LDS = 2048 + CH * 8

A_OFF = 0
CNT = 16384
GS = CNT + 768
GSA = GS + 512
HEADN = GSA + 768
FLAG = HEADN + 64
GAT = 18688
GFT = GAT + 4096
GKT = GFT + 4096
RECS = GKT + 4096
DUMMY = RECS + 31232
ROWS = DUMMY + 512
HEADS = ROWS + NB * 512
XST = HEADS + 16 * 512
K2_LDS = XST + 32768
XBS = RECS
assert GAT % 256 == 0 and XST % 128 == 0 and XBS % 128 == 0
GMAX = 960

import os
DBG = int(os.environ.get('DBG','0'))
WS_DBG = 0x1800000
X = set(os.environ.get('X','').split(','))
NST = [0]
vDBG = 38
def stamp(name=None):
    if not DBG: return
    i = NST[0]; NST[0] += 1
    e(f"    s_memtime s[96:97]")
    e(f"    s_waitcnt lgkmcnt(0)")
    e(f"    v_writelane_b32 v{vDBG}, s96, {i}")
NST1 = [0]
def stamp1():
    if not DBG: return
    i = NST1[0]; NST1[0] += 1
    e(f"    s_memtime s[32:33]")
    e(f"    s_waitcnt lgkmcnt(0)")
    e(f"    v_writelane_b32 v61, s32, {i}")
    if i == 0:
        e("    s_memrealtime s[34:35]\n    s_waitcnt lgkmcnt(0)\n    v_writelane_b32 v61, s34, 14")
def stamp_flush(wave_sgpr, kid):
    if not DBG: return
    e(f"    s_lshl_b32 s3, s2, 4")
    e(f"    s_add_u32 s3, s3, {wave_sgpr}")
    e(f"    s_lshl_b32 s3, s3, 6")
    e(f"    s_add_u32 s3, s3, {WS_DBG + kid*0x100000}")
    e(f"    s_mov_b64 exec, 0xffff")
    e(f"    v_and_b32 v2, 63, v0")
    e(f"    v_lshlrev_b32 v2, 2, v2")
    e(f"    v_add_u32 v2, s3, v2")
    e(f"    global_store_dword v2, v{vDBG}, {'s[6:7]' if kid else 's[10:11]'}")
    NST[0] = 0
L = []
def e(s=""):
    for line in s.split("\n"):
        L.append(line)
def c(s): L.append("    ; " + s)

def dpp_scan(v):
    for sh in (1, 2, 4, 8):
        e(f"    s_nop 1")
        e(f"    v_add_u32_dpp {v}, {v}, {v} row_shr:{sh} row_mask:0xf bank_mask:0xf")
    e("    s_nop 1")
    e(f"    v_add_u32_dpp {v}, {v}, {v} row_bcast:15 row_mask:0xa bank_mask:0xf")
    e("    s_nop 1")
    e(f"    v_add_u32_dpp {v}, {v}, {v} row_bcast:31 row_mask:0xc bank_mask:0xf")

def gen_k1():
    e(".globl k1_kernel\n.p2align 8\n.type k1_kernel,@function\nk1_kernel:")
    e(f"""    s_cmp_ge_u32 s2, {NCH+4}
    s_cbranch_scc1 K1_END
    s_load_dwordx4 s[4:7], s[0:1], 16
    s_load_dwordx4 s[12:15], s[0:1], 0
    s_load_dwordx2 s[10:11], s[0:1], 88
    s_cmp_ge_u32 s2, {NCH}
    s_cbranch_scc1 K1_PREP
    s_mul_i32 s16, s2, {CH*4}
    v_lshlrev_b32 v1, 4, v0
    v_add_u32 v2, s16, v1
    v_lshrrev_b32 v3, 1, v2
    v_lshlrev_b32 v4, 2, v0
    v_mov_b32 v5, 0
    s_lshr_b32 s17, s2, 3
    s_mul_i32 s17, s17, 800
    v_add_u32 v6, s17, v0
    v_min_u32 v6, {N-1}, v6
    v_lshlrev_b32 v7, 7, v6
    v_lshrrev_b32 v28, 6, v0
    v_mov_b32 v29, 1
    v_readfirstlane_b32 s23, v28
    v_cmp_gt_u32 vcc, 256, v0
    s_and_saveexec_b64 s[18:19], vcc
    ds_write_b32 v4, v5 offset:{K1_HIST}
    s_mov_b64 exec, s[18:19]
    v_cmp_gt_u32 vcc, 800, v0
    s_and_b64 exec, exec, vcc
    s_mov_b64 s[20:21], exec
    s_mov_b32 s22, {-NB & 0xffffffff}
    s_waitcnt lgkmcnt(0)""")
    stamp1()
    e(f"""    global_load_dwordx4 v[8:11], v2, s[6:7]
    global_load_dwordx4 v[12:15], v2, s[4:5]
    global_load_dwordx2 v[16:17], v3, s[14:15]
""")
    if 'nopf' in X: e("    v_mov_b32 v7, 0")
    e(f"""    global_load_dword v18, v7, s[12:13]
    s_barrier
    s_waitcnt vmcnt(3)""")
    stamp1()
    for k in range(4):
        e(f"""    v_mul_u32_u24 v{32+k}, 42800, v{8+k}
    v_lshrrev_b32 v{32+k}, 22, v{32+k}
    v_mad_i32_i24 v{36+k}, v{32+k}, s22, v{8+k}
    v_lshlrev_b32 v{32+k}, 2, v{32+k}
    ds_add_rtn_u32 v{40+k}, v{32+k}, v29 offset:{K1_HIST}""")
    e("    s_waitcnt vmcnt(1)")
    for k in range(4):
        e(f"""    v_lshlrev_b32 v{20+2*k}, 7, v{12+k}
    v_lshl_or_b32 v{20+2*k}, v{36+k}, 24, v{20+2*k}""")
    e("""    v_and_b32 v21, 0xffff, v16
    v_lshrrev_b32 v23, 16, v16
    v_and_b32 v25, 0xffff, v17
    v_lshrrev_b32 v27, 16, v17
    s_waitcnt lgkmcnt(0)""")
    stamp1()
    e("""    s_barrier
    s_mov_b64 exec, -1
    v_and_b32 v30, 63, v0
    v_lshlrev_b32 v31, 4, v30""")
    e(f"""    ds_read_b128 v[44:47], v31 offset:{K1_HIST}
    s_waitcnt lgkmcnt(0)
    v_add_u32 v48, v44, v45
    v_add_u32 v49, v48, v46
    v_add_u32 v50, v49, v47
    v_mov_b32 v51, v50""")
    dpp_scan("v51")
    e(f"""    v_sub_u32 v52, v51, v50
    v_add_u32 v53, v52, v44
    v_add_u32 v54, v52, v48
    v_add_u32 v55, v52, v49
    ds_write_b128 v31, v[52:55] offset:{K1_OFFS}
    s_cmp_lg_u32 s23, 0
    s_cbranch_scc1 K1_NOTAB
    v_lshl_or_b32 v56, v53, 16, v52
    v_lshl_or_b32 v57, v54, 16, v53
    v_lshl_or_b32 v58, v55, 16, v54
    v_lshl_or_b32 v59, v51, 16, v55
    s_lshl_b32 s24, s2, 10
    s_add_u32 s24, s24, {WS_TAB}
    v_add_u32 v60, s24, v31
    global_store_dwordx4 v60, v[56:59], s[10:11]
K1_NOTAB:
    s_waitcnt lgkmcnt(0)""")
    stamp1()
    e("""    s_mov_b64 exec, s[20:21]""")
    for k in range(4):
        e(f"    ds_read_b32 v{44+k}, v{32+k} offset:{K1_OFFS}")
    e("    s_waitcnt lgkmcnt(0)")
    for k in range(4):
        e(f"""    v_add_lshl_u32 v{44+k}, v{44+k}, v{40+k}, 3
    ds_write_b64 v{44+k}, v[{20+2*k}:{21+2*k}] offset:{K1_STAGE}""")
    e("    s_waitcnt lgkmcnt(0)")
    stamp1()
    e(f"""    s_barrier
    ds_read_b128 v[44:47], v1 offset:{K1_STAGE}
    ds_read_b128 v[48:51], v1 offset:{K1_STAGE+12800}
    s_mul_i32 s24, s2, {CH*8}
    v_add_u32 v52, s24, v1
    v_add_u32 v53, 12800, v52
    s_waitcnt lgkmcnt(1)
    global_store_dwordx4 v52, v[44:47], s[10:11]
    s_waitcnt lgkmcnt(0)
    global_store_dwordx4 v53, v[48:51], s[10:11]""")
    stamp1()
    if DBG:
        e("    s_waitcnt vmcnt(0)")
        stamp1()
        e("    s_memrealtime s[34:35]\n    s_waitcnt lgkmcnt(0)\n    v_writelane_b32 v61, s34, 15")
        e(f"""    s_lshl_b32 s3, s2, 4
    s_add_u32 s3, s3, s23
    s_lshl_b32 s3, s3, 6
    s_add_u32 s3, s3, {WS_DBG}
    s_mov_b64 exec, 0xffff
    v_and_b32 v2, 63, v0
    v_lshlrev_b32 v2, 2, v2
    v_add_u32 v2, s3, v2
    global_store_dword v2, v61, s[10:11]""")
    e("    s_endpgm")
    e(f"""K1_PREP:
    s_sub_u32 s16, s2, {NCH}
    s_mov_b32 s26, 1.0
    s_cmp_eq_u32 s16, 0
    s_cbranch_scc1 K1_P0
    s_cmp_eq_u32 s16, 1
    s_cbranch_scc1 K1_P1
    s_cmp_eq_u32 s16, 2
    s_cbranch_scc1 K1_P2
    s_load_dwordx2 s[24:25], s[0:1], 56
    s_branch K1_PJ
K1_P0:
    s_load_dwordx2 s[24:25], s[0:1], 40
    s_mov_b32 s26, {NEG_LOG2E:#x}
    s_branch K1_PJ
K1_P1:
    s_load_dwordx2 s[24:25], s[0:1], 64
    s_branch K1_PJ
K1_P2:
    s_load_dwordx2 s[24:25], s[0:1], 32
    s_mov_b32 s26, {NEG_LOG2E:#x}
K1_PJ:
    s_load_dwordx2 s[28:29], s[0:1], 48
    v_and_b32 v1, 63, v0
    v_lshrrev_b32 v2, 6, v0
    v_and_b32 v3, 31, v1
    v_lshrrev_b32 v4, 5, v1
    v_lshrrev_b32 v5, 1, v2
    v_and_b32 v6, 1, v2
    v_lshlrev_b32 v7, 11, v5
    v_lshl_add_u32 v7, v4, 10, v7
    v_lshl_add_u32 v7, v6, 6, v7
    v_lshl_add_u32 v7, v3, 1, v7
    s_lshl_b32 s17, s16, 13
    s_add_u32 s17, s17, {WS_W}
    v_lshlrev_b32 v8, 4, v0
    v_add_u32 v8, s17, v8
    s_waitcnt lgkmcnt(0)
    v_cmp_gt_u32 vcc, 512, v0
    s_and_saveexec_b64 s[18:19], vcc
    s_cbranch_execz K1_PWC""")
    for j in range(8):
        e(f"    global_load_ushort v{10+j}, v7, s[24:25] offset:{128*j}")
    e("    s_waitcnt vmcnt(0)")
    for j in range(8):
        e(f"""    v_lshlrev_b32 v{10+j}, 16, v{10+j}
    v_mul_f32 v{10+j}, s26, v{10+j}""")
    for j in range(4):
        e(f"    v_cvt_pk_bf16_f32 v{20+j}, v{10+2*j}, v{11+2*j}")
    e(f"""    global_store_dwordx4 v8, v[20:23], s[10:11]
K1_PWC:
    s_mov_b64 exec, s[18:19]
    s_cmp_lg_u32 s16, 0
    s_cbranch_scc1 K1_END
    v_subrev_u32 v9, 512, v0
    v_cmp_gt_u32 vcc, 128, v9
    s_and_saveexec_b64 s[18:19], vcc
    s_cbranch_execz K1_END
    v_lshrrev_b32 v6, 6, v9
    v_lshlrev_b32 v7, 6, v6
    v_lshl_add_u32 v7, v3, 1, v7
    global_load_ushort v10, v7, s[28:29]
    v_lshlrev_b32 v8, 2, v9
    v_add_u32 v8, {WS_W+32768}, v8
    v_mov_b32 v12, {BIG:#x}
    s_waitcnt vmcnt(0)
    v_lshlrev_b32 v10, 16, v10
    v_mul_f32 v10, {NEG_LOG2E:#x}, v10
    v_cvt_pk_bf16_f32 v11, v10, v12
    v_cmp_eq_u32 vcc, 0, v4
    s_nop 1
    v_cndmask_b32 v11, 0, v11, vcc
    global_store_dword v8, v11, s[10:11]
K1_END:
    s_endpgm""")

S_X, S_WS, S_OUT = "s[4:5]", "s[6:7]", "s[8:9]"
SRD_X, SRD_XB, SRD_OUT, SRD_WS = "s[12:15]", "s[16:19]", "s[20:23]", "s[24:27]"
sB, sWV, sT, sCNT, sN0, sNL = "s28", "s29", "s30", "s31", "s33", "s34"
s4T, sG, sRND, sMORE, sKM = "s35", "s36", "s37", "s38", "s39"
sMSK22, sMSKA, sM0B = "s45", "s46", "s47"
sRHO, sFB = "s50", "s51"
sMASK = 56

GA, HA, GB, HB = 64, 80, 96, 112
ACC = {'A': 56, 'B': 58}
vXR = [2, 3, 4, 5]
vSRC_RD, vEW_RD, vGA_RD, vGF_RD = 6, 7, 8, 9
vCHA, vCHB, vAFC, vN4 = 10, 11, 12, 13
vN, vH = 14, 15
vGF = [16, 20]
vSRC = 24
vGA, vAFA = 28, 29
vLEN, vBASE = (30, 31), (32, 33)
vXP = 34
vGK = [40, 44]
vUT = 48
aWB, aWV, aAFA, aAFB, aO, aU = 0, 32, 80, 84, 88, 96
aX = [64, 112]

INLOOP = [False]
def mfma(d, a, b, cc):
    if 'nomfma' in X and INLOOP[0]: return "    s_nop 0"
    return f"    v_mfma_f32_32x32x16_bf16 {d}, {a}, {b}, {cc}"
def vr(b, n): return f"v[{b}:{b+n-1}]"
def ar(b, n): return f"a[{b}:{b+n-1}]"

def mfma_group(fb, xb):
    G, H = (GA, HA) if fb == 'A' else (GB, HB)
    f = 0 if fb == 'A' else 1
    af = aAFA if fb == 'A' else aAFB
    out = [mfma(vr(G, 16), ar(aO, 4), ar(af, 4), "0")]
    for s in range(4):
        out.append(mfma(vr(G, 16), ar(aX[xb] + 4*s, 4), ar(aWB + (s*2+f)*4, 4), vr(G, 16)))
    for s in range(4):
        out.append(mfma(vr(H, 16), ar(aX[xb] + 4*s, 4), ar(aWV + (s*2+f)*4, 4), "0" if s == 0 else vr(H, 16)))
    return out

def dma_issue():
    grp = []
    for k in range(4):
        ch = vCHA if k % 2 == 0 else vCHB
        g = [f"    v_and_or_b32 v{vSRC+k}, v{vSRC+k}, {sMSK22}, v{ch}"]
        g.append(f"    s_mov_b32 m0, {sM0B}" if k == 0 else "    s_add_u32 m0, m0, 1024")
        g.append("    s_nop 0")
        if 'nodma' not in X: g.append(f"    buffer_load_dwordx4 v{vSRC+k}, {SRD_X}, 0 offen lds")
        grp.append(g)
    return grp

def src_reads(o1):
    return [f"    ds_read2_b32 v[{vSRC}:{vSRC+1}], v{vSRC_RD} offset0:{32*o1} offset1:{32*o1+8}",
            f"    ds_read2_b32 v[{vSRC+2}:{vSRC+3}], v{vSRC_RD} offset0:{32*o1+16} offset1:{32*o1+24}"]

def reads_next(xb, o1=0):
    o = []
    for s in range(4):
        o.append(f"    ds_read_b128 {ar(aX[xb]+4*s,4)}, v{vXR[s]}")
    o.append(f"    ds_read_b32 v{vGA}, v{vGA_RD} offset:{16*o1}")
    o += src_reads(o1)
    o.append(f"    ds_read_b32 a{aO+2}, v{vEW_RD} offset:{128*o1}")
    return o

def after_reads(npar, o1=0):
    return [f"    v_and_or_b32 v{vAFA}, v{vGA}, {sMSKA}, v{vAFC}",
            f"    ds_read_b64_tr_b16 {ar(aAFA,2)}, v{vAFA}",
            f"    ds_read_b64_tr_b16 {ar(aAFB,2)}, v{vAFA} offset:64",
            f"    ds_read_b128 {vr(vGF[npar],4)}, v{vGF_RD} offset:{16*o1}",
            f"    ds_read_b128 {vr(vGK[npar],4)}, v{vGF_RD} offset:{GKT-GFT+16*o1}"]
def gf_fix(npar):
    return [f"    v_add_u32 v{vGF[npar]+i}, v{vGF[npar]+i}, v{vN4}" for i in range(4)]

def advance_addrs(m):
    return [f"    v_add_u32 v{vEW_RD}, {128*m}, v{vEW_RD}", f"    v_add_u32 v{vSRC_RD}, {128*m}, v{vSRC_RD}",
            f"    v_add_u32 v{vGA_RD}, {16*m}, v{vGA_RD}", f"    v_add_u32 v{vGF_RD}, {16*m}, v{vGF_RD}"]

def phase(fb, par, mf, ex1, ex2):
    G, H = (GA, HA) if fb == 'A' else (GB, HB)
    d = ACC[fb]
    nov = 'novalu' in X
    def run(op, mfs, mpos, ex):
        k = 0
        for j in range(17):
            while k < len(mfs) and mpos[k] == j:
                e(mfs[k]); k += 1
            for x in ex.get(j, []): e(x)
            if j < 16: e(f"    {op} v{G+j}, v{G+j}" if not nov else "    s_nop 0")
        assert k == len(mfs)
    run("v_exp_f32", mf[0:5], [0, 3, 6, 9, 12], ex1)
    for j in range(0, 16, 2):
        e(f"    v_pk_add_f32 v[{G+j}:{G+j+1}], v[{G+j}:{G+j+1}], 1.0 op_sel_hi:[1,0]" if not nov else "    s_nop 0")
    run("v_rcp_f32", mf[5:9], [0, 3, 6, 9], ex2)
    f = 0 if fb == 'A' else 1
    for i in range(4):
        g = G + 4*i; h = H + 4*i; k = vGK[par] + i
        u = vUT + 4*(i & 1); t = u + 2; x = vXP + 2*(i & 1)
        if not nov:
            e(f"    v_pk_mul_f32 v[{t}:{t+1}], v[{g}:{g+1}], v[{h}:{h+1}]")
            e(f"    v_pk_add_f32 v[{u}:{u+1}], v[{g}:{g+1}], v[{g+2}:{g+3}]")
            e(f"    v_pk_fma_f32 v[{t}:{t+1}], v[{g+2}:{g+3}], v[{h+2}:{h+3}], v[{t}:{t+1}]")
            e(f"    v_add_f32 v{x}, v{u}, v{u+1}")
            e(f"    v_add_f32 v{x+1}, v{t}, v{t+1}")
            e(f"    v_pk_fma_f32 v[{d}:{d+1}], v[{d}:{d+1}], v[{k & ~1}:{(k & ~1)+1}], v[{x}:{x+1}] op_sel:[0,{k&1},0] op_sel_hi:[1,{k&1},1]")
            if 'nowr' not in X: e(f"    ds_write2_b32 v{vGF[par]+i}, v{d}, v{d+1} offset0:{f*32} offset1:{64+f*32}")

def tile_body(par):
    npar = 1 - par
    dm = dma_issue()
    ex1 = {1: ["    s_waitcnt vmcnt(0)"] + reads_next(npar, par)}
    ex2 = {1: ["    s_waitcnt lgkmcnt(0)"] + after_reads(npar, par), 4: dm[0], 7: dm[1], 10: dm[2], 12: dm[3]}
    if par == 1: ex2[14] = advance_addrs(2)
    if 'noprio' not in X: e(f"    s_setprio {3 - 2*par}")
    phase('A', par, mfma_group('B', par), ex1, ex2)
    if 'noprio' not in X: e(f"    s_setprio {2 - 2*par}")
    mA = mfma_group('A', npar)
    mA[0] = ("    s_waitcnt lgkmcnt(4)\n" if 'nowr' not in X and 'novalu' not in X else "    s_waitcnt lgkmcnt(0)\n") + mA[0]
    phase('B', par, mA, {2: gf_fix(npar)}, {})

vLANE = 1
vTAB = (16, 17)
vLR, vREM = (18, 19), (20, 21)
vREC = 64
vA = 96
vRK = 112
def slot_list(ks):
    for k in ks:
        for r in range(2):
            for p in range(2):
                yield k, r, p, (2*k+r)*2 + p
def msk(q): return f"s[{sMASK+2*q}:{sMASK+2*q+1}]"

def slot_pass(name, fns):
    for fn in fns:
        for sl in slot_list([0, 1]):
            e(fn(*sl))
    for k in (2, 3):
        e(f"    s_cmp_le_u32 {sKM}, {k}\n    s_cbranch_scc1 {name}_DONE")
        for fn in fns:
            for sl in slot_list([k]):
                e(fn(*sl))
    e(f"{name}_DONE:")

def seg_masks():
    c("per-round segment limits and slot masks")
    for r in range(2):
        e(f"    v_sub_u32 v{vREM[r]}, v{vLR[r]}, v22")
    for k, r, p, q in slot_list(range(4)):
        e(f"    v_cmp_lt_i32 {msk(q)}, {8*k+p}, v{vREM[r]}")
    q20, q21, q30, q31 = 8, 10, 12, 14
    e(f"""    s_mov_b32 {sKM}, 2
    s_or_b64 s[52:53], {msk(q20)}, {msk(q21)}
    s_cmp_lg_u64 s[52:53], 0
    s_cselect_b32 {sKM}, 3, {sKM}
    s_or_b64 s[52:53], {msk(q30)}, {msk(q31)}
    s_cmp_lg_u64 s[52:53], 0
    s_cselect_b32 {sKM}, 4, {sKM}""")

def gen_k2():
    e(".globl k2_kernel\n.p2align 8\n.type k2_kernel,@function\nk2_kernel:")
    e(f"""    s_cmp_ge_u32 s2, {NBINS}
    s_cbranch_scc1 K2_END
    s_load_dwordx2 {S_WS}, s[0:1], 88
    s_load_dwordx2 {S_X}, s[0:1], 0
    s_load_dwordx2 {S_OUT}, s[0:1], 72
    s_and_b32 {sB}, s2, 7
    s_lshl_b32 {sB}, {sB}, 5
    s_lshr_b32 s3, s2, 3
    s_add_u32 {sB}, {sB}, s3
    s_mul_i32 {sN0}, {sB}, {NB}
    s_sub_u32 {sNL}, {N}, {sN0}
    s_min_u32 {sNL}, {sNL}, {NB}
    v_lshrrev_b32 v2, 6, v0
    v_and_b32 v{vLANE}, 63, v0
    v_readfirstlane_b32 {sWV}, v2
    s_mov_b32 {sMSK22}, 0x3fffff
    s_mov_b32 {sMSKA}, 0x3f80
    s_mov_b32 {sRND}, 0
    s_lshl_b32 s3, {sN0}, 7
    s_lshl_b32 s49, {sNL}, 7
    v_lshrrev_b32 v2, 2, v0
    v_lshlrev_b32 v3, 10, v2
    s_lshl_b32 s48, {sB}, 2
    s_add_u32 s48, s48, {WS_TAB}
    v_add_u32 v3, s48, v3
    v_add_u32 v4, {128*1024}, v3
    s_waitcnt lgkmcnt(0)
    s_mov_b32 s24, s6
    s_mov_b32 s25, s7
    s_mov_b32 s26, {WS_SIZE}
    s_mov_b32 s27, 0x00020000
    buffer_load_dword v{vTAB[0]}, v3, {SRD_WS}, 0 offen
    buffer_load_dword v{vTAB[1]}, v4, {SRD_WS}, 0 offen
    s_mov_b32 s12, s4
    s_mov_b32 s13, s5
    s_mov_b32 s14, {N*128}
    s_mov_b32 s15, 0x00020000
    s_add_u32 s16, s4, s3
    s_addc_u32 s17, s5, 0
    s_mov_b32 s18, s49
    s_mov_b32 s19, 0x00020000
    s_add_u32 s20, s8, s3
    s_addc_u32 s21, s9, 0
    s_mov_b32 s22, s49
    s_mov_b32 s23, 0x00020000""")
    stamp()
    if DBG and 'fine' not in X: e(f"    s_memrealtime s[98:99]\n    s_waitcnt lgkmcnt(0)\n    v_writelane_b32 v{vDBG}, s98, 14")
    if 'nobar0' not in X: e("    s_barrier")
    c("lane constants")
    e(f"""    s_lshr_b32 {sRHO}, {sWV}, 1
    s_and_b32 {sFB}, {sWV}, 1
    v_and_b32 v{vN}, 31, v{vLANE}
    v_lshrrev_b32 v{vH}, 5, v{vLANE}
    v_lshrrev_b32 v22, 4, v{vLANE}
    v_and_b32 v{vCHB}, 7, v{vLANE}
    v_xor_b32 v{vCHA}, v22, v{vCHB}
    v_lshlrev_b32 v{vCHA}, 4, v{vCHA}
    v_xor_b32 v{vCHB}, 64, v{vCHA}""")
    c("W fragments -> LDS (XST area), 4KB per wave")
    e(f"""    s_lshl_b32 s3, {sWV}, 12
    s_add_u32 {sM0B}, s3, {XST}
    s_mov_b32 m0, {sM0B}
    v_lshlrev_b32 v3, 4, v{vLANE}
    s_add_u32 s3, s3, {WS_W}
    v_add_u32 v3, s3, v3""")
    for k in range(4):
        e(f"    buffer_load_dwordx4 v3, {SRD_WS}, 0 offen offset:{1024*k} lds")
    c("x_bin rows 16w..16w+15 -> LDS (swizzled)")
    e(f"""    s_lshl_b32 s3, {sWV}, 11
    s_add_u32 s48, s3, {XBS}
    s_mov_b32 m0, s48
    v_lshrrev_b32 v22, 3, v{vLANE}
    v_lshlrev_b32 v22, 7, v22
    v_add_u32 v22, s3, v22
    v_add_u32 v3, v22, v{vCHA}
    v_add_u32 v4, v22, v{vCHB}
    v_add_u32 v4, 1024, v4
    buffer_load_dwordx4 v3, {SRD_XB}, 0 offen lds
    s_add_u32 m0, m0, 1024
    v_lshlrev_b32 v7, 2, v{vLANE}
    buffer_load_dwordx4 v4, {SRD_XB}, 0 offen lds""")
    c("wc words")
    e(f"""    v_add_u32 v7, {WS_W+32768}, v7
    buffer_load_dword a{aAFA+2}, v7, {SRD_WS}, 0 offen
    buffer_load_dword a{aAFB+2}, v7, {SRD_WS}, 0 offen offset:256""")
    e(f"""    v_bfe_u32 v22, v{vN}, 1, 3
    v_xor_b32 v22, v22, v{vH}
    v_lshlrev_b32 v22, 4, v22
    v_lshl_add_u32 v22, v{vN}, 7, v22
    v_add_u32 v{vXR[0]}, {sM0B}, v22""")
    for s in range(1, 4):
        e(f"    v_xor_b32 v{vXR[s]}, {32*s}, v{vXR[0]}")
    e(f"""    v_bfe_u32 v22, v{vLANE}, 4, 1
    v_and_b32 v{vAFC}, 3, v{vLANE}
    v_lshlrev_b32 v{vAFC}, 3, v{vAFC}
    v_lshl_add_u32 v{vAFC}, v22, 5, v{vAFC}
    v_lshlrev_b32 v{vN4}, 2, v{vN}""")
    e(f"""    v_lshrrev_b32 v40, 3, v{vN}
    v_bfe_u32 v41, v{vN}, 2, 1
    v_cmp_eq_u32 vcc, v41, v{vH}
    v_mov_b32 v42, 0x3f80
    v_and_b32 v43, 1, v40
    v_cndmask_b32 v42, 0, v42, vcc
    v_lshlrev_b32 v43, 4, v43
    v_lshlrev_b32 v42, v43, v42
    v_cmp_gt_u32 vcc, 2, v40
    v_mov_b32 v45, 0
    s_nop 0
    v_cndmask_b32 v43, 0, v42, vcc
    v_cndmask_b32 v44, v42, 0, vcc
    v_accvgpr_write_b32 a{aO}, v43
    v_accvgpr_write_b32 a{aO+1}, v44
    v_accvgpr_write_b32 a{aO+3}, v45
    v_accvgpr_write_b32 a{aAFA+3}, v45
    v_accvgpr_write_b32 a{aAFB+3}, v45""")
    e("K2_ROUND_INIT:")
    c("LDS init: cnt = 0, headn = -1, flag = 0")
    e(f"""    v_lshlrev_b32 v40, 2, v0
    v_mov_b32 v41, 0
    v_cmp_gt_u32 vcc, 192, v0
    s_and_saveexec_b64 s[52:53], vcc
    ds_write_b32 v40, v41 offset:{CNT}
    v_cmp_gt_u32 vcc, 17, v0
    s_and_b64 exec, exec, vcc
    v_cmp_gt_u32 vcc, 16, v0
    v_mov_b32 v42, -1
    s_nop 0
    v_cndmask_b32 v42, 0, v42, vcc
    ds_write_b32 v40, v42 offset:{HEADN}
    s_mov_b64 exec, s[52:53]
    v_and_b32 v22, 3, v0
    v_lshlrev_b32 v22, 1, v22""")
    assert FLAG == HEADN + 64
    e(f"""    s_cmp_lg_u32 {sRND}, 0
    s_cbranch_scc1 K2_ROUND_N""")
    c("segment descriptors: segment r of this thread = (tid>>2) + 128 r ; c = tid&3")
    e(f"""    v_lshrrev_b32 v40, 2, v0
    v_add_u32 v41, 128, v40
    v_cmp_gt_u32 vcc, {NCH}, v41
    v_mul_u32_u24 v40, {CH}, v40
    v_mul_u32_u24 v41, {CH}, v41
    v_add_u32 v40, v40, v22
    v_add_u32 v41, v41, v22
    s_waitcnt vmcnt(8)
    v_and_b32 v42, 0xffff, v{vTAB[0]}
    v_lshrrev_b32 v43, 16, v{vTAB[0]}
    v_and_b32 v44, 0xffff, v{vTAB[1]}
    v_lshrrev_b32 v45, 16, v{vTAB[1]}
    v_sub_u32 v{vLEN[0]}, v43, v42
    v_sub_u32 v{vLEN[1]}, v45, v44
    v_add_lshl_u32 v{vBASE[0]}, v40, v42, 3
    v_add_lshl_u32 v{vBASE[1]}, v41, v44, 3
    v_cndmask_b32 v{vLEN[1]}, 0, v{vLEN[1]}, vcc
K2_ROUND_N:
    v_min_u32 v{vLR[0]}, 32, v{vLEN[0]}
    v_min_u32 v{vLR[1]}, 32, v{vLEN[1]}""")
    seg_masks()
    stamp()
    c("record loads")
    for k in range(4):
        for r in range(2):
            q = (2*k+r)*2
            e(f"    s_mov_b64 exec, {msk(q)}")
            e(f"    buffer_load_dwordx4 {vr(vREC+(2*k+r)*4,4)}, v{vBASE[r]}, {SRD_WS}, 0 offen offset:{64*k}")
    e("    s_mov_b64 exec, -1")
    e(f"""    s_cmp_lg_u32 {sRND}, 0
    s_cbranch_scc1 K2_SKIPW""")
    c("W DMA / xb / wc loads are older than the 8 record loads")
    e("    s_waitcnt vmcnt(8)")
    e("    s_waitcnt lgkmcnt(0)\n    s_barrier")
    stamp()
    c("x_bin A fragments, W fragments")
    e(f"""    s_lshl_b32 s3, {sRHO}, 12
    s_add_u32 s3, s3, {XBS}
    s_sub_u32 s3, s3, {sM0B}""")
    for s in range(4):
        e(f"    v_add_u32 v{60+s}, s3, v{vXR[s]}")
    e(f"""    v_lshlrev_b32 v22, 4, v{vLANE}
    v_add_u32 v22, {XST}, v22
    s_lshl_b32 s3, {sFB}, 10
    v_add_u32 v23, s3, v22""")
    for s in range(4):
        e(f"    ds_read_b128 {vr(40+4*s,4)}, v{60+s}")
    for s in range(4):
        e(f"    ds_read_b128 {ar(112+4*s,4)}, v23 offset:{16384+2048*s}")
    for s in range(4):
        e(f"    ds_read_b128 {ar(64+4*s,4)}, v23 offset:{24576+2048*s}")
    for k in range(16):
        e(f"    ds_read_b128 {ar(4*k,4)}, v22 offset:{1024*k}")
    e("    s_waitcnt lgkmcnt(15)")
    e("    s_waitcnt lgkmcnt(15)")
    for s in range(4):
        e(mfma(vr(vA,16), vr(40+4*s,4), ar(112+4*s,4), "0" if s == 0 else vr(vA,16)))
    for s in range(4):
        e(mfma(ar(aU,16), vr(40+4*s,4), ar(64+4*s,4), "0" if s == 0 else ar(aU,16)))
    c("A' block -> bf16 -> LDS [node][64]; node = 32rho + 8i+4h+j ; feature = 32fb+n")
    e(f"""    s_lshl_b32 s3, {sRHO}, 12
    s_lshl_b32 s49, {sFB}, 6
    s_add_u32 s3, s3, s49
    v_lshlrev_b32 v22, 9, v{vH}
    v_lshl_add_u32 v22, v{vN}, 1, v22
    v_add_u32 v22, s3, v22
    s_nop 7""")
    for r in range(0, 16, 2):
        e(f"    v_cvt_pk_bf16_f32 v{40+r//2}, v{vA+r}, v{vA+r+1}")
    for r in range(0, 16, 2):
        i, j = r >> 2, r & 3
        e(f"""    ds_write_b16 v22, v{40+r//2} offset:{A_OFF + (8*i+j)*128}
    ds_write_b16_d16_hi v22, v{40+r//2} offset:{A_OFF + (8*i+j+1)*128}""")
    e("K2_SKIPW:")
    e("    s_waitcnt vmcnt(0) lgkmcnt(0)\n    s_barrier")
    stamp()
    e("K2_COUNT:")
    c("counting pass")
    e(f"""    v_mov_b32 v40, 1
    v_lshlrev_b32 v41, 2, v{vLANE}
    v_add_u32 v41, 512, v41""")
    slot_pass("K2_CNT", [
        lambda k, r, p, q: f"    v_lshrrev_b32 v{vA+q}, 22, v{vREC+(2*k+r)*4+2*p}",
        lambda k, r, p, q: f"    v_cndmask_b32 v{vA+q}, v41, v{vA+q}, {msk(q)}",
        lambda k, r, p, q: f"    ds_add_rtn_u32 v{vRK+q}, v{vA+q}, v40 offset:{CNT}"])
    e("    s_waitcnt lgkmcnt(0)\n    s_barrier")
    stamp()
    c("scan over nodes (every wave redundantly)")
    e(f"""    v_lshlrev_b32 v40, 3, v{vLANE}
    ds_read_b64 v[42:43], v40 offset:{CNT}
    s_waitcnt lgkmcnt(0)
    v_add_u32 v44, 3, v42
    v_add_u32 v45, 3, v43
    v_lshrrev_b32 v44, 2, v44
    v_lshrrev_b32 v45, 2, v45
    v_add_u32 v46, v44, v45
    v_mov_b32 v47, v46""")
    dpp_scan("v47")
    e(f"""    v_sub_u32 v48, v47, v46
    v_add_u32 v49, v48, v44
    v_readlane_b32 {sG}, v47, 63
    v_lshlrev_b32 v50, 5, v48
    v_lshlrev_b32 v51, 5, v49
    v_add_u32 v50, {RECS}, v50
    v_add_u32 v51, {RECS}, v51
    s_cmp_le_u32 {sG}, {GMAX}
    s_cbranch_scc1 K2_FITS""")
    c("overflow: redo this round with 12 records per segment")
    e(f"""    s_barrier
    v_lshlrev_b32 v40, 2, v0
    v_mov_b32 v41, 0
    v_cmp_gt_u32 vcc, 192, v0
    s_and_saveexec_b64 s[52:53], vcc
    ds_write_b32 v40, v41 offset:{CNT}
    s_mov_b64 exec, s[52:53]
    v_min_u32 v{vLR[0]}, 12, v{vLEN[0]}
    v_min_u32 v{vLR[1]}, 12, v{vLEN[1]}
    v_and_b32 v22, 3, v0
    v_lshlrev_b32 v22, 1, v22""")
    seg_masks()
    e(f"""    s_waitcnt lgkmcnt(0)
    s_barrier
    s_branch K2_COUNT
K2_FITS:
    ds_write_b64 v40, v[48:49] offset:{GS}
    ds_write_b64 v40, v[50:51] offset:{GSA}
    s_add_u32 {sT}, {sG}, 63
    s_lshr_b32 {sT}, {sT}, 6
    s_max_u32 {sT}, {sT}, 1
    s_lshl_b32 {s4T}, {sT}, 2
    v_cvt_f32_u32 v52, {s4T}
    v_rcp_f32 v52, v52
    v_lshrrev_b32 v54, 2, v0
    v_lshlrev_b32 v40, 2, v54
    v_mul_f32 v53, 0.5, v52
    s_waitcnt lgkmcnt(0)""")
    if 'fine' in X: stamp()
    c("node data + scatter lookups")
    e(f"""    ds_read_b32 v42, v40 offset:{GS}
    ds_read_b32 v43, v40 offset:{GS+4}
    ds_read_b32 v44, v40 offset:{CNT}""")
    slot_pass("K2_S1", [lambda k, r, p, q: f"    ds_read_b32 v{vA+q}, v{vA+q} offset:{GSA}"])
    c("more-records flag")
    e(f"""    v_cmp_gt_u32 vcc, v{vLEN[0]}, v{vLR[0]}
    v_cmp_gt_u32 s[52:53], v{vLEN[1]}, v{vLR[1]}
    v_and_b32 v45, 3, v0
    s_nop 0
    s_or_b64 vcc, vcc, s[52:53]
    s_and_saveexec_b64 s[52:53], vcc
    v_mov_b32 v46, 1
    v_mov_b32 v47, {FLAG}
    ds_write_b32 v47, v46
    s_mov_b64 exec, s[52:53]""")
    if 'fine' in X: stamp()
    c("node jobs: thread (nu = tid>>2, q = tid&3)")
    e(f"""    v_cmp_gt_u32 vcc, {NB}, v54
    s_and_b64 exec, exec, vcc
    s_cbranch_execz K2_NODE_DONE
    v_lshlrev_b32 v46, 7, v54
    v_lshlrev_b32 v47, 9, v54
    v_add_u32 v47, {ROWS}, v47
    s_mov_b64 s[54:55], exec
    s_waitcnt lgkmcnt(0)
    v_sub_u32 v43, v43, v42""")
    c("empty nodes: zero the row")
    e(f"""    v_cmp_eq_u32 vcc, 0, v44
    s_and_b64 exec, exec, vcc
    s_cbranch_execz K2_NOZERO
    v_lshl_add_u32 v48, v45, 7, v47
    v_mov_b64 v[56:57], 0
    v_mov_b64 v[58:59], 0""")
    for k in range(8):
        e(f"    ds_write_b128 v48, v[56:59] offset:{16*k}")
    e(f"""K2_NOZERO:
    s_mov_b64 exec, s[54:55]""")
    c("pad slots in the last group; gA/gF/gK for all groups of the node")
    e(f"""    v_add_u32 v48, v44, v45
    v_lshlrev_b32 v49, 2, v43
    v_cmp_lt_u32 vcc, v48, v49
    v_lshlrev_b32 v49, 5, v42
    v_lshl_add_u32 v49, v48, 3, v49
    v_mov_b32 v50, 0
    v_mov_b32 v51, 0x3f800000
    s_and_b64 exec, exec, vcc
    ds_write_b64 v49, v[50:51] offset:{RECS}
    s_mov_b64 exec, s[54:55]
    v_add_lshl_u32 v48, v42, v45, 2
    v_cmp_eq_u32 vcc, 0, v45
    v_mov_b32 v49, v45
    v_mov_b32 v55, 1.0
    v_cndmask_b32 v56, 1.0, v50, vcc
K2_BULK:
    v_cmp_lt_u32 vcc, v49, v43
    s_and_b64 exec, exec, vcc
    s_cbranch_execz K2_BULK_DONE
    ds_write2st64_b32 v48, v46, v47 offset0:{GAT//256} offset1:{GFT//256}
    ds_write_b32 v48, v56 offset:{GKT}
    v_mov_b32 v56, v55
    v_add_u32 v48, 16, v48
    v_add_u32 v49, 4, v49
    s_branch K2_BULK
K2_BULK_DONE:
    s_mov_b64 exec, s[54:55]
    v_cmp_lt_u32 vcc, 0, v43
    s_and_b64 exec, exec, vcc
    s_cbranch_execz K2_NODE_DONE""")
    e(f"""    v_add_u32 v48, v42, v43
    v_subrev_u32 v49, 1, v48
    v_cvt_f32_u32 v50, v42
    v_cvt_f32_u32 v51, v49
    v_fma_f32 v50, v50, v52, v53
    v_fma_f32 v51, v51, v52, v53
    v_cvt_u32_f32 v50, v50
    v_cvt_u32_f32 v51, v51
K2_BND:
    v_cmp_lt_u32 vcc, v50, v51
    s_and_b64 exec, exec, vcc
    s_cbranch_execz K2_NODE_DONE
    v_add_u32 v50, 1, v50
    v_mul_u32_u24 v55, {s4T}, v50
    v_lshlrev_b32 v56, 9, v50
    v_add_u32 v56, {HEADS}, v56
    v_lshlrev_b32 v57, 2, v50
    v_lshlrev_b32 v58, 2, v55
    v_mov_b32 v59, 0
    ds_write_b32 v57, v54 offset:{HEADN}
    ds_write_b32 v58, v59 offset:{GKT}
    v_add_u32 v60, {s4T}, v55
    v_min_u32 v60, v60, v48
    v_add_u32 v55, v55, v45
    s_mov_b64 s[52:53], exec
K2_BND2:
    v_cmp_lt_u32 vcc, v55, v60
    s_and_b64 exec, exec, vcc
    s_cbranch_execz K2_BND2_DONE
    v_lshlrev_b32 v58, 2, v55
    ds_write_b32 v58, v56 offset:{GFT}
    v_add_u32 v55, 4, v55
    s_branch K2_BND2
K2_BND2_DONE:
    s_mov_b64 exec, s[52:53]
    s_branch K2_BND
K2_NODE_DONE:
    s_mov_b64 exec, -1""")
    if 'fine' in X: stamp()
    c("pad groups [G, 64T)")
    e(f"""    s_lshl_b32 s3, {sT}, 6
    s_sub_u32 s3, s3, {sG}
    s_lshl_b32 s49, s3, 2
    v_cmp_gt_u32 vcc, s49, v0
    s_and_saveexec_b64 s[52:53], vcc
    s_cbranch_execz K2_PADG_DONE
    s_lshl_b32 s48, {sG}, 5
    v_lshlrev_b32 v48, 3, v0
    v_add_u32 v48, s48, v48
    v_mov_b32 v50, 0
    v_mov_b32 v51, 0x3f800000
    ds_write_b64 v48, v[50:51] offset:{RECS}
    v_cmp_gt_u32 vcc, s3, v0
    s_lshl_b32 s48, {sG}, 2
    v_lshlrev_b32 v48, 2, v0
    v_add_u32 v48, s48, v48
    v_mov_b32 v51, {HEADS}
    s_and_b64 exec, exec, vcc
    ds_write2st64_b32 v48, v50, v51 offset0:{GAT//256} offset1:{GFT//256}
    ds_write_b32 v48, v50 offset:{GKT}
K2_PADG_DONE:
    s_mov_b64 exec, s[52:53]
    v_lshlrev_b32 v41, 3, v{vLANE}
    v_add_u32 v41, {DUMMY}, v41
    s_waitcnt lgkmcnt(0)""")
    if 'fine' in X: stamp()
    c("scatter")
    slot_pass("K2_S3", [
        lambda k, r, p, q: f"    v_lshl_add_u32 v{vA+q}, v{vRK+q}, 3, v{vA+q}",
        lambda k, r, p, q: f"    v_cndmask_b32 v{vA+q}, v41, v{vA+q}, {msk(q)}",
        lambda k, r, p, q: f"    ds_write_b64 v{vA+q}, v[{vREC+(2*k+r)*4+2*p}:{vREC+(2*k+r)*4+2*p+1}]"])
    if 'fine' in X: stamp()
    c("advance segment pointers for a possible next round; T-dependent addresses")
    for r in range(2):
        e(f"""    v_sub_u32 v{vLEN[r]}, v{vLEN[r]}, v{vLR[r]}
    v_lshl_add_u32 v{vBASE[r]}, v{vLR[r]}, 3, v{vBASE[r]}""")
    e(f"""    s_lshl_b32 s3, {sWV}, 1
    s_mul_i32 s3, s3, {sT}
    s_lshl_b32 s48, s3, 7
    s_add_u32 s48, s48, {RECS}
    s_lshl_b32 s49, {sT}, 7
    v_mul_u32_u24 v41, s49, v{vH}
    v_add_u32 v41, s48, v41
    v_bfe_u32 v42, v{vLANE}, 3, 2
    v_lshl_add_u32 v{vSRC_RD}, v42, 3, v41
    v_bfe_u32 v42, v{vN}, 2, 1
    v_mul_u32_u24 v42, s49, v42
    v_add_u32 v42, s48, v42
    v_lshrrev_b32 v43, 3, v{vN}
    v_lshl_add_u32 v42, v43, 5, v42
    v_and_b32 v43, 3, v{vN}
    v_lshl_add_u32 v42, v43, 3, v42
    v_add_u32 v{vEW_RD}, 4, v42
    s_lshl_b32 s48, s3, 4
    s_lshl_b32 s49, {sT}, 4
    v_mul_u32_u24 v41, s49, v{vH}
    v_add_u32 v41, s48, v41
    v_add_u32 v{vGF_RD}, {GFT}, v41
    v_bfe_u32 v42, v{vLANE}, 2, 2
    v_lshl_add_u32 v41, v42, 2, v41
    v_add_u32 v{vGA_RD}, {GAT}, v41
    v_mov_b64 v[56:57], 0
    v_mov_b64 v[58:59], 0
    s_waitcnt lgkmcnt(0)
    s_barrier""")
    stamp()
    c("pipeline prologue")
    for x in src_reads(0): e(x)
    e("    s_waitcnt lgkmcnt(0)")
    for g in dma_issue():
        for x in g: e(x)
    e(f"    v_add_u32 v{vSRC_RD}, 128, v{vSRC_RD}")
    rn = reads_next(0, 0)
    for x in rn[4:]: e(x)
    e("    s_waitcnt lgkmcnt(0)")
    for x in after_reads(0, 0): e(x)
    e("    s_waitcnt vmcnt(0)")
    for x in rn[:4]: e(x)
    e("    s_waitcnt lgkmcnt(0)")
    for g in dma_issue():
        for x in g: e(x)
    for x in advance_addrs(1): e(x)
    for x in gf_fix(0): e(x)
    for x in mfma_group('A', 0): e(x)
    stamp()
    if 'solo' in X:
        e(f"    s_cmp_ge_u32 {sWV}, 4\n    s_cbranch_scc1 K2_LOOP_END")
    e(f"""    s_nop 15
    s_mov_b32 {sCNT}, {sT}
.p2align 6
K2_LOOP:""")
    INLOOP[0] = True
    tile_body(0)
    e(f"""    s_sub_u32 {sCNT}, {sCNT}, 1
    s_cmp_eq_u32 {sCNT}, 0
    s_cbranch_scc1 K2_LOOP_END""")
    tile_body(1)
    INLOOP[0] = False
    e(f"""    s_sub_u32 {sCNT}, {sCNT}, 1
    s_cmp_lg_u32 {sCNT}, 0
    s_cbranch_scc1 K2_LOOP
K2_LOOP_END:
    s_setprio 0
    s_waitcnt vmcnt(0) lgkmcnt(0)""")
    stamp()
    e("    s_barrier")
    stamp()
    c("head fix-up")
    e(f"""    v_lshlrev_b32 v40, 2, v{vLANE}
    ds_read_b32 v41, v40 offset:{HEADN}
    ds_read_b32 v42, v40 offset:{HEADN+4}
    v_mov_b32 v43, {FLAG}
    ds_read_b32 v44, v43
    s_lshl_b32 s3, {sWV}, 1
    v_add_u32 v45, s3, v{vH}
    v_lshlrev_b32 v46, 2, v45
    ds_read_b32 v47, v46 offset:{HEADN}
    v_lshlrev_b32 v45, 9, v45
    v_add_u32 v45, {HEADS}, v45
    v_add_u32 v45, v45, v{vN4}
    s_waitcnt lgkmcnt(0)
    v_readfirstlane_b32 {sMORE}, v44
    v_cmp_eq_u32 vcc, v41, v42
    v_cmp_le_i32 s[52:53], 0, v41
    s_nop 1
    s_and_b64 vcc, vcc, s[52:53]
    s_and_b32 s52, vcc_lo, 0x7fff
    s_cmp_lg_u32 s52, 0
    s_cbranch_scc1 K2_FIX_SLOW
    v_cmp_le_i32 vcc, 0, v47
    s_and_saveexec_b64 s[52:53], vcc
    s_cbranch_execz K2_FIX_DONE
    v_lshlrev_b32 v47, 9, v47
    v_add_u32 v47, {ROWS}, v47
    v_add_u32 v47, v47, v{vN4}""")
    for q in range(4):
        e(f"""    ds_read_b32 v{16+q}, v45 offset:{128*q}
    ds_read_b32 v{20+q}, v47 offset:{128*q}""")
    e("    s_waitcnt lgkmcnt(0)")
    for q in range(4):
        e(f"""    v_add_f32 v{16+q}, v{16+q}, v{20+q}
    ds_write_b32 v47, v{16+q} offset:{128*q}""")
    e(f"""    s_branch K2_FIX_DONE
K2_FIX_SLOW:
    s_mov_b64 s[52:53], exec
    s_cmp_lg_u32 {sWV}, 0
    s_cbranch_scc1 K2_FIX_DONE
    s_mov_b32 s3, 0
K2_FIX_SL:
    v_readlane_b32 s49, v41, s3
    s_nop 3
    s_cmp_lt_i32 s49, 0
    s_cbranch_scc1 K2_FIX_SN
    s_lshl_b32 s49, s49, 9
    s_add_u32 s49, s49, {ROWS}
    s_lshl_b32 s54, s3, 9
    s_add_u32 s54, s54, {HEADS}
    v_lshlrev_b32 v45, 3, v{vLANE}
    v_add_u32 v46, s54, v45
    v_add_u32 v47, s49, v45
    ds_read_b64 v[16:17], v46
    ds_read_b64 v[18:19], v47
    s_waitcnt lgkmcnt(0)
    v_add_f32 v16, v16, v18
    v_add_f32 v17, v17, v19
    ds_write_b64 v47, v[16:17]
    s_waitcnt lgkmcnt(0)
K2_FIX_SN:
    s_add_u32 s3, s3, 1
    s_cmp_lt_u32 s3, 16
    s_cbranch_scc1 K2_FIX_SL
K2_FIX_DONE:
    s_mov_b64 exec, s[52:53]
    s_waitcnt lgkmcnt(0)
    s_barrier""")
    e(f"""    s_or_b32 s3, {sRND}, {sMORE}
    s_cmp_eq_u32 s3, 0
    s_cbranch_scc1 K2_EPI""")
    c("rare: several rounds. rows += saved (round>0); if more: save rows and restart")
    e(f"""    s_mul_i32 s3, {sB}, {NB*512}
    s_add_u32 s3, s3, {WS_ACC}
    v_lshlrev_b32 v40, 4, v0
    v_add_u32 v41, {ROWS}, v40
    v_add_u32 v42, s3, v40
    s_mov_b32 s49, 0
K2_MR:
    v_cmp_gt_u32 vcc, {NB*512}, v40
    s_and_saveexec_b64 s[52:53], vcc
    s_cbranch_execz K2_MR_N
    ds_read_b128 v[16:19], v41
    s_cmp_eq_u32 {sRND}, 0
    s_cbranch_scc1 K2_MR_A
    buffer_load_dwordx4 v[20:23], v42, {SRD_WS}, 0 offen
    s_waitcnt vmcnt(0) lgkmcnt(0)
    v_add_f32 v16, v16, v20
    v_add_f32 v17, v17, v21
    v_add_f32 v18, v18, v22
    v_add_f32 v19, v19, v23
    ds_write_b128 v41, v[16:19]
K2_MR_A:
    s_waitcnt lgkmcnt(0)
    s_cmp_eq_u32 {sMORE}, 0
    s_cbranch_scc1 K2_MR_N
    buffer_store_dwordx4 v[16:19], v42, {SRD_WS}, 0 offen
    s_waitcnt vmcnt(0)
K2_MR_N:
    s_mov_b64 exec, s[52:53]
    v_add_u32 v40, 8192, v40
    v_add_u32 v41, 8192, v41
    v_add_u32 v42, 8192, v42
    s_add_u32 s49, s49, 1
    s_cmp_lt_u32 s49, 7
    s_cbranch_scc1 K2_MR
    s_waitcnt vmcnt(0) lgkmcnt(0)
    s_barrier
    s_cmp_eq_u32 {sMORE}, 0
    s_cbranch_scc1 K2_EPI
    s_mov_b32 {sRND}, 1
    s_branch K2_ROUND_INIT""")
    e("K2_EPI:")
    stamp()
    c("wave (rho, fb): node = 32rho+8i+4h+j, feature = 32fb+n")
    e(f"""    s_lshl_b32 s3, {sRHO}, 12
    s_lshl_b32 s49, {sFB}, 6
    s_add_u32 s3, s3, s49
    v_lshlrev_b32 v2, 9, v{vH}
    v_lshl_add_u32 v2, v{vN}, 1, v2
    v_add_u32 v2, s3, v2""")
    for r in range(16):
        i, j = r >> 2, r & 3
        e(f"    buffer_load_ushort v{64+r}, v2, {SRD_XB}, 0 offen offset:{(8*i+j)*128}")
    e(f"""    s_lshl_b32 s3, {sRHO}, 14
    s_lshl_b32 s49, {sFB}, 7
    s_add_u32 s3, s3, s49
    s_add_u32 s3, s3, {ROWS}
    v_lshlrev_b32 v3, 11, v{vH}
    v_add_u32 v3, v3, v{vN4}
    v_add_u32 v3, s3, v3""")
    for r in range(16):
        i, j = r >> 2, r & 3
        e(f"    ds_read2st64_b32 v[{80+2*r}:{81+2*r}], v3 offset0:{(8*i+j)*2} offset1:{(8*i+j)*2+1}")
    e(f"    s_mov_b32 s49, {f32bits(1e-6):#x}")
    e("    s_waitcnt lgkmcnt(0)")
    for r in range(16):
        e(f"    v_add_f32 v{80+2*r}, s49, v{80+2*r}")
    for r in range(16):
        e(f"    v_rcp_f32 v{80+2*r}, v{80+2*r}")
    for r in range(16):
        e(f"    v_accvgpr_read_b32 v{112+r}, a{aU+r}")
    for r in range(16):
        e(f"    v_fma_f32 v{112+r}, v{81+2*r}, v{80+2*r}, v{112+r}")
    for r in range(16):
        e(f"    v_max_f32 v{112+r}, 0, v{112+r}")
    e("    s_waitcnt vmcnt(0)")
    for r in range(16):
        e(f"""    v_lshlrev_b32 v{64+r}, 16, v{64+r}
    v_add_f32 v{112+r}, v{112+r}, v{64+r}""")
    for r in range(0, 16, 2):
        e(f"    v_cvt_pk_bf16_f32 v{80+r//2}, v{112+r}, v{113+r}")
    for r in range(0, 16, 2):
        i, j = r >> 2, r & 3
        e(f"""    buffer_store_short v{80+r//2}, v2, {SRD_OUT}, 0 offen offset:{(8*i+j)*128}
    buffer_store_short_d16_hi v{80+r//2}, v2, {SRD_OUT}, 0 offen offset:{(8*i+j+1)*128}""")
    stamp()
    if DBG and 'fine' not in X: e(f"    s_waitcnt vmcnt(0)\n    s_memrealtime s[98:99]\n    s_waitcnt lgkmcnt(0)\n    v_writelane_b32 v{vDBG}, s98, 15")
    stamp_flush(sWV, 1)
    e("K2_END:\n    s_endpgm")

def desc(name, nv, acc, ns):
    return f""".amdhsa_kernel {name}
  .amdhsa_next_free_vgpr {nv}
  .amdhsa_next_free_sgpr {ns}
  .amdhsa_accum_offset {acc}
  .amdhsa_group_segment_fixed_size 0
  .amdhsa_kernarg_size 96
  .amdhsa_user_sgpr_count 2
  .amdhsa_user_sgpr_kernarg_segment_ptr 1
  .amdhsa_system_sgpr_workgroup_id_x 1
  .amdhsa_float_denorm_mode_32 3
.end_amdhsa_kernel"""

def main(out):
    hdr = open('gather_scatter__edge_featured_mpnn_gatedgcn__graph.s.ref').read().split('\n')
    head = [x for x in hdr if x.startswith(';') and '@launch' not in x and 'Override launch' not in x and 'grid=ceil' not in x]
    for x in head: e(x)
    e(f"; @launch kernel=k1_kernel grid=({NCH+4},1,1) block=(832,1,1) lds={K1_LDS}")
    e(f"; @launch kernel=k2_kernel grid=({NBINS},1,1) block=(512,1,1) lds={K2_LDS}")
    e('.amdgcn_target "amdgcn-amd-amdhsa--gfx950"')
    e(".text")
    gen_k1()
    gen_k2()
    e('.section .rodata,"a"\n.p2align 6')
    e(desc("k1_kernel", 64, 64, 40))
    e(desc("k2_kernel", 256, 128, 100))
    open(out, 'w').write("\n".join(L) + "\n")

if __name__ == "__main__":
    main(sys.argv[1] if len(sys.argv) > 1 else "gather_scatter__edge_featured_mpnn_gatedgcn__graph.s")
```

```python
import sys, struct

N = 25000
E = 800000
NB = 98
NBINS = 256
NCH = 250
CH = 3200

WS_REC = 0
WS_TAB = 0x700000
WS_W = 0x780000
WS_ACC = 0x800000
WS_SIZE = 0x2000000

LOG2E = 1.4426950408889634
def f32bits(x): return struct.unpack('<I', struct.pack('<f', x))[0]
NEG_LOG2E = f32bits(-LOG2E)
BIG = f32bits(2.0**100)

K1_HIST = 0
K1_OFFS = 1024
K1_STAGE = 2048
K1_LDS = 2048 + CH * 8

A_OFF = 0
CNT = 16384
GS = CNT + 768
GSA = GS + 512
HEADN = GSA + 768
FLAG = HEADN + 64
GAT = 18688
GFT = GAT + 4096
GKT = GFT + 4096
RECS = GKT + 4096
DUMMY = RECS + 31232
ROWS = DUMMY + 512
HEADS = ROWS + NB * 512
XST = HEADS + 16 * 512
K2_LDS = XST + 32768
XBS = RECS
assert GAT % 256 == 0 and XST % 128 == 0 and XBS % 128 == 0
GMAX = 960

import os
DBG = int(os.environ.get('DBG','0'))
WS_DBG = 0x1800000
X = set(os.environ.get('X','').split(','))
NST = [0]
vDBG = 38
def stamp(name=None):
    if not DBG: return
    i = NST[0]; NST[0] += 1
    e(f"    s_memtime s[96:97]")
    e(f"    s_waitcnt lgkmcnt(0)")
    e(f"    v_writelane_b32 v{vDBG}, s96, {i}")
NST1 = [0]
def stamp1():
    if not DBG: return
    i = NST1[0]; NST1[0] += 1
    e(f"    s_memtime s[32:33]")
    e(f"    s_waitcnt lgkmcnt(0)")
    e(f"    v_writelane_b32 v61, s32, {i}")
    if i == 0:
        e("    s_memrealtime s[34:35]\n    s_waitcnt lgkmcnt(0)\n    v_writelane_b32 v61, s34, 14")
def stamp_at(i):
    e(f"    s_memtime s[96:97]")
    e(f"    s_waitcnt lgkmcnt(0)")
    e(f"    v_writelane_b32 v{vDBG}, s96, {i}")
def stamp_flush(wave_sgpr, kid):
    if not DBG: return
    e(f"    s_lshl_b32 s3, s2, 4")
    e(f"    s_add_u32 s3, s3, {wave_sgpr}")
    e(f"    s_lshl_b32 s3, s3, 6")
    e(f"    s_add_u32 s3, s3, {WS_DBG + kid*0x100000}")
    e(f"    s_mov_b64 exec, 0xffff")
    e(f"    v_and_b32 v2, 63, v0")
    e(f"    v_lshlrev_b32 v2, 2, v2")
    e(f"    v_add_u32 v2, s3, v2")
    e(f"    global_store_dword v2, v{vDBG}, {'s[6:7]' if kid else 's[10:11]'}")
    NST[0] = 0
L = []
def e(s=""):
    for line in s.split("\n"):
        L.append(line)
def c(s): L.append("    ; " + s)

def dpp_scan(v):
    for sh in (1, 2, 4, 8):
        e(f"    s_nop 1")
        e(f"    v_add_u32_dpp {v}, {v}, {v} row_shr:{sh} row_mask:0xf bank_mask:0xf")
    e("    s_nop 1")
    e(f"    v_add_u32_dpp {v}, {v}, {v} row_bcast:15 row_mask:0xa bank_mask:0xf")
    e("    s_nop 1")
    e(f"    v_add_u32_dpp {v}, {v}, {v} row_bcast:31 row_mask:0xc bank_mask:0xf")

def gen_k1():
    STP = '' if 'plainst' in X else 'sc1'
    NT = 400
    e(".globl k1_kernel\n.p2align 8\n.type k1_kernel,@function\nk1_kernel:")
    e(f"""    s_cmp_ge_u32 s2, {NCH+8}
    s_cbranch_scc1 K1_END
    s_load_dwordx4 s[4:7], s[0:1], 16
    s_load_dwordx4 s[12:15], s[0:1], 0
    s_load_dwordx2 s[10:11], s[0:1], 88
    s_cmp_ge_u32 s2, {NCH}
    s_cbranch_scc1 K1_PREP
    s_mul_i32 s16, s2, {CH*4}
    v_lshlrev_b32 v1, 4, v0
    v_add_u32 v2, s16, v1
    v_add_u32 v3, {NT*16}, v2
    s_lshr_b32 s17, s16, 1
    v_add_u32 v4, s17, v1
    v_lshlrev_b32 v5, 2, v0
    v_mov_b32 v6, 0
    v_lshrrev_b32 v28, 6, v0
    v_mov_b32 v29, 1
    v_readfirstlane_b32 s23, v28
    v_cmp_gt_u32 vcc, 256, v0
    s_and_saveexec_b64 s[18:19], vcc
    ds_write_b32 v5, v6 offset:{K1_HIST}
    s_mov_b64 exec, s[18:19]
    v_cmp_gt_u32 vcc, {NT}, v0
    s_and_b64 exec, exec, vcc
    s_mov_b64 s[20:21], exec
    s_mov_b32 s22, {-NB & 0xffffffff}
    s_waitcnt lgkmcnt(0)""")
    stamp1()
    e(f"""    global_load_dwordx4 v[8:11], v2, s[6:7]
    global_load_dwordx4 v[12:15], v3, s[6:7]
    global_load_dwordx4 v[16:19], v2, s[4:5]
    global_load_dwordx4 v[20:23], v3, s[4:5]
    v_lshrrev_b32 v4, 1, v2
    v_lshrrev_b32 v7, 1, v3
    global_load_dwordx2 v[24:25], v4, s[14:15]
    global_load_dwordx2 v[26:27], v7, s[14:15]""")
    PF1 = 1 if 'pfearly' in X else 0
    def prefetch():
        c("light prefetch: every row of x is touched once (brings it into the memory-side cache)")
        e(f"""    s_mul_i32 s17, s2, 100
    v_add_u32 v6, s17, v0
    v_lshlrev_b32 v7, 7, v6
    v_cmp_gt_u32 vcc, 100, v0
    s_and_b64 exec, exec, vcc
    global_load_dword v62, v7, s[12:13]
    s_mov_b64 exec, s[20:21]""")
    if PF1: prefetch()
    e(f"""    s_barrier
    s_waitcnt vmcnt({5+PF1})""")
    stamp1()
    def binops(k):
        d = 8 + k
        e(f"""    v_mul_u32_u24 v{32+k}, 42800, v{d}
    v_lshrrev_b32 v{32+k}, 22, v{32+k}
    v_mad_i32_i24 v{40+k}, v{32+k}, s22, v{d}
    v_lshlrev_b32 v{32+k}, 2, v{32+k}""")
    for k in range(4): binops(k)
    for k in range(4): e(f"    ds_add_rtn_u32 v{48+k}, v{32+k}, v29 offset:{K1_HIST}")
    e(f"    s_waitcnt vmcnt({4+PF1})")
    for k in range(4, 8): binops(k)
    for k in range(4, 8): e(f"    ds_add_rtn_u32 v{48+k}, v{32+k}, v29 offset:{K1_HIST}")
    e(f"    s_waitcnt vmcnt({PF1})")
    if not PF1 and 'nopf1' not in X: prefetch()
    for k in range(8):
        e(f"""    v_lshlrev_b32 v{64+2*k}, 7, v{16+k}
    v_lshl_or_b32 v{64+2*k}, v{40+k}, 24, v{64+2*k}""")
    for k in range(8):
        src = 24 + k//2
        e(f"    v_and_b32 v{65+2*k}, 0xffff, v{src}" if k % 2 == 0 else f"    v_lshrrev_b32 v{65+2*k}, 16, v{src}")
    e("    s_waitcnt lgkmcnt(0)")
    stamp1()
    e("""    s_barrier
    s_mov_b64 exec, -1
    v_and_b32 v30, 63, v0
    v_lshlrev_b32 v31, 4, v30""")
    e(f"""    ds_read_b128 v[8:11], v31 offset:{K1_HIST}
    s_waitcnt lgkmcnt(0)
    v_add_u32 v12, v8, v9
    v_add_u32 v13, v12, v10
    v_add_u32 v14, v13, v11
    v_mov_b32 v15, v14""")
    dpp_scan("v15")
    e(f"""    v_sub_u32 v16, v15, v14
    v_add_u32 v17, v16, v8
    v_add_u32 v18, v16, v12
    v_add_u32 v19, v16, v13
    ds_write_b128 v31, v[16:19] offset:{K1_OFFS}
    s_cmp_lg_u32 s23, 0
    s_cbranch_scc1 K1_NOTAB
    v_lshl_or_b32 v20, v17, 16, v16
    v_lshl_or_b32 v21, v18, 16, v17
    v_lshl_or_b32 v22, v19, 16, v18
    v_lshl_or_b32 v23, v15, 16, v19
    s_lshl_b32 s24, s2, 10
    s_add_u32 s24, s24, {WS_TAB}
    v_add_u32 v24, s24, v31
    global_store_dwordx4 v24, v[20:23], s[10:11] {STP}
K1_NOTAB:
    s_waitcnt lgkmcnt(0)""")
    stamp1()
    e("    s_mov_b64 exec, s[20:21]")
    for k in range(8):
        e(f"    ds_read_b32 v{8+k}, v{32+k} offset:{K1_OFFS}")
    e("    s_waitcnt lgkmcnt(0)")
    for k in range(8):
        e(f"    v_add_lshl_u32 v{8+k}, v{8+k}, v{48+k}, 3")
    for k in range(8):
        e(f"    ds_write_b64 v{8+k}, v[{64+2*k}:{65+2*k}] offset:{K1_STAGE}")
    e("    s_waitcnt lgkmcnt(0)")
    stamp1()
    e("    s_barrier")
    for k in range(4):
        e(f"    ds_read_b128 v[{8+4*k}:{11+4*k}], v1 offset:{K1_STAGE+6400*k}")
    e(f"""    s_mul_i32 s24, s2, {CH*8}
    v_add_u32 v24, s24, v1""")
    for k in range(1, 4):
        e(f"    v_add_u32 v{24+k}, {6400*k}, v24")
    for k in range(4):
        e(f"    s_waitcnt lgkmcnt({3-k})\n    global_store_dwordx4 v{24+k}, v[{8+4*k}:{11+4*k}], s[10:11] {STP}")
    stamp1()
    if DBG:
        e("    s_waitcnt vmcnt(0)")
        stamp1()
        e("    s_memrealtime s[34:35]\n    s_waitcnt lgkmcnt(0)\n    v_writelane_b32 v61, s34, 15")
        e(f"""    s_lshl_b32 s3, s2, 4
    s_add_u32 s3, s3, s23
    s_lshl_b32 s3, s3, 6
    s_add_u32 s3, s3, {WS_DBG}
    s_mov_b64 exec, 0xffff
    v_and_b32 v2, 63, v0
    v_lshlrev_b32 v2, 2, v2
    v_add_u32 v2, s3, v2
    global_store_dword v2, v61, s[10:11]""")
    e("    s_endpgm")
    e(f"""K1_PREP:
    s_sub_u32 s16, s2, {NCH}
    s_and_b32 s30, s16, 1
    s_lshr_b32 s16, s16, 1
    s_mov_b32 s26, 1.0
    s_cmp_eq_u32 s16, 0
    s_cbranch_scc1 K1_P0
    s_cmp_eq_u32 s16, 1
    s_cbranch_scc1 K1_P1
    s_cmp_eq_u32 s16, 2
    s_cbranch_scc1 K1_P2
    s_load_dwordx2 s[24:25], s[0:1], 56
    s_branch K1_PJ
K1_P0:
    s_load_dwordx2 s[24:25], s[0:1], 40
    s_mov_b32 s26, {NEG_LOG2E:#x}
    s_branch K1_PJ
K1_P1:
    s_load_dwordx2 s[24:25], s[0:1], 64
    s_branch K1_PJ
K1_P2:
    s_load_dwordx2 s[24:25], s[0:1], 32
    s_mov_b32 s26, {NEG_LOG2E:#x}
K1_PJ:
    s_load_dwordx2 s[28:29], s[0:1], 48
    s_lshl_b32 s31, s30, 8
    v_add_u32 v9, s31, v0
    v_and_b32 v1, 63, v9
    v_lshrrev_b32 v2, 6, v9
    v_and_b32 v3, 31, v1
    v_lshrrev_b32 v4, 5, v1
    v_lshrrev_b32 v5, 1, v2
    v_and_b32 v6, 1, v2
    v_lshlrev_b32 v7, 11, v5
    v_lshl_add_u32 v7, v4, 10, v7
    v_lshl_add_u32 v7, v6, 6, v7
    v_lshl_add_u32 v7, v3, 1, v7
    s_lshl_b32 s17, s16, 13
    s_add_u32 s17, s17, {WS_W}
    v_lshlrev_b32 v8, 4, v9
    v_add_u32 v8, s17, v8
    s_waitcnt lgkmcnt(0)
    v_cmp_gt_u32 vcc, 256, v0
    s_and_saveexec_b64 s[18:19], vcc
    s_cbranch_execz K1_PWC""")
    for j in range(8):
        e(f"    global_load_ushort v{10+j}, v7, s[24:25] offset:{128*j}")
    e("    s_waitcnt vmcnt(0)")
    for j in range(8):
        e(f"""    v_lshlrev_b32 v{10+j}, 16, v{10+j}
    v_mul_f32 v{10+j}, s26, v{10+j}""")
    for j in range(4):
        e(f"    v_cvt_pk_bf16_f32 v{20+j}, v{10+2*j}, v{11+2*j}")
    e(f"""    global_store_dwordx4 v8, v[20:23], s[10:11]
K1_PWC:
    s_mov_b64 exec, s[18:19]
    s_or_b32 s17, s16, s30
    s_cmp_lg_u32 s17, 0
    s_cbranch_scc1 K1_END
    v_subrev_u32 v9, 256, v0
    v_and_b32 v3, 31, v9
    v_bfe_u32 v4, v9, 5, 1
    v_cmp_gt_u32 vcc, 128, v9
    s_and_saveexec_b64 s[18:19], vcc
    s_cbranch_execz K1_END
    v_lshrrev_b32 v6, 6, v9
    v_lshlrev_b32 v7, 6, v6
    v_lshl_add_u32 v7, v3, 1, v7
    global_load_ushort v10, v7, s[28:29]
    v_lshlrev_b32 v8, 2, v9
    v_add_u32 v8, {WS_W+32768}, v8
    v_mov_b32 v12, {BIG:#x}
    s_waitcnt vmcnt(0)
    v_lshlrev_b32 v10, 16, v10
    v_mul_f32 v10, {NEG_LOG2E:#x}, v10
    v_cvt_pk_bf16_f32 v11, v10, v12
    v_cmp_eq_u32 vcc, 0, v4
    s_nop 1
    v_cndmask_b32 v11, 0, v11, vcc
    global_store_dword v8, v11, s[10:11]
K1_END:
    s_endpgm""")

S_X, S_WS, S_OUT = "s[4:5]", "s[6:7]", "s[8:9]"
SRD_X, SRD_XB, SRD_OUT, SRD_WS = "s[12:15]", "s[16:19]", "s[20:23]", "s[24:27]"
sB, sWV, sT, sCNT, sN0, sNL = "s28", "s29", "s30", "s31", "s33", "s34"
s4T, sG, sRND, sMORE, sKM = "s35", "s36", "s37", "s38", "s39"
sMSK22, sMSKA, sM0B = "s45", "s46", "s47"
sRHO, sFB = "s50", "s51"
sMASK = 56

GA, HA, GB, HB = 64, 80, 96, 112
ACC = {'A': 56, 'B': 58}
vXR = [2, 3, 4, 5]
vSRC_RD, vEW_RD, vGA_RD, vGF_RD = 6, 7, 8, 9
vCHA, vCHB, vAFC, vN4 = 10, 11, 12, 13
vN, vH = 14, 15
vGF = [16, 20]
vSRC = 24
vGA, vAFA = 28, 29
vLEN, vBASE = (30, 31), (32, 33)
vXP = 34
vGK = [40, 44]
vUT = 48
aWB, aWV, aAFA, aAFB, aO, aU = 0, 32, 80, 84, 88, 96
aX = [64, 112]

INLOOP = [False]
def mfma(d, a, b, cc):
    if 'nomfma' in X and INLOOP[0]: return "    s_nop 0"
    return f"    v_mfma_f32_32x32x16_bf16 {d}, {a}, {b}, {cc}"
def vr(b, n): return f"v[{b}:{b+n-1}]"
def ar(b, n): return f"a[{b}:{b+n-1}]"

def mfma_group(fb, xb):
    G, H = (GA, HA) if fb == 'A' else (GB, HB)
    f = 0 if fb == 'A' else 1
    af = aAFA if fb == 'A' else aAFB
    out = [mfma(vr(G, 16), ar(aO, 4), ar(af, 4), "0")]
    for s in range(4):
        out.append(mfma(vr(G, 16), ar(aX[xb] + 4*s, 4), ar(aWB + (s*2+f)*4, 4), vr(G, 16)))
    for s in range(4):
        out.append(mfma(vr(H, 16), ar(aX[xb] + 4*s, 4), ar(aWV + (s*2+f)*4, 4), "0" if s == 0 else vr(H, 16)))
    return out

def dma_issue():
    grp = []
    for k in range(4):
        ch = vCHA if k % 2 == 0 else vCHB
        g = [f"    v_and_or_b32 v{vSRC+k}, v{vSRC+k}, {sMSK22}, v{ch}"]
        g.append(f"    s_mov_b32 m0, {sM0B}" if k == 0 else "    s_add_u32 m0, m0, 1024")
        g.append("    s_nop 0")
        if 'nodma' not in X: g.append(f"    buffer_load_dwordx4 v{vSRC+k}, {SRD_X}, 0 offen lds")
        grp.append(g)
    return grp

def src_reads(o1):
    return [f"    ds_read2_b32 v[{vSRC}:{vSRC+1}], v{vSRC_RD} offset0:{32*o1} offset1:{32*o1+8}",
            f"    ds_read2_b32 v[{vSRC+2}:{vSRC+3}], v{vSRC_RD} offset0:{32*o1+16} offset1:{32*o1+24}"]

def reads_next(xb, o1=0):
    o = []
    for s in range(4):
        o.append(f"    ds_read_b128 {ar(aX[xb]+4*s,4)}, v{vXR[s]}")
    o.append(f"    ds_read_b32 v{vGA}, v{vGA_RD} offset:{16*o1}")
    o += src_reads(o1)
    o.append(f"    ds_read_b32 a{aO+2}, v{vEW_RD} offset:{128*o1}")
    return o

def after_reads(npar, o1=0):
    return [f"    v_and_or_b32 v{vAFA}, v{vGA}, {sMSKA}, v{vAFC}",
            f"    ds_read_b64_tr_b16 {ar(aAFA,2)}, v{vAFA}",
            f"    ds_read_b64_tr_b16 {ar(aAFB,2)}, v{vAFA} offset:64",
            f"    ds_read_b128 {vr(vGF[npar],4)}, v{vGF_RD} offset:{16*o1}",
            f"    ds_read_b128 {vr(vGK[npar],4)}, v{vGF_RD} offset:{GKT-GFT+16*o1}"]
def gf_fix(npar):
    return [f"    v_add_u32 v{vGF[npar]+i}, v{vGF[npar]+i}, v{vN4}" for i in range(4)]

def advance_addrs(m):
    return [f"    v_add_u32 v{vEW_RD}, {128*m}, v{vEW_RD}", f"    v_add_u32 v{vSRC_RD}, {128*m}, v{vSRC_RD}",
            f"    v_add_u32 v{vGA_RD}, {16*m}, v{vGA_RD}", f"    v_add_u32 v{vGF_RD}, {16*m}, v{vGF_RD}"]

def phase(fb, par, mf, ex1, ex2):
    G, H = (GA, HA) if fb == 'A' else (GB, HB)
    d = ACC[fb]
    nov = 'novalu' in X
    def run(op, mfs, mpos, ex):
        k = 0
        for j in range(17):
            while k < len(mfs) and mpos[k] == j:
                e(mfs[k]); k += 1
            for x in ex.get(j, []): e(x)
            if j < 16: e(f"    {op} v{G+j}, v{G+j}" if not nov else "    s_nop 0")
        assert k == len(mfs)
    run("v_exp_f32", mf[0:5], [0, 3, 6, 9, 12], ex1)
    for j in range(0, 16, 2):
        e(f"    v_pk_add_f32 v[{G+j}:{G+j+1}], v[{G+j}:{G+j+1}], 1.0 op_sel_hi:[1,0]" if not nov else "    s_nop 0")
    run("v_rcp_f32", mf[5:9], [0, 3, 6, 9], ex2)
    f = 0 if fb == 'A' else 1
    for i in range(4):
        g = G + 4*i; h = H + 4*i; k = vGK[par] + i
        u = vUT + 4*(i & 1); t = u + 2; x = vXP + 2*(i & 1)
        if not nov:
            e(f"    v_pk_mul_f32 v[{t}:{t+1}], v[{g}:{g+1}], v[{h}:{h+1}]")
            e(f"    v_pk_add_f32 v[{u}:{u+1}], v[{g}:{g+1}], v[{g+2}:{g+3}]")
            e(f"    v_pk_fma_f32 v[{t}:{t+1}], v[{g+2}:{g+3}], v[{h+2}:{h+3}], v[{t}:{t+1}]")
            e(f"    v_add_f32 v{x}, v{u}, v{u+1}")
            e(f"    v_add_f32 v{x+1}, v{t}, v{t+1}")
            e(f"    v_pk_fma_f32 v[{d}:{d+1}], v[{d}:{d+1}], v[{k & ~1}:{(k & ~1)+1}], v[{x}:{x+1}] op_sel:[0,{k&1},0] op_sel_hi:[1,{k&1},1]")
            if 'nowr' not in X: e(f"    ds_write2_b32 v{vGF[par]+i}, v{d}, v{d+1} offset0:{f*32} offset1:{64+f*32}")

def tile_body(par):
    npar = 1 - par
    dm = dma_issue()
    ex1 = {1: ["    s_waitcnt vmcnt(0)"] + reads_next(npar, par)}
    ex2 = {1: ["    s_waitcnt lgkmcnt(0)"] + after_reads(npar, par), 4: dm[0], 7: dm[1], 10: dm[2], 12: dm[3]}
    if par == 1: ex2[14] = advance_addrs(2)
    if 'noprio' not in X: e(f"    s_setprio {3 - 2*par}")
    phase('A', par, mfma_group('B', par), ex1, ex2)
    if 'noprio' not in X: e(f"    s_setprio {2 - 2*par}")
    mA = mfma_group('A', npar)
    mA[0] = ("    s_waitcnt lgkmcnt(4)\n" if 'nowr' not in X and 'novalu' not in X else "    s_waitcnt lgkmcnt(0)\n") + mA[0]
    phase('B', par, mA, {2: gf_fix(npar)}, {})

vLANE = 1
vTAB = (16, 17)
vLR, vREM = (18, 19), (20, 21)
vREC = 64
vA = 96
vRK = 112
def slot_list(ks):
    for k in ks:
        for r in range(2):
            for p in range(2):
                yield k, r, p, (2*k+r)*2 + p
def msk(q): return f"s[{sMASK+2*q}:{sMASK+2*q+1}]"

def slot_pass(name, fns):
    for fn in fns:
        for sl in slot_list([0, 1]):
            e(fn(*sl))
    for k in (2, 3):
        e(f"    s_cmp_le_u32 {sKM}, {k}\n    s_cbranch_scc1 {name}_DONE")
        for fn in fns:
            for sl in slot_list([k]):
                e(fn(*sl))
    e(f"{name}_DONE:")

def seg_masks():
    c("per-round segment limits and slot masks")
    for r in range(2):
        e(f"    v_sub_u32 v{vREM[r]}, v{vLR[r]}, v22")
    for k, r, p, q in slot_list(range(4)):
        e(f"    v_cmp_lt_i32 {msk(q)}, {8*k+p}, v{vREM[r]}")
    q20, q21, q30, q31 = 8, 10, 12, 14
    e(f"""    s_mov_b32 {sKM}, 2
    s_or_b64 s[52:53], {msk(q20)}, {msk(q21)}
    s_cmp_lg_u64 s[52:53], 0
    s_cselect_b32 {sKM}, 3, {sKM}
    s_or_b64 s[52:53], {msk(q30)}, {msk(q31)}
    s_cmp_lg_u64 s[52:53], 0
    s_cselect_b32 {sKM}, 4, {sKM}""")

PFN = 2 if 'pf2' in X else 0
def gen_k2():
    e(".globl k2_kernel\n.p2align 8\n.type k2_kernel,@function\nk2_kernel:")
    e(f"""    s_cmp_ge_u32 s2, {NBINS}
    s_cbranch_scc1 K2_END
    s_load_dwordx2 {S_WS}, s[0:1], 88
    s_load_dwordx2 {S_X}, s[0:1], 0
    s_load_dwordx2 {S_OUT}, s[0:1], 72
    s_and_b32 {sB}, s2, 7
    s_lshl_b32 {sB}, {sB}, 5
    s_lshr_b32 s3, s2, 3
    s_add_u32 {sB}, {sB}, s3
    s_mul_i32 {sN0}, {sB}, {NB}
    s_sub_u32 {sNL}, {N}, {sN0}
    s_min_u32 {sNL}, {sNL}, {NB}
    v_lshrrev_b32 v2, 6, v0
    v_and_b32 v{vLANE}, 63, v0
    v_readfirstlane_b32 {sWV}, v2
    s_mov_b32 {sMSK22}, 0x3fffff
    s_mov_b32 {sMSKA}, 0x3f80
    s_mov_b32 {sRND}, 0
    s_lshl_b32 s3, {sN0}, 7
    s_lshl_b32 s49, {sNL}, 7
    v_lshrrev_b32 v2, 2, v0
    v_lshlrev_b32 v3, 10, v2
    s_lshl_b32 s48, {sB}, 2
    s_add_u32 s48, s48, {WS_TAB}
    v_add_u32 v3, s48, v3
    v_add_u32 v4, {128*1024}, v3
    s_waitcnt lgkmcnt(0)
    s_mov_b32 s24, s6
    s_mov_b32 s25, s7
    s_mov_b32 s26, {WS_SIZE}
    s_mov_b32 s27, 0x00020000
    buffer_load_dword v{vTAB[0]}, v3, {SRD_WS}, 0 offen
    buffer_load_dword v{vTAB[1]}, v4, {SRD_WS}, 0 offen
    s_mov_b32 s12, s4
    s_mov_b32 s13, s5
    s_mov_b32 s14, {N*128}
    s_mov_b32 s15, 0x00020000
    s_add_u32 s16, s4, s3
    s_addc_u32 s17, s5, 0
    s_mov_b32 s18, s49
    s_mov_b32 s19, 0x00020000
    s_add_u32 s20, s8, s3
    s_addc_u32 s21, s9, 0
    s_mov_b32 s22, s49
    s_mov_b32 s23, 0x00020000""")
    stamp()
    if DBG and 'fine' not in X: e(f"    s_memrealtime s[98:99]\n    s_waitcnt lgkmcnt(0)\n    v_writelane_b32 v{vDBG}, s98, 14")
    if 'nobar0' not in X: e("    s_barrier")
    c("lane constants")
    e(f"""    s_lshr_b32 {sRHO}, {sWV}, 1
    s_and_b32 {sFB}, {sWV}, 1
    v_and_b32 v{vN}, 31, v{vLANE}
    v_lshrrev_b32 v{vH}, 5, v{vLANE}
    v_lshrrev_b32 v22, 4, v{vLANE}
    v_and_b32 v{vCHB}, 7, v{vLANE}
    v_xor_b32 v{vCHA}, v22, v{vCHB}
    v_lshlrev_b32 v{vCHA}, 4, v{vCHA}
    v_xor_b32 v{vCHB}, 64, v{vCHA}""")
    c("W fragments -> LDS (XST area), 4KB per wave")
    e(f"""    s_lshl_b32 s3, {sWV}, 12
    s_add_u32 {sM0B}, s3, {XST}
    s_mov_b32 m0, {sM0B}
    v_lshlrev_b32 v3, 4, v{vLANE}
    s_add_u32 s3, s3, {WS_W}
    v_add_u32 v3, s3, v3""")
    for k in range(4):
        e(f"    buffer_load_dwordx4 v3, {SRD_WS}, 0 offen offset:{1024*k} lds")
    c("x_bin rows 16w..16w+15 -> LDS (swizzled)")
    e(f"""    s_lshl_b32 s3, {sWV}, 11
    s_add_u32 s48, s3, {XBS}
    s_mov_b32 m0, s48
    v_lshrrev_b32 v22, 3, v{vLANE}
    v_lshlrev_b32 v22, 7, v22
    v_add_u32 v22, s3, v22
    v_add_u32 v3, v22, v{vCHA}
    v_add_u32 v4, v22, v{vCHB}
    v_add_u32 v4, 1024, v4
    buffer_load_dwordx4 v3, {SRD_XB}, 0 offen lds
    s_add_u32 m0, m0, 1024
    v_lshlrev_b32 v7, 2, v{vLANE}
    buffer_load_dwordx4 v4, {SRD_XB}, 0 offen lds""")
    c("wc words")
    e(f"""    v_add_u32 v7, {WS_W+32768}, v7
    buffer_load_dword a{aAFA+2}, v7, {SRD_WS}, 0 offen
    buffer_load_dword a{aAFB+2}, v7, {SRD_WS}, 0 offen offset:256""")
    e(f"""    v_bfe_u32 v22, v{vN}, 1, 3
    v_xor_b32 v22, v22, v{vH}
    v_lshlrev_b32 v22, 4, v22
    v_lshl_add_u32 v22, v{vN}, 7, v22
    v_add_u32 v{vXR[0]}, {sM0B}, v22""")
    for s in range(1, 4):
        e(f"    v_xor_b32 v{vXR[s]}, {32*s}, v{vXR[0]}")
    e(f"""    v_bfe_u32 v22, v{vLANE}, 4, 1
    v_and_b32 v{vAFC}, 3, v{vLANE}
    v_lshlrev_b32 v{vAFC}, 3, v{vAFC}
    v_lshl_add_u32 v{vAFC}, v22, 5, v{vAFC}
    v_lshlrev_b32 v{vN4}, 2, v{vN}""")
    e(f"""    v_lshrrev_b32 v40, 3, v{vN}
    v_bfe_u32 v41, v{vN}, 2, 1
    v_cmp_eq_u32 vcc, v41, v{vH}
    v_mov_b32 v42, 0x3f80
    v_and_b32 v43, 1, v40
    v_cndmask_b32 v42, 0, v42, vcc
    v_lshlrev_b32 v43, 4, v43
    v_lshlrev_b32 v42, v43, v42
    v_cmp_gt_u32 vcc, 2, v40
    v_mov_b32 v45, 0
    s_nop 0
    v_cndmask_b32 v43, 0, v42, vcc
    v_cndmask_b32 v44, v42, 0, vcc
    v_accvgpr_write_b32 a{aO}, v43
    v_accvgpr_write_b32 a{aO+1}, v44
    v_accvgpr_write_b32 a{aO+3}, v45
    v_accvgpr_write_b32 a{aAFA+3}, v45
    v_accvgpr_write_b32 a{aAFB+3}, v45""")
    e("K2_ROUND_INIT:")
    c("LDS init: cnt = 0, headn = -1, flag = 0")
    e(f"""    v_lshlrev_b32 v40, 2, v0
    v_mov_b32 v41, 0
    v_cmp_gt_u32 vcc, 192, v0
    s_and_saveexec_b64 s[52:53], vcc
    ds_write_b32 v40, v41 offset:{CNT}
    v_cmp_gt_u32 vcc, 17, v0
    s_and_b64 exec, exec, vcc
    v_cmp_gt_u32 vcc, 16, v0
    v_mov_b32 v42, -1
    s_nop 0
    v_cndmask_b32 v42, 0, v42, vcc
    ds_write_b32 v40, v42 offset:{HEADN}
    s_mov_b64 exec, s[52:53]
    v_and_b32 v22, 3, v0
    v_lshlrev_b32 v22, 1, v22""")
    assert FLAG == HEADN + 64
    e(f"""    s_cmp_lg_u32 {sRND}, 0
    s_cbranch_scc1 K2_ROUND_N""")
    c("segment descriptors: segment r of this thread = (tid>>2) + 128 r ; c = tid&3")
    e(f"""    v_lshrrev_b32 v40, 2, v0
    v_add_u32 v41, 128, v40
    v_cmp_gt_u32 vcc, {NCH}, v41
    v_mul_u32_u24 v40, {CH}, v40
    v_mul_u32_u24 v41, {CH}, v41
    v_add_u32 v40, v40, v22
    v_add_u32 v41, v41, v22
    s_waitcnt vmcnt(0)
    v_and_b32 v42, 0xffff, v{vTAB[0]}
    v_lshrrev_b32 v43, 16, v{vTAB[0]}
    v_and_b32 v44, 0xffff, v{vTAB[1]}
    v_lshrrev_b32 v45, 16, v{vTAB[1]}
    v_sub_u32 v{vLEN[0]}, v43, v42
    v_sub_u32 v{vLEN[1]}, v45, v44
    v_add_lshl_u32 v{vBASE[0]}, v40, v42, 3
    v_add_lshl_u32 v{vBASE[1]}, v41, v44, 3
    v_cndmask_b32 v{vLEN[1]}, 0, v{vLEN[1]}, vcc
K2_ROUND_N:
    v_min_u32 v{vLR[0]}, 32, v{vLEN[0]}
    v_min_u32 v{vLR[1]}, 32, v{vLEN[1]}""")
    seg_masks()
    stamp()
    def rec_loads():
        c("record loads")
        for k in range(4):
            for r in range(2):
                q = (2*k+r)*2
                e(f"    s_mov_b64 exec, {msk(q)}")
                e(f"    buffer_load_dwordx4 {vr(vREC+(2*k+r)*4,4)}, v{vBASE[r]}, {SRD_WS}, 0 offen offset:{64*k}")
        e("    s_mov_b64 exec, -1")
        if 'fine2' in X: stamp_at(12)
    def w_stuff():
        c("x_bin A fragments, W fragments")
        e(f"""    s_lshl_b32 s3, {sRHO}, 12
        s_add_u32 s3, s3, {XBS}
        s_sub_u32 s3, s3, {sM0B}""")
        for s in range(4):
            e(f"    v_add_u32 v{60+s}, s3, v{vXR[s]}")
        e(f"""    v_lshlrev_b32 v22, 4, v{vLANE}
        v_add_u32 v22, {XST}, v22
        s_lshl_b32 s3, {sFB}, 10
        v_add_u32 v23, s3, v22""")
        for s in range(4):
            e(f"    ds_read_b128 {vr(40+4*s,4)}, v{60+s}")
        for s in range(4):
            e(f"    ds_read_b128 {ar(112+4*s,4)}, v23 offset:{16384+2048*s}")
        for s in range(4):
            e(f"    ds_read_b128 {ar(64+4*s,4)}, v23 offset:{24576+2048*s}")
        for k in range(16):
            e(f"    ds_read_b128 {ar(4*k,4)}, v22 offset:{1024*k}")
        e("    s_waitcnt lgkmcnt(15)")
        e("    s_waitcnt lgkmcnt(15)")
        for s in range(4):
            e(mfma(vr(vA,16), vr(40+4*s,4), ar(112+4*s,4), "0" if s == 0 else vr(vA,16)))
        for s in range(4):
            e(mfma(ar(aU,16), vr(40+4*s,4), ar(64+4*s,4), "0" if s == 0 else ar(aU,16)))
        c("A' block -> bf16 -> LDS [node][64]; node = 32rho + 8i+4h+j ; feature = 32fb+n")
        e(f"""    s_lshl_b32 s3, {sRHO}, 12
        s_lshl_b32 s49, {sFB}, 6
        s_add_u32 s3, s3, s49
        v_lshlrev_b32 v22, 9, v{vH}
        v_lshl_add_u32 v22, v{vN}, 1, v22
        v_add_u32 v22, s3, v22
        s_nop 7""")
        for r in range(0, 16, 2):
            e(f"    v_cvt_pk_bf16_f32 v{40+r//2}, v{vA+r}, v{vA+r+1}")
        for r in range(0, 16, 2):
            i, j = r >> 2, r & 3
            e(f"""    ds_write_b16 v22, v{40+r//2} offset:{A_OFF + (8*i+j)*128}
        ds_write_b16_d16_hi v22, v{40+r//2} offset:{A_OFF + (8*i+j+1)*128}""")
    e(f"""    s_cmp_lg_u32 {sRND}, 0
    s_cbranch_scc1 K2_LATER""")
    c("all early loads (table, W, x_bin, wc) have landed: vmcnt(0) above")
    e("    s_waitcnt lgkmcnt(0)\n    s_barrier")
    stamp()
    e(f"    s_cmp_ge_u32 {sWV}, 4\n    s_cbranch_scc1 K2_ORD_B")
    rec_loads()
    w_stuff()
    e("    s_branch K2_COUNT0")
    e("K2_ORD_B:")
    w_stuff()
    rec_loads()
    e("    s_branch K2_COUNT0")
    e("K2_LATER:")
    rec_loads()
    e("K2_SKIPW:")
    e("    s_waitcnt vmcnt(0) lgkmcnt(0)\n    s_barrier")
    e("K2_COUNT0:")
    stamp()
    e("K2_COUNT:")
    c("counting pass (records arrive in k order)")
    e("    v_mov_b32 v40, 1")
    cfn = [lambda k, r, p, q: f"    v_lshrrev_b32 v{vA+q}, 22, v{vREC+(2*k+r)*4+2*p}",
           lambda k, r, p, q: f"    s_mov_b64 exec, {msk(q)}\n    ds_add_rtn_u32 v{vRK+q}, v{vA+q}, v40 offset:{CNT}",
           lambda k, r, p, q: "    s_mov_b64 exec, -1" if q % 4 == 3 else ""]
    for k in range(4):
        if k >= 2: e(f"    s_cmp_le_u32 {sKM}, {k}\n    s_cbranch_scc1 K2_CNT_DONE")
        e(f"    s_waitcnt vmcnt({PFN + 6 - 2*k})")
        if 'fine2' in X and k < 2: stamp_at(13 + k)
        for fn in cfn:
            for sl in slot_list([k]): e(fn(*sl))
    e("K2_CNT_DONE:")
    e("    s_mov_b64 exec, -1\n    s_waitcnt lgkmcnt(0)\n    s_barrier")
    stamp()
    c("scan over nodes (every wave redundantly)")
    e(f"""    v_lshlrev_b32 v40, 3, v{vLANE}
    ds_read_b64 v[42:43], v40 offset:{CNT}
    s_waitcnt lgkmcnt(0)
    v_add_u32 v44, 3, v42
    v_add_u32 v45, 3, v43
    v_lshrrev_b32 v44, 2, v44
    v_lshrrev_b32 v45, 2, v45
    v_add_u32 v46, v44, v45
    v_mov_b32 v47, v46""")
    dpp_scan("v47")
    e(f"""    v_sub_u32 v48, v47, v46
    v_add_u32 v49, v48, v44
    v_readlane_b32 {sG}, v47, 63
    v_lshlrev_b32 v50, 5, v48
    v_lshlrev_b32 v51, 5, v49
    v_add_u32 v50, {RECS}, v50
    v_add_u32 v51, {RECS}, v51
    s_cmp_le_u32 {sG}, {GMAX}
    s_cbranch_scc1 K2_FITS""")
    c("overflow: redo this round with 12 records per segment")
    e(f"""    s_barrier
    v_lshlrev_b32 v40, 2, v0
    v_mov_b32 v41, 0
    v_cmp_gt_u32 vcc, 192, v0
    s_and_saveexec_b64 s[52:53], vcc
    ds_write_b32 v40, v41 offset:{CNT}
    s_mov_b64 exec, s[52:53]
    v_min_u32 v{vLR[0]}, 12, v{vLEN[0]}
    v_min_u32 v{vLR[1]}, 12, v{vLEN[1]}
    v_and_b32 v22, 3, v0
    v_lshlrev_b32 v22, 1, v22""")
    seg_masks()
    e(f"""    s_waitcnt lgkmcnt(0)
    s_barrier
    s_branch K2_COUNT
K2_FITS:
    ds_write_b64 v40, v[48:49] offset:{GS}
    ds_write_b64 v40, v[50:51] offset:{GSA}
    s_add_u32 {sT}, {sG}, 63
    s_lshr_b32 {sT}, {sT}, 6
    s_max_u32 {sT}, {sT}, 1
    s_lshl_b32 {s4T}, {sT}, 2
    v_cvt_f32_u32 v52, {s4T}
    v_rcp_f32 v52, v52
    v_lshrrev_b32 v54, 2, v0
    v_lshlrev_b32 v40, 2, v54
    v_mul_f32 v53, 0.5, v52
    s_waitcnt lgkmcnt(0)""")
    if 'fine' in X: stamp()
    c("node data + scatter lookups")
    e(f"""    ds_read_b32 v42, v40 offset:{GS}
    ds_read_b32 v43, v40 offset:{GS+4}
    ds_read_b32 v44, v40 offset:{CNT}""")
    slot_pass("K2_S1", [lambda k, r, p, q: f"    s_mov_b64 exec, {msk(q)}\n    ds_read_b32 v{vA+q}, v{vA+q} offset:{GSA}"])
    e("    s_mov_b64 exec, -1")
    c("more-records flag")
    e(f"""    v_cmp_gt_u32 vcc, v{vLEN[0]}, v{vLR[0]}
    v_cmp_gt_u32 s[52:53], v{vLEN[1]}, v{vLR[1]}
    v_and_b32 v45, 3, v0
    s_nop 0
    s_or_b64 vcc, vcc, s[52:53]
    s_and_saveexec_b64 s[52:53], vcc
    v_mov_b32 v46, 1
    v_mov_b32 v47, {FLAG}
    ds_write_b32 v47, v46
    s_mov_b64 exec, s[52:53]""")
    if 'fine' in X: stamp()
    c("node jobs: thread (nu = tid>>2, q = tid&3)")
    e(f"""    v_cmp_gt_u32 vcc, {NB}, v54
    s_and_b64 exec, exec, vcc
    s_cbranch_execz K2_NODE_DONE
    v_lshlrev_b32 v46, 7, v54
    v_lshlrev_b32 v47, 9, v54
    v_add_u32 v47, {ROWS}, v47
    s_mov_b64 s[54:55], exec
    s_waitcnt lgkmcnt(0)
    v_sub_u32 v43, v43, v42""")
    c("empty nodes: zero the row")
    e(f"""    v_cmp_eq_u32 vcc, 0, v44
    s_and_b64 exec, exec, vcc
    s_cbranch_execz K2_NOZERO
    v_lshl_add_u32 v48, v45, 7, v47
    v_mov_b64 v[56:57], 0
    v_mov_b64 v[58:59], 0""")
    for k in range(8):
        e(f"    ds_write_b128 v48, v[56:59] offset:{16*k}")
    e(f"""K2_NOZERO:
    s_mov_b64 exec, s[54:55]""")
    c("pad slots in the last group")
    e(f"""    v_add_u32 v48, v44, v45
    v_lshlrev_b32 v49, 2, v43
    v_cmp_lt_u32 vcc, v48, v49
    v_lshlrev_b32 v49, 5, v42
    v_lshl_add_u32 v49, v48, 3, v49
    v_mov_b32 v50, 0
    v_mov_b32 v51, 0x3f800000
    s_and_b64 exec, exec, vcc
    ds_write_b64 v49, v[50:51] offset:{RECS}
    s_mov_b64 exec, s[54:55]""")
    c("stream of first / last group")
    e(f"""    v_add_u32 v48, v42, v43
    v_max_u32 v49, 1, v43
    v_add_u32 v49, v42, v49
    v_subrev_u32 v49, 1, v49
    v_cvt_f32_u32 v50, v42
    v_cvt_f32_u32 v51, v49
    v_fma_f32 v50, v50, v52, v53
    v_fma_f32 v51, v51, v52, v53
    v_cvt_u32_f32 v50, v50
    v_cvt_u32_f32 v51, v51
    v_add_u32 v55, 1, v50
    v_mul_u32_u24 v56, {s4T}, v55
    v_lshlrev_b32 v57, 9, v55
    v_add_u32 v57, {HEADS}, v57
    v_cmp_lt_u32 vcc, v50, v51
    v_lshlrev_b32 v58, 2, v55
    s_and_b64 exec, exec, vcc
    ds_write_b32 v58, v54 offset:{HEADN}
    s_mov_b64 exec, s[54:55]""")
    c("groups q, q+4, q+8, q+12 (fast path)")
    e(f"""    v_add_u32 v59, v42, v45
    v_mov_b32 v60, 1.0
    v_mov_b32 v61, 0""")
    for m in range(4):
        e(f"""    v_cmp_lt_u32 vcc, v59, v48
    s_and_b64 exec, exec, vcc
    v_cmp_ge_u32 vcc, v59, v56
    v_cmp_eq_u32 s[52:53], v59, v56
    v_cmp_eq_u32 s[88:89], v59, v42
    v_lshlrev_b32 v62, 2, v59
    v_cndmask_b32 v63, v47, v57, vcc
    s_or_b64 s[52:53], s[52:53], s[88:89]
    ds_write2st64_b32 v62, v46, v63 offset0:{GAT//256} offset1:{GFT//256}
    v_cndmask_b32 v63, v60, v61, s[52:53]
    v_add_u32 v59, 4, v59
    ds_write_b32 v62, v63 offset:{GKT}""")
    c("rare: more than 16 groups, or a node spanning more than two streams")
    e(f"""    s_mov_b64 exec, s[54:55]
    v_cmp_lt_u32 vcc, 16, v43
    v_add_u32 v59, 1, v50
    v_cmp_lt_u32 s[52:53], v59, v51
    s_nop 1
    s_or_b64 vcc, vcc, s[52:53]
    s_cbranch_vccz K2_NODE_DONE
    v_add_lshl_u32 v58, v42, v45, 2
    v_cmp_eq_u32 vcc, 0, v45
    v_mov_b32 v49, v45
    v_mov_b32 v55, 1.0
    v_mov_b32 v59, 0
    v_cndmask_b32 v56, 1.0, v59, vcc
K2_BULK:
    v_cmp_lt_u32 vcc, v49, v43
    s_and_b64 exec, exec, vcc
    s_cbranch_execz K2_BULK_DONE
    ds_write2st64_b32 v58, v46, v47 offset0:{GAT//256} offset1:{GFT//256}
    ds_write_b32 v58, v56 offset:{GKT}
    v_mov_b32 v56, v55
    v_add_u32 v58, 16, v58
    v_add_u32 v49, 4, v49
    s_branch K2_BULK
K2_BULK_DONE:
    s_mov_b64 exec, s[54:55]
    v_cmp_lt_u32 vcc, 0, v43
    s_and_b64 exec, exec, vcc
    s_cbranch_execz K2_NODE_DONE
K2_BND:
    v_cmp_lt_u32 vcc, v50, v51
    s_and_b64 exec, exec, vcc
    s_cbranch_execz K2_NODE_DONE
    v_add_u32 v50, 1, v50
    v_mul_u32_u24 v55, {s4T}, v50
    v_lshlrev_b32 v56, 9, v50
    v_add_u32 v56, {HEADS}, v56
    v_lshlrev_b32 v57, 2, v50
    v_lshlrev_b32 v58, 2, v55
    v_mov_b32 v59, 0
    ds_write_b32 v57, v54 offset:{HEADN}
    ds_write_b32 v58, v59 offset:{GKT}
    v_add_u32 v60, {s4T}, v55
    v_min_u32 v60, v60, v48
    v_add_u32 v55, v55, v45
    s_mov_b64 s[52:53], exec
K2_BND2:
    v_cmp_lt_u32 vcc, v55, v60
    s_and_b64 exec, exec, vcc
    s_cbranch_execz K2_BND2_DONE
    v_lshlrev_b32 v58, 2, v55
    ds_write_b32 v58, v56 offset:{GFT}
    v_add_u32 v55, 4, v55
    s_branch K2_BND2
K2_BND2_DONE:
    s_mov_b64 exec, s[52:53]
    s_branch K2_BND
K2_NODE_DONE:
    s_mov_b64 exec, -1""")
    c("pad groups [G, 64T)")
    e(f"""    s_lshl_b32 s3, {sT}, 6
    s_sub_u32 s3, s3, {sG}
    s_lshl_b32 s49, s3, 2
    v_cmp_gt_u32 vcc, s49, v0
    s_and_saveexec_b64 s[52:53], vcc
    s_cbranch_execz K2_PADG_DONE
    s_lshl_b32 s48, {sG}, 5
    v_lshlrev_b32 v48, 3, v0
    v_add_u32 v48, s48, v48
    v_mov_b32 v50, 0
    v_mov_b32 v51, 0x3f800000
    ds_write_b64 v48, v[50:51] offset:{RECS}
    v_cmp_gt_u32 vcc, s3, v0
    s_lshl_b32 s48, {sG}, 2
    v_lshlrev_b32 v48, 2, v0
    v_add_u32 v48, s48, v48
    v_mov_b32 v51, {HEADS}
    s_and_b64 exec, exec, vcc
    ds_write2st64_b32 v48, v50, v51 offset0:{GAT//256} offset1:{GFT//256}
    ds_write_b32 v48, v50 offset:{GKT}
K2_PADG_DONE:
    s_mov_b64 exec, s[52:53]
    v_lshlrev_b32 v41, 3, v{vLANE}
    v_add_u32 v41, {DUMMY}, v41
    s_waitcnt lgkmcnt(0)""")
    if 'fine' in X: stamp()
    c("scatter")
    slot_pass("K2_S3", [
        lambda k, r, p, q: f"    v_lshl_add_u32 v{vA+q}, v{vRK+q}, 3, v{vA+q}",
        lambda k, r, p, q: f"    s_mov_b64 exec, {msk(q)}\n    ds_write_b64 v{vA+q}, v[{vREC+(2*k+r)*4+2*p}:{vREC+(2*k+r)*4+2*p+1}]",
        lambda k, r, p, q: "    s_mov_b64 exec, -1" if q % 4 == 3 else ""])
    e("    s_mov_b64 exec, -1")
    if 'fine' in X: stamp()
    c("advance segment pointers for a possible next round; T-dependent addresses")
    for r in range(2):
        e(f"""    v_sub_u32 v{vLEN[r]}, v{vLEN[r]}, v{vLR[r]}
    v_lshl_add_u32 v{vBASE[r]}, v{vLR[r]}, 3, v{vBASE[r]}""")
    e(f"""    s_lshl_b32 s3, {sWV}, 1
    s_mul_i32 s3, s3, {sT}
    s_lshl_b32 s48, s3, 7
    s_add_u32 s48, s48, {RECS}
    s_lshl_b32 s49, {sT}, 7
    v_mul_u32_u24 v41, s49, v{vH}
    v_add_u32 v41, s48, v41
    v_bfe_u32 v42, v{vLANE}, 3, 2
    v_lshl_add_u32 v{vSRC_RD}, v42, 3, v41
    v_bfe_u32 v42, v{vN}, 2, 1
    v_mul_u32_u24 v42, s49, v42
    v_add_u32 v42, s48, v42
    v_lshrrev_b32 v43, 3, v{vN}
    v_lshl_add_u32 v42, v43, 5, v42
    v_and_b32 v43, 3, v{vN}
    v_lshl_add_u32 v42, v43, 3, v42
    v_add_u32 v{vEW_RD}, 4, v42
    s_lshl_b32 s48, s3, 4
    s_lshl_b32 s49, {sT}, 4
    v_mul_u32_u24 v41, s49, v{vH}
    v_add_u32 v41, s48, v41
    v_add_u32 v{vGF_RD}, {GFT}, v41
    v_bfe_u32 v42, v{vLANE}, 2, 2
    v_lshl_add_u32 v41, v42, 2, v41
    v_add_u32 v{vGA_RD}, {GAT}, v41
    v_mov_b64 v[56:57], 0
    v_mov_b64 v[58:59], 0
    s_waitcnt lgkmcnt(0)
    s_barrier""")
    stamp()
    c("pipeline prologue")
    for x in src_reads(0): e(x)
    e("    s_waitcnt lgkmcnt(0)")
    for g in dma_issue():
        for x in g: e(x)
    e(f"    v_add_u32 v{vSRC_RD}, 128, v{vSRC_RD}")
    rn = reads_next(0, 0)
    for x in rn[4:]: e(x)
    e("    s_waitcnt lgkmcnt(0)")
    for x in after_reads(0, 0): e(x)
    e("    s_waitcnt vmcnt(0)")
    for x in rn[:4]: e(x)
    e("    s_waitcnt lgkmcnt(0)")
    for g in dma_issue():
        for x in g: e(x)
    for x in advance_addrs(1): e(x)
    for x in gf_fix(0): e(x)
    for x in mfma_group('A', 0): e(x)
    stamp()
    if 'solo' in X:
        e(f"    s_cmp_ge_u32 {sWV}, 4\n    s_cbranch_scc1 K2_LOOP_END")
    e(f"""    s_nop 15
    s_mov_b32 {sCNT}, {sT}
.p2align 6
K2_LOOP:""")
    INLOOP[0] = True
    tile_body(0)
    e(f"""    s_sub_u32 {sCNT}, {sCNT}, 1
    s_cmp_eq_u32 {sCNT}, 0
    s_cbranch_scc1 K2_LOOP_END""")
    tile_body(1)
    INLOOP[0] = False
    e(f"""    s_sub_u32 {sCNT}, {sCNT}, 1
    s_cmp_lg_u32 {sCNT}, 0
    s_cbranch_scc1 K2_LOOP
K2_LOOP_END:
    s_setprio 0
    s_waitcnt vmcnt(0) lgkmcnt(0)""")
    stamp()
    e("    s_barrier")
    stamp()
    c("head fix-up")
    e(f"""    v_lshlrev_b32 v40, 2, v{vLANE}
    ds_read_b32 v41, v40 offset:{HEADN}
    ds_read_b32 v42, v40 offset:{HEADN+4}
    v_mov_b32 v43, {FLAG}
    ds_read_b32 v44, v43
    s_lshl_b32 s3, {sWV}, 1
    v_add_u32 v45, s3, v{vH}
    v_lshlrev_b32 v46, 2, v45
    ds_read_b32 v47, v46 offset:{HEADN}
    v_lshlrev_b32 v45, 9, v45
    v_add_u32 v45, {HEADS}, v45
    v_add_u32 v45, v45, v{vN4}
    s_waitcnt lgkmcnt(0)
    v_readfirstlane_b32 {sMORE}, v44
    v_cmp_eq_u32 vcc, v41, v42
    v_cmp_le_i32 s[52:53], 0, v41
    s_nop 1
    s_and_b64 vcc, vcc, s[52:53]
    s_and_b32 s52, vcc_lo, 0x7fff
    s_cmp_lg_u32 s52, 0
    s_cbranch_scc1 K2_FIX_SLOW
    v_cmp_le_i32 vcc, 0, v47
    s_and_saveexec_b64 s[52:53], vcc
    s_cbranch_execz K2_FIX_DONE
    v_lshlrev_b32 v47, 9, v47
    v_add_u32 v47, {ROWS}, v47
    v_add_u32 v47, v47, v{vN4}""")
    for q in range(4):
        e(f"""    ds_read_b32 v{16+q}, v45 offset:{128*q}
    ds_read_b32 v{20+q}, v47 offset:{128*q}""")
    e("    s_waitcnt lgkmcnt(0)")
    for q in range(4):
        e(f"""    v_add_f32 v{16+q}, v{16+q}, v{20+q}
    ds_write_b32 v47, v{16+q} offset:{128*q}""")
    e(f"""    s_branch K2_FIX_DONE
K2_FIX_SLOW:
    s_mov_b64 s[52:53], exec
    s_cmp_lg_u32 {sWV}, 0
    s_cbranch_scc1 K2_FIX_DONE
    s_mov_b32 s3, 0
K2_FIX_SL:
    v_readlane_b32 s49, v41, s3
    s_nop 3
    s_cmp_lt_i32 s49, 0
    s_cbranch_scc1 K2_FIX_SN
    s_lshl_b32 s49, s49, 9
    s_add_u32 s49, s49, {ROWS}
    s_lshl_b32 s54, s3, 9
    s_add_u32 s54, s54, {HEADS}
    v_lshlrev_b32 v45, 3, v{vLANE}
    v_add_u32 v46, s54, v45
    v_add_u32 v47, s49, v45
    ds_read_b64 v[16:17], v46
    ds_read_b64 v[18:19], v47
    s_waitcnt lgkmcnt(0)
    v_add_f32 v16, v16, v18
    v_add_f32 v17, v17, v19
    ds_write_b64 v47, v[16:17]
    s_waitcnt lgkmcnt(0)
K2_FIX_SN:
    s_add_u32 s3, s3, 1
    s_cmp_lt_u32 s3, 16
    s_cbranch_scc1 K2_FIX_SL
K2_FIX_DONE:
    s_mov_b64 exec, s[52:53]
    s_waitcnt lgkmcnt(0)
    s_barrier""")
    e(f"""    s_or_b32 s3, {sRND}, {sMORE}
    s_cmp_eq_u32 s3, 0
    s_cbranch_scc1 K2_EPI""")
    c("rare: several rounds. rows += saved (round>0); if more: save rows and restart")
    e(f"""    s_mul_i32 s3, {sB}, {NB*512}
    s_add_u32 s3, s3, {WS_ACC}
    v_lshlrev_b32 v40, 4, v0
    v_add_u32 v41, {ROWS}, v40
    v_add_u32 v42, s3, v40
    s_mov_b32 s49, 0
K2_MR:
    v_cmp_gt_u32 vcc, {NB*512}, v40
    s_and_saveexec_b64 s[52:53], vcc
    s_cbranch_execz K2_MR_N
    ds_read_b128 v[16:19], v41
    s_cmp_eq_u32 {sRND}, 0
    s_cbranch_scc1 K2_MR_A
    buffer_load_dwordx4 v[20:23], v42, {SRD_WS}, 0 offen
    s_waitcnt vmcnt(0) lgkmcnt(0)
    v_add_f32 v16, v16, v20
    v_add_f32 v17, v17, v21
    v_add_f32 v18, v18, v22
    v_add_f32 v19, v19, v23
    ds_write_b128 v41, v[16:19]
K2_MR_A:
    s_waitcnt lgkmcnt(0)
    s_cmp_eq_u32 {sMORE}, 0
    s_cbranch_scc1 K2_MR_N
    buffer_store_dwordx4 v[16:19], v42, {SRD_WS}, 0 offen
    s_waitcnt vmcnt(0)
K2_MR_N:
    s_mov_b64 exec, s[52:53]
    v_add_u32 v40, 8192, v40
    v_add_u32 v41, 8192, v41
    v_add_u32 v42, 8192, v42
    s_add_u32 s49, s49, 1
    s_cmp_lt_u32 s49, 7
    s_cbranch_scc1 K2_MR
    s_waitcnt vmcnt(0) lgkmcnt(0)
    s_barrier
    s_cmp_eq_u32 {sMORE}, 0
    s_cbranch_scc1 K2_EPI
    s_mov_b32 {sRND}, 1
    s_branch K2_ROUND_INIT""")
    e("K2_EPI:")
    stamp()
    c("wave (rho, fb): node = 32rho+8i+4h+j, feature = 32fb+n")
    e(f"""    s_lshl_b32 s3, {sRHO}, 12
    s_lshl_b32 s49, {sFB}, 6
    s_add_u32 s3, s3, s49
    v_lshlrev_b32 v2, 9, v{vH}
    v_lshl_add_u32 v2, v{vN}, 1, v2
    v_add_u32 v2, s3, v2""")
    for r in range(16):
        i, j = r >> 2, r & 3
        e(f"    buffer_load_ushort v{64+r}, v2, {SRD_XB}, 0 offen offset:{(8*i+j)*128}")
    e(f"""    s_lshl_b32 s3, {sRHO}, 14
    s_lshl_b32 s49, {sFB}, 7
    s_add_u32 s3, s3, s49
    s_add_u32 s3, s3, {ROWS}
    v_lshlrev_b32 v3, 11, v{vH}
    v_add_u32 v3, v3, v{vN4}
    v_add_u32 v3, s3, v3""")
    for r in range(16):
        i, j = r >> 2, r & 3
        e(f"    ds_read2st64_b32 v[{80+2*r}:{81+2*r}], v3 offset0:{(8*i+j)*2} offset1:{(8*i+j)*2+1}")
    e(f"    s_mov_b32 s49, {f32bits(1e-6):#x}")
    e("    s_waitcnt lgkmcnt(0)")
    for r in range(16):
        e(f"    v_add_f32 v{80+2*r}, s49, v{80+2*r}")
    for r in range(16):
        e(f"    v_rcp_f32 v{80+2*r}, v{80+2*r}")
    for r in range(16):
        e(f"    v_accvgpr_read_b32 v{112+r}, a{aU+r}")
    for r in range(16):
        e(f"    v_fma_f32 v{112+r}, v{81+2*r}, v{80+2*r}, v{112+r}")
    for r in range(16):
        e(f"    v_max_f32 v{112+r}, 0, v{112+r}")
    e("    s_waitcnt vmcnt(0)")
    for r in range(16):
        e(f"""    v_lshlrev_b32 v{64+r}, 16, v{64+r}
    v_add_f32 v{112+r}, v{112+r}, v{64+r}""")
    for r in range(0, 16, 2):
        e(f"    v_cvt_pk_bf16_f32 v{80+r//2}, v{112+r}, v{113+r}")
    for r in range(0, 16, 2):
        i, j = r >> 2, r & 3
        e(f"""    buffer_store_short v{80+r//2}, v2, {SRD_OUT}, 0 offen offset:{(8*i+j)*128}
    buffer_store_short_d16_hi v{80+r//2}, v2, {SRD_OUT}, 0 offen offset:{(8*i+j+1)*128}""")
    stamp()
    if DBG and 'fine' not in X: e(f"    s_waitcnt vmcnt(0)\n    s_memrealtime s[98:99]\n    s_waitcnt lgkmcnt(0)\n    v_writelane_b32 v{vDBG}, s98, 15")
    stamp_flush(sWV, 1)
    e("K2_END:\n    s_endpgm")

def desc(name, nv, acc, ns):
    return f""".amdhsa_kernel {name}
  .amdhsa_next_free_vgpr {nv}
  .amdhsa_next_free_sgpr {ns}
  .amdhsa_accum_offset {acc}
  .amdhsa_group_segment_fixed_size 0
  .amdhsa_kernarg_size 96
  .amdhsa_user_sgpr_count 2
  .amdhsa_user_sgpr_kernarg_segment_ptr 1
  .amdhsa_system_sgpr_workgroup_id_x 1
  .amdhsa_float_denorm_mode_32 3
.end_amdhsa_kernel"""

def main(out):
    hdr = open('gather_scatter__edge_featured_mpnn_gatedgcn__graph.s.ref').read().split('\n')
    head = [x for x in hdr if x.startswith(';') and '@launch' not in x and 'Override launch' not in x and 'grid=ceil' not in x]
    for x in head: e(x)
    e(f"; @launch kernel=k1_kernel grid=({NCH+8},1,1) block=(448,1,1) lds={K1_LDS}")
    e(f"; @launch kernel=k2_kernel grid=({NBINS},1,1) block=(512,1,1) lds={K2_LDS}")
    e('.amdgcn_target "amdgcn-amd-amdhsa--gfx950"')
    e(".text")
    gen_k1()
    gen_k2()
    e('.section .rodata,"a"\n.p2align 6')
    e(desc("k1_kernel", 80, 80, 40))
    e(desc("k2_kernel", 256, 128, 100))
    open(out, 'w').write("\n".join(L) + "\n")

if __name__ == "__main__":
    main(sys.argv[1] if len(sys.argv) > 1 else "gather_scatter__edge_featured_mpnn_gatedgcn__graph.s")
```

```python
import sys, struct

N = 25000
E = 800000
NB = 98
NBINS = 256
NCH = 250
CH = 3200

WS_REC = 0
WS_TAB = 0x700000
WS_W = 0x780000
WS_ACC = 0x800000
WS_SIZE = 0x2000000

LOG2E = 1.4426950408889634
def f32bits(x): return struct.unpack('<I', struct.pack('<f', x))[0]
NEG_LOG2E = f32bits(-LOG2E)
BIG = f32bits(2.0**100)

K1_HIST = 0
K1_OFFS = 1024
K1_STAGE = 2048
K1_LDS = 2048 + CH * 8

A_OFF = 0
CNT = 16384
GS = CNT + 768
GSA = GS + 512
HEADN = GSA + 768
FLAG = HEADN + 64
GAT = 18688
GFT = GAT + 4096
GKT = GFT + 4096
RECS = GKT + 4096
DUMMY = RECS + 31232
ROWS = DUMMY + 512
HEADS = ROWS + NB * 512
XST = HEADS + 16 * 512
K2_LDS = XST + 32768
XBS = RECS
assert GAT % 256 == 0 and XST % 128 == 0 and XBS % 128 == 0
GMAX = 960

import os
DBG = int(os.environ.get('DBG','0'))
WS_DBG = 0x1800000
X = set(os.environ.get('X','').split(','))
NST = [0]
vDBG = 38
def stamp(name=None):
    if not DBG: return
    i = NST[0]; NST[0] += 1
    e(f"    s_memtime s[96:97]")
    e(f"    s_waitcnt lgkmcnt(0)")
    e(f"    v_writelane_b32 v{vDBG}, s96, {i}")
NST1 = [0]
def stamp1():
    if not DBG: return
    i = NST1[0]; NST1[0] += 1
    e(f"    s_memtime s[32:33]")
    e(f"    s_waitcnt lgkmcnt(0)")
    e(f"    v_writelane_b32 v61, s32, {i}")
    if i == 0:
        e("    s_memrealtime s[34:35]\n    s_waitcnt lgkmcnt(0)\n    v_writelane_b32 v61, s34, 14")
def stamp_at(i):
    e(f"    s_memtime s[96:97]")
    e(f"    s_waitcnt lgkmcnt(0)")
    e(f"    v_writelane_b32 v{vDBG}, s96, {i}")
def stamp_flush(wave_sgpr, kid):
    if not DBG: return
    e(f"    s_lshl_b32 s3, s2, 4")
    e(f"    s_add_u32 s3, s3, {wave_sgpr}")
    e(f"    s_lshl_b32 s3, s3, 6")
    e(f"    s_add_u32 s3, s3, {WS_DBG + kid*0x100000}")
    e(f"    s_mov_b64 exec, 0xffff")
    e(f"    v_and_b32 v2, 63, v0")
    e(f"    v_lshlrev_b32 v2, 2, v2")
    e(f"    v_add_u32 v2, s3, v2")
    e(f"    global_store_dword v2, v{vDBG}, {'s[6:7]' if kid else 's[10:11]'}")
    NST[0] = 0
L = []
def e(s=""):
    for line in s.split("\n"):
        L.append(line)
def c(s): L.append("    ; " + s)

def dpp_scan(v):
    for sh in (1, 2, 4, 8):
        e(f"    s_nop 1")
        e(f"    v_add_u32_dpp {v}, {v}, {v} row_shr:{sh} row_mask:0xf bank_mask:0xf")
    e("    s_nop 1")
    e(f"    v_add_u32_dpp {v}, {v}, {v} row_bcast:15 row_mask:0xa bank_mask:0xf")
    e("    s_nop 1")
    e(f"    v_add_u32_dpp {v}, {v}, {v} row_bcast:31 row_mask:0xc bank_mask:0xf")

def gen_k1():
    STP = '' if 'plainst' in X else ('nt sc1' if 'ntst' in X else 'sc1')
    NT = 400
    e(".globl k1_kernel\n.p2align 8\n.type k1_kernel,@function\nk1_kernel:")
    e(f"""    s_cmp_ge_u32 s2, {NCH+8}
    s_cbranch_scc1 K1_END
    s_load_dwordx4 s[4:7], s[0:1], 16
    s_load_dwordx4 s[12:15], s[0:1], 0
    s_load_dwordx2 s[10:11], s[0:1], 88
    s_cmp_ge_u32 s2, {NCH}
    s_cbranch_scc1 K1_PREP
    s_mul_i32 s16, s2, {CH*4}
    v_lshlrev_b32 v1, 4, v0
    v_add_u32 v2, s16, v1
    v_add_u32 v3, {NT*16}, v2
    s_lshr_b32 s17, s16, 1
    v_add_u32 v4, s17, v1
    v_lshlrev_b32 v5, 2, v0
    v_mov_b32 v6, 0
    v_lshrrev_b32 v28, 6, v0
    v_mov_b32 v29, 1
    v_readfirstlane_b32 s23, v28
    v_cmp_gt_u32 vcc, 256, v0
    s_and_saveexec_b64 s[18:19], vcc
    ds_write_b32 v5, v6 offset:{K1_HIST}
    s_mov_b64 exec, s[18:19]
    v_cmp_gt_u32 vcc, {NT}, v0
    s_and_b64 exec, exec, vcc
    s_mov_b64 s[20:21], exec
    s_mov_b32 s22, {-NB & 0xffffffff}
    s_waitcnt lgkmcnt(0)""")
    stamp1()
    LDP = 'nt' if 'ntld' in X else ''
    e(f"""    global_load_dwordx4 v[8:11], v2, s[6:7] {LDP}
    global_load_dwordx4 v[12:15], v3, s[6:7] {LDP}
    s_barrier
    global_load_dwordx4 v[80:83], v2, s[4:5] {LDP}
    global_load_dwordx4 v[84:87], v3, s[4:5] {LDP}
    v_lshrrev_b32 v4, 1, v2
    v_lshrrev_b32 v7, 1, v3
    global_load_dwordx2 v[88:89], v4, s[14:15] {LDP}
    global_load_dwordx2 v[90:91], v7, s[14:15] {LDP}""")
    PF1 = 0
    def prefetch():
        c("light prefetch: every row of x is touched once (brings it into the memory-side cache)")
        e(f"""    s_mul_i32 s17, s2, 100
    v_add_u32 v6, s17, v0
    v_lshlrev_b32 v7, 7, v6
    v_cmp_gt_u32 vcc, 100, v0
    s_and_b64 exec, exec, vcc
    global_load_dword v62, v7, s[12:13]
    s_mov_b64 exec, s[20:21]""")
        if 'nocodepf' not in X:
            c("bring the second kernel's code into the caches (read as data)")
            e(f"""    s_cmp_ge_u32 s2, 16
    s_cbranch_scc1 K1_NOCPF
    s_getpc_b64 s[26:27]
K1_CPF:
    s_add_u32 s26, s26, k2_kernel-K1_CPF
    s_addc_u32 s27, s27, 0
    v_lshlrev_b32 v60, 7, v0
    v_cmp_gt_u32 vcc, (K2_CODE_END-k2_kernel+127)/128, v0
    s_and_b64 exec, exec, vcc
    s_cbranch_execz K1_CPF_SKIP
    global_load_dword v63, v60, s[26:27]
K1_CPF_SKIP:
    s_mov_b64 exec, s[20:21]
K1_NOCPF:""")
    e("    s_waitcnt vmcnt(5)")
    stamp1()
    def binops(k):
        d = 8 + k
        e(f"""    v_mul_u32_u24 v{32+k}, 42800, v{d}
    v_lshrrev_b32 v{32+k}, 22, v{32+k}
    v_mad_i32_i24 v{40+k}, v{32+k}, s22, v{d}
    v_lshlrev_b32 v{32+k}, 2, v{32+k}""")
    for k in range(4): binops(k)
    for k in range(4): e(f"    ds_add_rtn_u32 v{48+k}, v{32+k}, v29 offset:{K1_HIST}")
    e(f"    s_waitcnt vmcnt({4+PF1})")
    for k in range(4, 8): binops(k)
    for k in range(4, 8): e(f"    ds_add_rtn_u32 v{48+k}, v{32+k}, v29 offset:{K1_HIST}")
    e("    s_waitcnt lgkmcnt(0)")
    stamp1()
    e("""    s_barrier
    s_mov_b64 exec, -1
    v_and_b32 v30, 63, v0
    v_lshlrev_b32 v31, 4, v30""")
    e(f"""    ds_read_b128 v[8:11], v31 offset:{K1_HIST}
    s_waitcnt lgkmcnt(0)
    v_add_u32 v12, v8, v9
    v_add_u32 v13, v12, v10
    v_add_u32 v14, v13, v11
    v_mov_b32 v15, v14""")
    dpp_scan("v15")
    e(f"""    v_sub_u32 v16, v15, v14
    v_add_u32 v17, v16, v8
    v_add_u32 v18, v16, v12
    v_add_u32 v19, v16, v13
    ds_write_b128 v31, v[16:19] offset:{K1_OFFS}
    v_lshl_or_b32 v20, v17, 16, v16
    v_lshl_or_b32 v21, v18, 16, v17
    v_lshl_or_b32 v22, v19, 16, v18
    v_lshl_or_b32 v23, v15, 16, v19
    s_lshl_b32 s24, s2, 10
    s_add_u32 s24, s24, {WS_TAB}
    v_add_u32 v24, s24, v31
    s_waitcnt lgkmcnt(0)""")
    stamp1()
    e("    s_mov_b64 exec, s[20:21]")
    for k in range(8):
        e(f"    ds_read_b32 v{8+k}, v{32+k} offset:{K1_OFFS}")
    e("    s_waitcnt vmcnt(0)")
    e(f"""    s_cmp_lg_u32 s23, 0
    s_cbranch_scc1 K1_NOTAB2
    s_mov_b64 exec, -1
    global_store_dwordx4 v24, v[20:23], s[10:11] {STP}
    s_mov_b64 exec, s[20:21]
K1_NOTAB2:""")
    if 'nopf1' not in X: prefetch()
    for k in range(8):
        e(f"""    v_lshlrev_b32 v{64+2*k}, 7, v{80+k}
    v_lshl_or_b32 v{64+2*k}, v{40+k}, 24, v{64+2*k}""")
    for k in range(8):
        src = 88 + k//2
        e(f"    v_and_b32 v{65+2*k}, 0xffff, v{src}" if k % 2 == 0 else f"    v_lshrrev_b32 v{65+2*k}, 16, v{src}")
    e("    s_waitcnt lgkmcnt(0)")
    for k in range(8):
        e(f"    v_add_lshl_u32 v{8+k}, v{8+k}, v{48+k}, 3")
    for k in range(8):
        e(f"    ds_write_b64 v{8+k}, v[{64+2*k}:{65+2*k}] offset:{K1_STAGE}")
    e("    s_waitcnt lgkmcnt(0)")
    stamp1()
    e("    s_barrier")
    for k in range(4):
        e(f"    ds_read_b128 v[{8+4*k}:{11+4*k}], v1 offset:{K1_STAGE+6400*k}")
    e(f"""    s_mul_i32 s24, s2, {CH*8}
    v_add_u32 v24, s24, v1""")
    for k in range(1, 4):
        e(f"    v_add_u32 v{24+k}, {6400*k}, v24")
    for k in range(4):
        e(f"    s_waitcnt lgkmcnt({3-k})\n    global_store_dwordx4 v{24+k}, v[{8+4*k}:{11+4*k}], s[10:11] {STP}")
    stamp1()
    if DBG:
        e("    s_waitcnt vmcnt(0)")
        stamp1()
        e("    s_memrealtime s[34:35]\n    s_waitcnt lgkmcnt(0)\n    v_writelane_b32 v61, s34, 15")
        e(f"""    s_lshl_b32 s3, s2, 4
    s_add_u32 s3, s3, s23
    s_lshl_b32 s3, s3, 6
    s_add_u32 s3, s3, {WS_DBG}
    s_mov_b64 exec, 0xffff
    v_and_b32 v2, 63, v0
    v_lshlrev_b32 v2, 2, v2
    v_add_u32 v2, s3, v2
    global_store_dword v2, v61, s[10:11]""")
    e("    s_endpgm")
    e(f"""K1_PREP:
    s_sub_u32 s16, s2, {NCH}
    s_and_b32 s30, s16, 1
    s_lshr_b32 s16, s16, 1
    s_mov_b32 s26, 1.0
    s_cmp_eq_u32 s16, 0
    s_cbranch_scc1 K1_P0
    s_cmp_eq_u32 s16, 1
    s_cbranch_scc1 K1_P1
    s_cmp_eq_u32 s16, 2
    s_cbranch_scc1 K1_P2
    s_load_dwordx2 s[24:25], s[0:1], 56
    s_branch K1_PJ
K1_P0:
    s_load_dwordx2 s[24:25], s[0:1], 40
    s_mov_b32 s26, {NEG_LOG2E:#x}
    s_branch K1_PJ
K1_P1:
    s_load_dwordx2 s[24:25], s[0:1], 64
    s_branch K1_PJ
K1_P2:
    s_load_dwordx2 s[24:25], s[0:1], 32
    s_mov_b32 s26, {NEG_LOG2E:#x}
K1_PJ:
    s_load_dwordx2 s[28:29], s[0:1], 48
    s_lshl_b32 s31, s30, 8
    v_add_u32 v9, s31, v0
    v_and_b32 v1, 63, v9
    v_lshrrev_b32 v2, 6, v9
    v_and_b32 v3, 31, v1
    v_lshrrev_b32 v4, 5, v1
    v_lshrrev_b32 v5, 1, v2
    v_and_b32 v6, 1, v2
    v_lshlrev_b32 v7, 11, v5
    v_lshl_add_u32 v7, v4, 10, v7
    v_lshl_add_u32 v7, v6, 6, v7
    v_lshl_add_u32 v7, v3, 1, v7
    s_lshl_b32 s17, s16, 13
    s_add_u32 s17, s17, {WS_W}
    v_lshlrev_b32 v8, 4, v9
    v_add_u32 v8, s17, v8
    s_waitcnt lgkmcnt(0)
    v_cmp_gt_u32 vcc, 256, v0
    s_and_saveexec_b64 s[18:19], vcc
    s_cbranch_execz K1_PWC""")
    for j in range(8):
        e(f"    global_load_ushort v{10+j}, v7, s[24:25] offset:{128*j}")
    e("    s_waitcnt vmcnt(0)")
    for j in range(8):
        e(f"""    v_lshlrev_b32 v{10+j}, 16, v{10+j}
    v_mul_f32 v{10+j}, s26, v{10+j}""")
    for j in range(4):
        e(f"    v_cvt_pk_bf16_f32 v{20+j}, v{10+2*j}, v{11+2*j}")
    e(f"""    global_store_dwordx4 v8, v[20:23], s[10:11]
K1_PWC:
    s_mov_b64 exec, s[18:19]
    s_or_b32 s17, s16, s30
    s_cmp_lg_u32 s17, 0
    s_cbranch_scc1 K1_END
    v_subrev_u32 v9, 256, v0
    v_and_b32 v3, 31, v9
    v_bfe_u32 v4, v9, 5, 1
    v_cmp_gt_u32 vcc, 128, v9
    s_and_saveexec_b64 s[18:19], vcc
    s_cbranch_execz K1_END
    v_lshrrev_b32 v6, 6, v9
    v_lshlrev_b32 v7, 6, v6
    v_lshl_add_u32 v7, v3, 1, v7
    global_load_ushort v10, v7, s[28:29]
    v_lshlrev_b32 v8, 2, v9
    v_add_u32 v8, {WS_W+32768}, v8
    v_mov_b32 v12, {BIG:#x}
    s_waitcnt vmcnt(0)
    v_lshlrev_b32 v10, 16, v10
    v_mul_f32 v10, {NEG_LOG2E:#x}, v10
    v_cvt_pk_bf16_f32 v11, v10, v12
    v_cmp_eq_u32 vcc, 0, v4
    s_nop 1
    v_cndmask_b32 v11, 0, v11, vcc
    global_store_dword v8, v11, s[10:11]
K1_END:
    s_endpgm""")

S_X, S_WS, S_OUT = "s[4:5]", "s[6:7]", "s[8:9]"
SRD_X, SRD_XB, SRD_OUT, SRD_WS = "s[12:15]", "s[16:19]", "s[20:23]", "s[24:27]"
sB, sWV, sT, sCNT, sN0, sNL = "s28", "s29", "s30", "s31", "s33", "s34"
s4T, sG, sRND, sMORE, sKM = "s35", "s36", "s37", "s38", "s39"
sMSK22, sMSKA, sM0B = "s45", "s46", "s47"
sRHO, sFB = "s50", "s51"
sMASK = 56

GA, HA, GB, HB = 64, 80, 96, 112
ACC = {'A': 56, 'B': 58}
vXR = [2, 3, 4, 5]
vSRC_RD, vEW_RD, vGA_RD, vGF_RD = 6, 7, 8, 9
vCHA, vCHB, vAFC, vN4 = 10, 11, 12, 13
vN, vH = 14, 15
vGF = [16, 20]
vSRC = 24
vGA, vAFA = 28, 29
vLEN, vBASE = (30, 31), (32, 33)
vXP = 34
vGK = [40, 44]
vUT = 48
aWB, aWV, aAFA, aAFB, aO, aU = 0, 32, 80, 84, 88, 96
aX = [64, 112]

INLOOP = [False]
def mfma(d, a, b, cc):
    if 'nomfma' in X and INLOOP[0]: return "    s_nop 0"
    return f"    v_mfma_f32_32x32x16_bf16 {d}, {a}, {b}, {cc}"
def vr(b, n): return f"v[{b}:{b+n-1}]"
def ar(b, n): return f"a[{b}:{b+n-1}]"

def mfma_group(fb, xb):
    G, H = (GA, HA) if fb == 'A' else (GB, HB)
    f = 0 if fb == 'A' else 1
    af = aAFA if fb == 'A' else aAFB
    out = [mfma(vr(G, 16), ar(aO, 4), ar(af, 4), "0")]
    gs_ = [mfma(vr(G, 16), ar(aX[xb] + 4*s, 4), ar(aWB + (s*2+f)*4, 4), vr(G, 16)) for s in range(4)]
    hs_ = [mfma(vr(H, 16), ar(aX[xb] + 4*s, 4), ar(aWV + (s*2+f)*4, 4), "0" if s == 0 else vr(H, 16)) for s in range(4)]
    if 'swapop' in X:
        gs_ = gs_
    if 'share' in X:
        for s in range(4): out += [gs_[s], hs_[s]]
    else:
        out += gs_ + hs_
    return out

def dma_issue():
    grp = []
    for k in range(4):
        ch = vCHA if k % 2 == 0 else vCHB
        g = [f"    v_and_or_b32 v{vSRC+k}, v{vSRC+k}, {sMSK22}, v{ch}"]
        g.append(f"    s_mov_b32 m0, {sM0B}" if k == 0 else "    s_add_u32 m0, m0, 1024")
        g.append("    s_nop 0")
        if 'nodma' not in X: g.append(f"    buffer_load_dwordx4 v{vSRC+k}, {SRD_X}, 0 offen lds")
        grp.append(g)
    return grp

def src_reads(o1):
    return [f"    ds_read2_b32 v[{vSRC}:{vSRC+1}], v{vSRC_RD} offset0:{32*o1} offset1:{32*o1+8}",
            f"    ds_read2_b32 v[{vSRC+2}:{vSRC+3}], v{vSRC_RD} offset0:{32*o1+16} offset1:{32*o1+24}"]

def reads_next(xb, o1=0):
    o = []
    for s in range(4):
        o.append(f"    ds_read_b128 {ar(aX[xb]+4*s,4)}, v{vXR[s]}")
    o.append(f"    ds_read_b32 v{vGA}, v{vGA_RD} offset:{16*o1}")
    o += src_reads(o1)
    o.append(f"    ds_read_b32 a{aO+2}, v{vEW_RD} offset:{128*o1}")
    return o

def after_reads(npar, o1=0):
    return [f"    v_and_or_b32 v{vAFA}, v{vGA}, {sMSKA}, v{vAFC}",
            f"    ds_read_b64_tr_b16 {ar(aAFA,2)}, v{vAFA}",
            f"    ds_read_b64_tr_b16 {ar(aAFB,2)}, v{vAFA} offset:64",
            f"    ds_read_b128 {vr(vGF[npar],4)}, v{vGF_RD} offset:{16*o1}",
            f"    ds_read_b128 {vr(vGK[npar],4)}, v{vGF_RD} offset:{GKT-GFT+16*o1}"]
def gf_fix(npar):
    return [f"    v_add_u32 v{vGF[npar]+i}, v{vGF[npar]+i}, v{vN4}" for i in range(4)]

def advance_addrs(m):
    return [f"    v_add_u32 v{vEW_RD}, {128*m}, v{vEW_RD}", f"    v_add_u32 v{vSRC_RD}, {128*m}, v{vSRC_RD}",
            f"    v_add_u32 v{vGA_RD}, {16*m}, v{vGA_RD}", f"    v_add_u32 v{vGF_RD}, {16*m}, v{vGF_RD}"]

def phase(fb, par, mf, ex1, ex2):
    G, H = (GA, HA) if fb == 'A' else (GB, HB)
    d = ACC[fb]
    nov = 'novalu' in X
    def run(op, mfs, mpos, ex):
        k = 0
        for j in range(17):
            while k < len(mfs) and mpos[k] == j:
                e(mfs[k]); k += 1
            for x in ex.get(j, []): e(x)
            if j < 16: e(f"    {op} v{G+j}, v{G+j}" if not nov else "    s_nop 0")
        assert k == len(mfs)
    run("v_exp_f32", mf[0:5], [0, 3, 6, 9, 12], ex1)
    for j in range(0, 16, 2):
        e(f"    v_pk_add_f32 v[{G+j}:{G+j+1}], v[{G+j}:{G+j+1}], 1.0 op_sel_hi:[1,0]" if not nov else "    s_nop 0")
    run("v_rcp_f32", mf[5:9], [0, 3, 6, 9], ex2)
    f = 0 if fb == 'A' else 1
    clump = 'clump' in X
    xs = [34, 36, 60, 62]
    prev = d
    wr = []
    for i in range(4):
        g = G + 4*i; h = H + 4*i; k = vGK[par] + i
        u = vUT + 4*(i & 1); t = u + 2
        x = xs[i] if clump else vXP + 2*(i & 1)
        dst = (x if i < 3 else d) if clump else d
        if not nov:
            e(f"    v_pk_mul_f32 v[{t}:{t+1}], v[{g}:{g+1}], v[{h}:{h+1}]")
            e(f"    v_pk_add_f32 v[{u}:{u+1}], v[{g}:{g+1}], v[{g+2}:{g+3}]")
            e(f"    v_pk_fma_f32 v[{t}:{t+1}], v[{g+2}:{g+3}], v[{h+2}:{h+3}], v[{t}:{t+1}]")
            e(f"    v_add_f32 v{x}, v{u}, v{u+1}")
            e(f"    v_add_f32 v{x+1}, v{t}, v{t+1}")
            e(f"    v_pk_fma_f32 v[{dst}:{dst+1}], v[{prev}:{prev+1}], v[{k & ~1}:{(k & ~1)+1}], v[{x}:{x+1}] op_sel:[0,{k&1},0] op_sel_hi:[1,{k&1},1]")
            w = f"    ds_write2_b32 v{vGF[par]+i}, v{dst}, v{dst+1} offset0:{f*32} offset1:{64+f*32}"
            if 'nowr' not in X:
                if clump: wr.append(w)
                else: e(w)
            prev = dst
    for w in wr: e(w)

def tile_body(par):
    npar = 1 - par
    dm = dma_issue()
    ex1 = {1: ["    s_waitcnt vmcnt(0)"] + reads_next(npar, par)}
    ex2 = {1: ["    s_waitcnt lgkmcnt(0)"] + after_reads(npar, par), 4: dm[0], 7: dm[1], 10: dm[2], 12: dm[3]}
    if 'dmaclump' in X:
        ex2 = {1: ["    s_waitcnt lgkmcnt(0)"] + after_reads(npar, par), 4: dm[0] + dm[1] + dm[2] + dm[3]}
    if par == 1: ex2[14] = advance_addrs(2)
    exB1 = {2: gf_fix(npar)}
    pa, pb = 3 - 2*par, 2 - 2*par
    if 'prioAB' in X: pa, pb = 1, 0
    if 'prioBA' in X: pa, pb = 0, 1
    if 'prio2' in X: pa, pb = (1, 1) if par == 0 else (0, 0)
    if 'noprio' not in X: e(f"    s_setprio {pa}")
    phase('A', par, mfma_group('B', par), ex1, ex2)
    if 'noprio' not in X: e(f"    s_setprio {pb}")
    mA = mfma_group('A', npar)
    mA[0] = ("    s_waitcnt lgkmcnt(4)\n" if 'nowr' not in X and 'novalu' not in X else "    s_waitcnt lgkmcnt(0)\n") + mA[0]
    phase('B', par, mA, exB1, {})

vLANE = 1
vTAB = (16, 17)
vLR, vREM = (18, 19), (20, 21)
vREC = 64
vA = 96
vRK = 112
def slot_list(ks):
    for k in ks:
        for r in range(2):
            for p in range(2):
                yield k, r, p, (2*k+r)*2 + p
def msk(q): return f"s[{sMASK+2*q}:{sMASK+2*q+1}]"

def slot_pass(name, fns):
    for fn in fns:
        for sl in slot_list([0, 1]):
            e(fn(*sl))
    for k in (2, 3):
        e(f"    s_cmp_le_u32 {sKM}, {k}\n    s_cbranch_scc1 {name}_DONE")
        for fn in fns:
            for sl in slot_list([k]):
                e(fn(*sl))
    e(f"{name}_DONE:")

def seg_masks():
    c("per-round segment limits and slot masks")
    for r in range(2):
        e(f"    v_sub_u32 v{vREM[r]}, v{vLR[r]}, v22")
    for k, r, p, q in slot_list(range(4)):
        e(f"    v_cmp_lt_i32 {msk(q)}, {8*k+p}, v{vREM[r]}")
    q20, q21, q30, q31 = 8, 10, 12, 14
    e(f"""    s_mov_b32 {sKM}, 2
    s_or_b64 s[52:53], {msk(q20)}, {msk(q21)}
    s_cmp_lg_u64 s[52:53], 0
    s_cselect_b32 {sKM}, 3, {sKM}
    s_or_b64 s[52:53], {msk(q30)}, {msk(q31)}
    s_cmp_lg_u64 s[52:53], 0
    s_cselect_b32 {sKM}, 4, {sKM}""")

PFN = 2 if 'pf2' in X else 0
def gen_k2():
    e(".globl k2_kernel\n.p2align 8\n.type k2_kernel,@function\nk2_kernel:")
    e(f"""    s_cmp_ge_u32 s2, {NBINS}
    s_cbranch_scc1 K2_END
    s_load_dwordx2 {S_WS}, s[0:1], 88
    s_load_dwordx2 {S_X}, s[0:1], 0
    s_load_dwordx2 {S_OUT}, s[0:1], 72
    s_and_b32 {sB}, s2, 7
    s_lshl_b32 {sB}, {sB}, 5
    s_lshr_b32 s3, s2, 3
    s_add_u32 {sB}, {sB}, s3
    s_mul_i32 {sN0}, {sB}, {NB}
    s_sub_u32 {sNL}, {N}, {sN0}
    s_min_u32 {sNL}, {sNL}, {NB}
    v_lshrrev_b32 v2, 6, v0
    v_and_b32 v{vLANE}, 63, v0
    v_readfirstlane_b32 {sWV}, v2
    s_mov_b32 {sMSK22}, 0x3fffff
    s_mov_b32 {sMSKA}, 0x3f80
    s_mov_b32 {sRND}, 0
    s_lshl_b32 s3, {sN0}, 7
    s_lshl_b32 s49, {sNL}, 7
    v_lshrrev_b32 v2, 2, v0
    v_lshlrev_b32 v3, 10, v2
    s_lshl_b32 s48, {sB}, 2
    s_add_u32 s48, s48, {WS_TAB}
    v_add_u32 v3, s48, v3
    v_add_u32 v4, {128*1024}, v3
    s_waitcnt lgkmcnt(0)
    s_mov_b32 s24, s6
    s_mov_b32 s25, s7
    s_mov_b32 s26, {WS_SIZE}
    s_mov_b32 s27, 0x00020000
    buffer_load_dword v{vTAB[0]}, v3, {SRD_WS}, 0 offen
    buffer_load_dword v{vTAB[1]}, v4, {SRD_WS}, 0 offen
    s_mov_b32 s12, s4
    s_mov_b32 s13, s5
    s_mov_b32 s14, {N*128}
    s_mov_b32 s15, 0x00020000
    s_add_u32 s16, s4, s3
    s_addc_u32 s17, s5, 0
    s_mov_b32 s18, s49
    s_mov_b32 s19, 0x00020000
    s_add_u32 s20, s8, s3
    s_addc_u32 s21, s9, 0
    s_mov_b32 s22, s49
    s_mov_b32 s23, 0x00020000""")
    stamp()
    if DBG and 'fine' not in X: e(f"    s_memrealtime s[98:99]\n    s_waitcnt lgkmcnt(0)\n    v_writelane_b32 v{vDBG}, s98, 14")
    if 'nobar0' not in X: e("    s_barrier")
    c("lane constants")
    e(f"""    s_lshr_b32 {sRHO}, {sWV}, 1
    s_and_b32 {sFB}, {sWV}, 1
    v_and_b32 v{vN}, 31, v{vLANE}
    v_lshrrev_b32 v{vH}, 5, v{vLANE}
    v_lshrrev_b32 v22, 4, v{vLANE}
    v_and_b32 v{vCHB}, 7, v{vLANE}
    v_xor_b32 v{vCHA}, v22, v{vCHB}
    v_lshlrev_b32 v{vCHA}, 4, v{vCHA}
    v_xor_b32 v{vCHB}, 64, v{vCHA}""")
    c("W fragments -> LDS (XST area), 4KB per wave")
    e(f"""    s_lshl_b32 s3, {sWV}, 12
    s_add_u32 {sM0B}, s3, {XST}
    s_mov_b32 m0, {sM0B}
    v_lshlrev_b32 v3, 4, v{vLANE}
    s_add_u32 s3, s3, {WS_W}
    v_add_u32 v3, s3, v3""")
    for k in range(4):
        e(f"    buffer_load_dwordx4 v3, {SRD_WS}, 0 offen offset:{1024*k} lds")
    c("x_bin rows 16w..16w+15 -> LDS (swizzled)")
    e(f"""    s_lshl_b32 s3, {sWV}, 11
    s_add_u32 s48, s3, {XBS}
    s_mov_b32 m0, s48
    v_lshrrev_b32 v22, 3, v{vLANE}
    v_lshlrev_b32 v22, 7, v22
    v_add_u32 v22, s3, v22
    v_add_u32 v3, v22, v{vCHA}
    v_add_u32 v4, v22, v{vCHB}
    v_add_u32 v4, 1024, v4
    buffer_load_dwordx4 v3, {SRD_XB}, 0 offen lds
    s_add_u32 m0, m0, 1024
    v_lshlrev_b32 v7, 2, v{vLANE}
    buffer_load_dwordx4 v4, {SRD_XB}, 0 offen lds""")
    c("wc words")
    e(f"""    v_add_u32 v7, {WS_W+32768}, v7
    buffer_load_dword a{aAFA+2}, v7, {SRD_WS}, 0 offen
    buffer_load_dword a{aAFB+2}, v7, {SRD_WS}, 0 offen offset:256""")
    e(f"""    v_bfe_u32 v22, v{vN}, 1, 3
    v_xor_b32 v22, v22, v{vH}
    v_lshlrev_b32 v22, 4, v22
    v_lshl_add_u32 v22, v{vN}, 7, v22
    v_add_u32 v{vXR[0]}, {sM0B}, v22""")
    for s in range(1, 4):
        e(f"    v_xor_b32 v{vXR[s]}, {32*s}, v{vXR[0]}")
    e(f"""    v_bfe_u32 v22, v{vLANE}, 4, 1
    v_and_b32 v{vAFC}, 3, v{vLANE}
    v_lshlrev_b32 v{vAFC}, 3, v{vAFC}
    v_lshl_add_u32 v{vAFC}, v22, 5, v{vAFC}
    v_lshlrev_b32 v{vN4}, 2, v{vN}""")
    e(f"""    v_lshrrev_b32 v40, 3, v{vN}
    v_bfe_u32 v41, v{vN}, 2, 1
    v_cmp_eq_u32 vcc, v41, v{vH}
    v_mov_b32 v42, 0x3f80
    v_and_b32 v43, 1, v40
    v_cndmask_b32 v42, 0, v42, vcc
    v_lshlrev_b32 v43, 4, v43
    v_lshlrev_b32 v42, v43, v42
    v_cmp_gt_u32 vcc, 2, v40
    v_mov_b32 v45, 0
    s_nop 0
    v_cndmask_b32 v43, 0, v42, vcc
    v_cndmask_b32 v44, v42, 0, vcc
    v_accvgpr_write_b32 a{aO}, v43
    v_accvgpr_write_b32 a{aO+1}, v44
    v_accvgpr_write_b32 a{aO+3}, v45
    v_accvgpr_write_b32 a{aAFA+3}, v45
    v_accvgpr_write_b32 a{aAFB+3}, v45""")
    e("K2_ROUND_INIT:")
    c("LDS init: cnt = 0, headn = -1, flag = 0")
    e(f"""    v_lshlrev_b32 v40, 2, v0
    v_mov_b32 v41, 0
    v_cmp_gt_u32 vcc, 192, v0
    s_and_saveexec_b64 s[52:53], vcc
    ds_write_b32 v40, v41 offset:{CNT}
    v_cmp_gt_u32 vcc, 17, v0
    s_and_b64 exec, exec, vcc
    v_cmp_gt_u32 vcc, 16, v0
    v_mov_b32 v42, -1
    s_nop 0
    v_cndmask_b32 v42, 0, v42, vcc
    ds_write_b32 v40, v42 offset:{HEADN}
    s_mov_b64 exec, s[52:53]
    v_and_b32 v22, 3, v0
    v_lshlrev_b32 v22, 1, v22""")
    assert FLAG == HEADN + 64
    e(f"""    s_cmp_lg_u32 {sRND}, 0
    s_cbranch_scc1 K2_ROUND_N""")
    c("segment descriptors: segment r of this thread = (tid>>2) + 128 r ; c = tid&3")
    e(f"""    v_lshrrev_b32 v40, 2, v0
    v_add_u32 v41, 128, v40
    v_cmp_gt_u32 vcc, {NCH}, v41
    v_mul_u32_u24 v40, {CH}, v40
    v_mul_u32_u24 v41, {CH}, v41
    v_add_u32 v40, v40, v22
    v_add_u32 v41, v41, v22
    s_waitcnt vmcnt(0)
    v_and_b32 v42, 0xffff, v{vTAB[0]}
    v_lshrrev_b32 v43, 16, v{vTAB[0]}
    v_and_b32 v44, 0xffff, v{vTAB[1]}
    v_lshrrev_b32 v45, 16, v{vTAB[1]}
    v_sub_u32 v{vLEN[0]}, v43, v42
    v_sub_u32 v{vLEN[1]}, v45, v44
    v_add_lshl_u32 v{vBASE[0]}, v40, v42, 3
    v_add_lshl_u32 v{vBASE[1]}, v41, v44, 3
    v_cndmask_b32 v{vLEN[1]}, 0, v{vLEN[1]}, vcc
K2_ROUND_N:
    v_min_u32 v{vLR[0]}, 32, v{vLEN[0]}
    v_min_u32 v{vLR[1]}, 32, v{vLEN[1]}""")
    seg_masks()
    stamp()
    def rec_loads():
        c("record loads")
        for k in range(4):
            for r in range(2):
                q = (2*k+r)*2
                e(f"    s_mov_b64 exec, {msk(q)}")
                e(f"    buffer_load_dwordx4 {vr(vREC+(2*k+r)*4,4)}, v{vBASE[r]}, {SRD_WS}, 0 offen offset:{64*k}")
        e("    s_mov_b64 exec, -1")
        if 'fine2' in X: stamp_at(12)
    def w_stuff():
        c("x_bin A fragments, W fragments")
        e(f"""    s_lshl_b32 s3, {sRHO}, 12
        s_add_u32 s3, s3, {XBS}
        s_sub_u32 s3, s3, {sM0B}""")
        for s in range(4):
            e(f"    v_add_u32 v{60+s}, s3, v{vXR[s]}")
        e(f"""    v_lshlrev_b32 v22, 4, v{vLANE}
        v_add_u32 v22, {XST}, v22
        s_lshl_b32 s3, {sFB}, 10
        v_add_u32 v23, s3, v22""")
        for s in range(4):
            e(f"    ds_read_b128 {vr(40+4*s,4)}, v{60+s}")
        for s in range(4):
            e(f"    ds_read_b128 {ar(112+4*s,4)}, v23 offset:{16384+2048*s}")
        for s in range(4):
            e(f"    ds_read_b128 {ar(64+4*s,4)}, v23 offset:{24576+2048*s}")
        for k in range(16):
            e(f"    ds_read_b128 {ar(4*k,4)}, v22 offset:{1024*k}")
        e("    s_waitcnt lgkmcnt(15)")
        e("    s_waitcnt lgkmcnt(15)")
        for s in range(4):
            e(mfma(vr(vA,16), vr(40+4*s,4), ar(112+4*s,4), "0" if s == 0 else vr(vA,16)))
        for s in range(4):
            e(mfma(ar(aU,16), vr(40+4*s,4), ar(64+4*s,4), "0" if s == 0 else ar(aU,16)))
        c("A' block -> bf16 -> LDS [node][64]; node = 32rho + 8i+4h+j ; feature = 32fb+n")
        e(f"""    s_lshl_b32 s3, {sRHO}, 12
        s_lshl_b32 s49, {sFB}, 6
        s_add_u32 s3, s3, s49
        v_lshlrev_b32 v22, 9, v{vH}
        v_lshl_add_u32 v22, v{vN}, 1, v22
        v_add_u32 v22, s3, v22
        s_nop 7""")
        for r in range(0, 16, 2):
            e(f"    v_cvt_pk_bf16_f32 v{40+r//2}, v{vA+r}, v{vA+r+1}")
        for r in range(0, 16, 2):
            i, j = r >> 2, r & 3
            e(f"""    ds_write_b16 v22, v{40+r//2} offset:{A_OFF + (8*i+j)*128}
        ds_write_b16_d16_hi v22, v{40+r//2} offset:{A_OFF + (8*i+j+1)*128}""")
    e(f"""    s_cmp_lg_u32 {sRND}, 0
    s_cbranch_scc1 K2_LATER""")
    c("all early loads (table, W, x_bin, wc) have landed: vmcnt(0) above")
    e("    s_waitcnt lgkmcnt(0)\n    s_barrier")
    stamp()
    e(f"    s_cmp_ge_u32 {sWV}, 4\n    s_cbranch_scc1 K2_ORD_B")
    rec_loads()
    w_stuff()
    e("    s_branch K2_COUNT0")
    e("K2_ORD_B:")
    w_stuff()
    rec_loads()
    e("    s_branch K2_COUNT0")
    e("K2_LATER:")
    rec_loads()
    e("K2_SKIPW:")
    e("    s_waitcnt vmcnt(0) lgkmcnt(0)\n    s_barrier")
    e("K2_COUNT0:")
    stamp()
    e("K2_COUNT:")
    c("counting pass (records arrive in k order)")
    e("    v_mov_b32 v40, 1")
    cfn = [lambda k, r, p, q: f"    v_lshrrev_b32 v{vA+q}, 22, v{vREC+(2*k+r)*4+2*p}",
           lambda k, r, p, q: f"    s_mov_b64 exec, {msk(q)}\n    ds_add_rtn_u32 v{vRK+q}, v{vA+q}, v40 offset:{CNT}",
           lambda k, r, p, q: "    s_mov_b64 exec, -1" if q % 4 == 3 else ""]
    for k in range(4):
        if k >= 2: e(f"    s_cmp_le_u32 {sKM}, {k}\n    s_cbranch_scc1 K2_CNT_DONE")
        e(f"    s_waitcnt vmcnt({PFN + 6 - 2*k})")
        if 'fine2' in X and k < 2: stamp_at(13 + k)
        for fn in cfn:
            for sl in slot_list([k]): e(fn(*sl))
    e("K2_CNT_DONE:")
    e("    s_mov_b64 exec, -1\n    s_waitcnt lgkmcnt(0)\n    s_barrier")
    stamp()
    c("scan over nodes (every wave redundantly)")
    e(f"""    v_lshlrev_b32 v40, 3, v{vLANE}
    ds_read_b64 v[42:43], v40 offset:{CNT}
    s_waitcnt lgkmcnt(0)
    v_add_u32 v44, 3, v42
    v_add_u32 v45, 3, v43
    v_lshrrev_b32 v44, 2, v44
    v_lshrrev_b32 v45, 2, v45
    v_add_u32 v46, v44, v45
    v_mov_b32 v47, v46""")
    dpp_scan("v47")
    e(f"""    v_sub_u32 v48, v47, v46
    v_add_u32 v49, v48, v44
    v_readlane_b32 {sG}, v47, 63
    v_lshlrev_b32 v50, 5, v48
    v_lshlrev_b32 v51, 5, v49
    v_add_u32 v50, {RECS}, v50
    v_add_u32 v51, {RECS}, v51
    s_cmp_le_u32 {sG}, {GMAX}
    s_cbranch_scc1 K2_FITS""")
    c("overflow: redo this round with 12 records per segment")
    e(f"""    s_barrier
    v_lshlrev_b32 v40, 2, v0
    v_mov_b32 v41, 0
    v_cmp_gt_u32 vcc, 192, v0
    s_and_saveexec_b64 s[52:53], vcc
    ds_write_b32 v40, v41 offset:{CNT}
    s_mov_b64 exec, s[52:53]
    v_min_u32 v{vLR[0]}, 12, v{vLEN[0]}
    v_min_u32 v{vLR[1]}, 12, v{vLEN[1]}
    v_and_b32 v22, 3, v0
    v_lshlrev_b32 v22, 1, v22""")
    seg_masks()
    e(f"""    s_waitcnt lgkmcnt(0)
    s_barrier
    s_branch K2_COUNT
K2_FITS:
    ds_write_b64 v40, v[48:49] offset:{GS}
    ds_write_b64 v40, v[50:51] offset:{GSA}
    s_add_u32 {sT}, {sG}, 63
    s_lshr_b32 {sT}, {sT}, 6
    s_max_u32 {sT}, {sT}, 1
    s_lshl_b32 {s4T}, {sT}, 2
    v_cvt_f32_u32 v52, {s4T}
    v_rcp_f32 v52, v52
    v_lshrrev_b32 v54, 2, v0
    v_lshlrev_b32 v40, 2, v54
    v_mul_f32 v53, 0.5, v52
    s_waitcnt lgkmcnt(0)""")
    if 'fine' in X: stamp()
    c("node data + scatter lookups")
    e(f"""    ds_read_b32 v42, v40 offset:{GS}
    ds_read_b32 v43, v40 offset:{GS+4}
    ds_read_b32 v44, v40 offset:{CNT}""")
    slot_pass("K2_S1", [lambda k, r, p, q: f"    s_mov_b64 exec, {msk(q)}\n    ds_read_b32 v{vA+q}, v{vA+q} offset:{GSA}"])
    e("    s_mov_b64 exec, -1")
    c("more-records flag")
    e(f"""    v_cmp_gt_u32 vcc, v{vLEN[0]}, v{vLR[0]}
    v_cmp_gt_u32 s[52:53], v{vLEN[1]}, v{vLR[1]}
    v_and_b32 v45, 3, v0
    s_nop 0
    s_or_b64 vcc, vcc, s[52:53]
    s_and_saveexec_b64 s[52:53], vcc
    v_mov_b32 v46, 1
    v_mov_b32 v47, {FLAG}
    ds_write_b32 v47, v46
    s_mov_b64 exec, s[52:53]""")
    if 'fine' in X: stamp()
    c("node jobs: thread (nu = tid>>2, q = tid&3)")
    e(f"""    v_cmp_gt_u32 vcc, {NB}, v54
    s_and_b64 exec, exec, vcc
    s_cbranch_execz K2_NODE_DONE
    v_lshlrev_b32 v46, 7, v54
    v_lshlrev_b32 v47, 9, v54
    v_add_u32 v47, {ROWS}, v47
    s_mov_b64 s[54:55], exec
    s_waitcnt lgkmcnt(0)
    v_sub_u32 v43, v43, v42""")
    c("empty nodes: zero the row")
    e(f"""    v_cmp_eq_u32 vcc, 0, v44
    s_and_b64 exec, exec, vcc
    s_cbranch_execz K2_NOZERO
    v_lshl_add_u32 v48, v45, 7, v47
    v_mov_b64 v[56:57], 0
    v_mov_b64 v[58:59], 0""")
    for k in range(8):
        e(f"    ds_write_b128 v48, v[56:59] offset:{16*k}")
    e(f"""K2_NOZERO:
    s_mov_b64 exec, s[54:55]""")
    c("pad slots in the last group")
    e(f"""    v_add_u32 v48, v44, v45
    v_lshlrev_b32 v49, 2, v43
    v_cmp_lt_u32 vcc, v48, v49
    v_lshlrev_b32 v49, 5, v42
    v_lshl_add_u32 v49, v48, 3, v49
    v_mov_b32 v50, 0
    v_mov_b32 v51, 0x3f800000
    s_and_b64 exec, exec, vcc
    ds_write_b64 v49, v[50:51] offset:{RECS}
    s_mov_b64 exec, s[54:55]""")
    c("stream of first / last group")
    e(f"""    v_add_u32 v48, v42, v43
    v_max_u32 v49, 1, v43
    v_add_u32 v49, v42, v49
    v_subrev_u32 v49, 1, v49
    v_cvt_f32_u32 v50, v42
    v_cvt_f32_u32 v51, v49
    v_fma_f32 v50, v50, v52, v53
    v_fma_f32 v51, v51, v52, v53
    v_cvt_u32_f32 v50, v50
    v_cvt_u32_f32 v51, v51
    v_add_u32 v55, 1, v50
    v_mul_u32_u24 v56, {s4T}, v55
    v_lshlrev_b32 v57, 9, v55
    v_add_u32 v57, {HEADS}, v57
    v_cmp_lt_u32 vcc, v50, v51
    v_lshlrev_b32 v58, 2, v55
    s_and_b64 exec, exec, vcc
    ds_write_b32 v58, v54 offset:{HEADN}
    s_mov_b64 exec, s[54:55]""")
    c("groups q, q+4, q+8, q+12 (fast path)")
    e(f"""    v_add_u32 v59, v42, v45
    v_mov_b32 v60, 1.0
    v_mov_b32 v61, 0""")
    for m in range(4):
        e(f"""    v_cmp_lt_u32 vcc, v59, v48
    s_and_b64 exec, exec, vcc
    v_cmp_ge_u32 vcc, v59, v56
    v_cmp_eq_u32 s[52:53], v59, v56
    v_cmp_eq_u32 s[88:89], v59, v42
    v_lshlrev_b32 v62, 2, v59
    v_cndmask_b32 v63, v47, v57, vcc
    s_or_b64 s[52:53], s[52:53], s[88:89]
    ds_write2st64_b32 v62, v46, v63 offset0:{GAT//256} offset1:{GFT//256}
    v_cndmask_b32 v63, v60, v61, s[52:53]
    v_add_u32 v59, 4, v59
    ds_write_b32 v62, v63 offset:{GKT}""")
    c("rare: more than 16 groups, or a node spanning more than two streams")
    e(f"""    s_mov_b64 exec, s[54:55]
    v_cmp_lt_u32 vcc, 16, v43
    v_add_u32 v59, 1, v50
    v_cmp_lt_u32 s[52:53], v59, v51
    s_nop 1
    s_or_b64 vcc, vcc, s[52:53]
    s_cbranch_vccz K2_NODE_DONE
    v_add_lshl_u32 v58, v42, v45, 2
    v_cmp_eq_u32 vcc, 0, v45
    v_mov_b32 v49, v45
    v_mov_b32 v55, 1.0
    v_mov_b32 v59, 0
    v_cndmask_b32 v56, 1.0, v59, vcc
K2_BULK:
    v_cmp_lt_u32 vcc, v49, v43
    s_and_b64 exec, exec, vcc
    s_cbranch_execz K2_BULK_DONE
    ds_write2st64_b32 v58, v46, v47 offset0:{GAT//256} offset1:{GFT//256}
    ds_write_b32 v58, v56 offset:{GKT}
    v_mov_b32 v56, v55
    v_add_u32 v58, 16, v58
    v_add_u32 v49, 4, v49
    s_branch K2_BULK
K2_BULK_DONE:
    s_mov_b64 exec, s[54:55]
    v_cmp_lt_u32 vcc, 0, v43
    s_and_b64 exec, exec, vcc
    s_cbranch_execz K2_NODE_DONE
K2_BND:
    v_cmp_lt_u32 vcc, v50, v51
    s_and_b64 exec, exec, vcc
    s_cbranch_execz K2_NODE_DONE
    v_add_u32 v50, 1, v50
    v_mul_u32_u24 v55, {s4T}, v50
    v_lshlrev_b32 v56, 9, v50
    v_add_u32 v56, {HEADS}, v56
    v_lshlrev_b32 v57, 2, v50
    v_lshlrev_b32 v58, 2, v55
    v_mov_b32 v59, 0
    ds_write_b32 v57, v54 offset:{HEADN}
    ds_write_b32 v58, v59 offset:{GKT}
    v_add_u32 v60, {s4T}, v55
    v_min_u32 v60, v60, v48
    v_add_u32 v55, v55, v45
    s_mov_b64 s[52:53], exec
K2_BND2:
    v_cmp_lt_u32 vcc, v55, v60
    s_and_b64 exec, exec, vcc
    s_cbranch_execz K2_BND2_DONE
    v_lshlrev_b32 v58, 2, v55
    ds_write_b32 v58, v56 offset:{GFT}
    v_add_u32 v55, 4, v55
    s_branch K2_BND2
K2_BND2_DONE:
    s_mov_b64 exec, s[52:53]
    s_branch K2_BND
K2_NODE_DONE:
    s_mov_b64 exec, -1""")
    c("pad groups [G, 64T)")
    e(f"""    s_lshl_b32 s3, {sT}, 6
    s_sub_u32 s3, s3, {sG}
    s_lshl_b32 s49, s3, 2
    v_cmp_gt_u32 vcc, s49, v0
    s_and_saveexec_b64 s[52:53], vcc
    s_cbranch_execz K2_PADG_DONE
    s_lshl_b32 s48, {sG}, 5
    v_lshlrev_b32 v48, 3, v0
    v_add_u32 v48, s48, v48
    v_mov_b32 v50, 0
    v_mov_b32 v51, 0x3f800000
    ds_write_b64 v48, v[50:51] offset:{RECS}
    v_cmp_gt_u32 vcc, s3, v0
    s_lshl_b32 s48, {sG}, 2
    v_lshlrev_b32 v48, 2, v0
    v_add_u32 v48, s48, v48
    v_mov_b32 v51, {HEADS}
    s_and_b64 exec, exec, vcc
    ds_write2st64_b32 v48, v50, v51 offset0:{GAT//256} offset1:{GFT//256}
    ds_write_b32 v48, v50 offset:{GKT}
K2_PADG_DONE:
    s_mov_b64 exec, s[52:53]
    v_lshlrev_b32 v41, 3, v{vLANE}
    v_add_u32 v41, {DUMMY}, v41
    s_waitcnt lgkmcnt(0)""")
    if 'fine' in X: stamp()
    c("scatter")
    slot_pass("K2_S3", [
        lambda k, r, p, q: f"    v_lshl_add_u32 v{vA+q}, v{vRK+q}, 3, v{vA+q}",
        lambda k, r, p, q: f"    s_mov_b64 exec, {msk(q)}\n    ds_write_b64 v{vA+q}, v[{vREC+(2*k+r)*4+2*p}:{vREC+(2*k+r)*4+2*p+1}]",
        lambda k, r, p, q: "    s_mov_b64 exec, -1" if q % 4 == 3 else ""])
    e("    s_mov_b64 exec, -1")
    if 'fine' in X: stamp()
    c("advance segment pointers for a possible next round; T-dependent addresses")
    for r in range(2):
        e(f"""    v_sub_u32 v{vLEN[r]}, v{vLEN[r]}, v{vLR[r]}
    v_lshl_add_u32 v{vBASE[r]}, v{vLR[r]}, 3, v{vBASE[r]}""")
    e(f"""    s_lshl_b32 s3, {sWV}, 1
    s_mul_i32 s3, s3, {sT}
    s_lshl_b32 s48, s3, 7
    s_add_u32 s48, s48, {RECS}
    s_lshl_b32 s49, {sT}, 7
    v_mul_u32_u24 v41, s49, v{vH}
    v_add_u32 v41, s48, v41
    v_bfe_u32 v42, v{vLANE}, 3, 2
    v_lshl_add_u32 v{vSRC_RD}, v42, 3, v41
    v_bfe_u32 v42, v{vN}, 2, 1
    v_mul_u32_u24 v42, s49, v42
    v_add_u32 v42, s48, v42
    v_lshrrev_b32 v43, 3, v{vN}
    v_lshl_add_u32 v42, v43, 5, v42
    v_and_b32 v43, 3, v{vN}
    v_lshl_add_u32 v42, v43, 3, v42
    v_add_u32 v{vEW_RD}, 4, v42
    s_lshl_b32 s48, s3, 4
    s_lshl_b32 s49, {sT}, 4
    v_mul_u32_u24 v41, s49, v{vH}
    v_add_u32 v41, s48, v41
    v_add_u32 v{vGF_RD}, {GFT}, v41
    v_bfe_u32 v42, v{vLANE}, 2, 2
    v_lshl_add_u32 v41, v42, 2, v41
    v_add_u32 v{vGA_RD}, {GAT}, v41
    v_mov_b64 v[56:57], 0
    v_mov_b64 v[58:59], 0
    s_waitcnt lgkmcnt(0)
    s_barrier""")
    stamp()
    c("pipeline prologue")
    for x in src_reads(0): e(x)
    e("    s_waitcnt lgkmcnt(0)")
    for g in dma_issue():
        for x in g: e(x)
    e(f"    v_add_u32 v{vSRC_RD}, 128, v{vSRC_RD}")
    rn = reads_next(0, 0)
    for x in rn[4:]: e(x)
    e("    s_waitcnt lgkmcnt(0)")
    for x in after_reads(0, 0): e(x)
    e("    s_waitcnt vmcnt(0)")
    for x in rn[:4]: e(x)
    e("    s_waitcnt lgkmcnt(0)")
    for g in dma_issue():
        for x in g: e(x)
    for x in advance_addrs(1): e(x)
    for x in gf_fix(0): e(x)
    for x in mfma_group('A', 0): e(x)
    stamp()
    if 'solo' in X:
        e(f"    s_cmp_ge_u32 {sWV}, 4\n    s_cbranch_scc1 K2_LOOP_END")
    e(f"""    s_nop 15
    s_mov_b32 {sCNT}, {sT}
.p2align 6
K2_LOOP:""")
    INLOOP[0] = True
    tile_body(0)
    e(f"""    s_sub_u32 {sCNT}, {sCNT}, 1
    s_cmp_eq_u32 {sCNT}, 0
    s_cbranch_scc1 K2_LOOP_END""")
    tile_body(1)
    INLOOP[0] = False
    e(f"""    s_sub_u32 {sCNT}, {sCNT}, 1
    s_cmp_lg_u32 {sCNT}, 0
    s_cbranch_scc1 K2_LOOP
K2_LOOP_END:
    s_setprio 0
    s_waitcnt vmcnt(0) lgkmcnt(0)""")
    stamp()
    e("    s_barrier")
    stamp()
    c("head fix-up")
    e(f"""    v_lshlrev_b32 v40, 2, v{vLANE}
    ds_read_b32 v41, v40 offset:{HEADN}
    ds_read_b32 v42, v40 offset:{HEADN+4}
    v_mov_b32 v43, {FLAG}
    ds_read_b32 v44, v43
    s_lshl_b32 s3, {sWV}, 1
    v_add_u32 v45, s3, v{vH}
    v_lshlrev_b32 v46, 2, v45
    ds_read_b32 v47, v46 offset:{HEADN}
    v_lshlrev_b32 v45, 9, v45
    v_add_u32 v45, {HEADS}, v45
    v_add_u32 v45, v45, v{vN4}
    s_waitcnt lgkmcnt(0)
    v_readfirstlane_b32 {sMORE}, v44
    v_cmp_eq_u32 vcc, v41, v42
    v_cmp_le_i32 s[52:53], 0, v41
    s_nop 1
    s_and_b64 vcc, vcc, s[52:53]
    s_and_b32 s52, vcc_lo, 0x7fff
    s_cmp_lg_u32 s52, 0
    s_cbranch_scc1 K2_FIX_SLOW
    v_cmp_le_i32 vcc, 0, v47
    s_and_saveexec_b64 s[52:53], vcc
    s_cbranch_execz K2_FIX_DONE
    v_lshlrev_b32 v47, 9, v47
    v_add_u32 v47, {ROWS}, v47
    v_add_u32 v47, v47, v{vN4}""")
    for q in range(4):
        e(f"""    ds_read_b32 v{16+q}, v45 offset:{128*q}
    ds_read_b32 v{20+q}, v47 offset:{128*q}""")
    e("    s_waitcnt lgkmcnt(0)")
    for q in range(4):
        e(f"""    v_add_f32 v{16+q}, v{16+q}, v{20+q}
    ds_write_b32 v47, v{16+q} offset:{128*q}""")
    e(f"""    s_branch K2_FIX_DONE
K2_FIX_SLOW:
    s_mov_b64 s[52:53], exec
    s_cmp_lg_u32 {sWV}, 0
    s_cbranch_scc1 K2_FIX_DONE
    s_mov_b32 s3, 0
K2_FIX_SL:
    v_readlane_b32 s49, v41, s3
    s_nop 3
    s_cmp_lt_i32 s49, 0
    s_cbranch_scc1 K2_FIX_SN
    s_lshl_b32 s49, s49, 9
    s_add_u32 s49, s49, {ROWS}
    s_lshl_b32 s54, s3, 9
    s_add_u32 s54, s54, {HEADS}
    v_lshlrev_b32 v45, 3, v{vLANE}
    v_add_u32 v46, s54, v45
    v_add_u32 v47, s49, v45
    ds_read_b64 v[16:17], v46
    ds_read_b64 v[18:19], v47
    s_waitcnt lgkmcnt(0)
    v_add_f32 v16, v16, v18
    v_add_f32 v17, v17, v19
    ds_write_b64 v47, v[16:17]
    s_waitcnt lgkmcnt(0)
K2_FIX_SN:
    s_add_u32 s3, s3, 1
    s_cmp_lt_u32 s3, 16
    s_cbranch_scc1 K2_FIX_SL
K2_FIX_DONE:
    s_mov_b64 exec, s[52:53]
    s_waitcnt lgkmcnt(0)
    s_barrier""")
    e(f"""    s_or_b32 s3, {sRND}, {sMORE}
    s_cmp_eq_u32 s3, 0
    s_cbranch_scc1 K2_EPI""")
    c("rare: several rounds. rows += saved (round>0); if more: save rows and restart")
    e(f"""    s_mul_i32 s3, {sB}, {NB*512}
    s_add_u32 s3, s3, {WS_ACC}
    v_lshlrev_b32 v40, 4, v0
    v_add_u32 v41, {ROWS}, v40
    v_add_u32 v42, s3, v40
    s_mov_b32 s49, 0
K2_MR:
    v_cmp_gt_u32 vcc, {NB*512}, v40
    s_and_saveexec_b64 s[52:53], vcc
    s_cbranch_execz K2_MR_N
    ds_read_b128 v[16:19], v41
    s_cmp_eq_u32 {sRND}, 0
    s_cbranch_scc1 K2_MR_A
    buffer_load_dwordx4 v[20:23], v42, {SRD_WS}, 0 offen
    s_waitcnt vmcnt(0) lgkmcnt(0)
    v_add_f32 v16, v16, v20
    v_add_f32 v17, v17, v21
    v_add_f32 v18, v18, v22
    v_add_f32 v19, v19, v23
    ds_write_b128 v41, v[16:19]
K2_MR_A:
    s_waitcnt lgkmcnt(0)
    s_cmp_eq_u32 {sMORE}, 0
    s_cbranch_scc1 K2_MR_N
    buffer_store_dwordx4 v[16:19], v42, {SRD_WS}, 0 offen
    s_waitcnt vmcnt(0)
K2_MR_N:
    s_mov_b64 exec, s[52:53]
    v_add_u32 v40, 8192, v40
    v_add_u32 v41, 8192, v41
    v_add_u32 v42, 8192, v42
    s_add_u32 s49, s49, 1
    s_cmp_lt_u32 s49, 7
    s_cbranch_scc1 K2_MR
    s_waitcnt vmcnt(0) lgkmcnt(0)
    s_barrier
    s_cmp_eq_u32 {sMORE}, 0
    s_cbranch_scc1 K2_EPI
    s_mov_b32 {sRND}, 1
    s_branch K2_ROUND_INIT""")
    e("K2_EPI:")
    stamp()
    c("wave (rho, fb): node = 32rho+8i+4h+j, feature = 32fb+n")
    e(f"""    s_lshl_b32 s3, {sRHO}, 12
    s_lshl_b32 s49, {sFB}, 6
    s_add_u32 s3, s3, s49
    v_lshlrev_b32 v2, 9, v{vH}
    v_lshl_add_u32 v2, v{vN}, 1, v2
    v_add_u32 v2, s3, v2""")
    for r in range(16):
        i, j = r >> 2, r & 3
        e(f"    buffer_load_ushort v{64+r}, v2, {SRD_XB}, 0 offen offset:{(8*i+j)*128}")
    e(f"""    s_lshl_b32 s3, {sRHO}, 14
    s_lshl_b32 s49, {sFB}, 7
    s_add_u32 s3, s3, s49
    s_add_u32 s3, s3, {ROWS}
    v_lshlrev_b32 v3, 11, v{vH}
    v_add_u32 v3, v3, v{vN4}
    v_add_u32 v3, s3, v3""")
    for r in range(16):
        i, j = r >> 2, r & 3
        e(f"    ds_read2st64_b32 v[{80+2*r}:{81+2*r}], v3 offset0:{(8*i+j)*2} offset1:{(8*i+j)*2+1}")
    if 'fine3' in X: stamp_at(11)
    e(f"    s_mov_b32 s49, {f32bits(1e-6):#x}")
    e("    s_waitcnt lgkmcnt(0)")
    if 'fine3' in X: stamp_at(12)
    for r in range(16):
        e(f"    v_add_f32 v{80+2*r}, s49, v{80+2*r}")
    for r in range(16):
        e(f"    v_rcp_f32 v{80+2*r}, v{80+2*r}")
    for r in range(16):
        e(f"    v_accvgpr_read_b32 v{112+r}, a{aU+r}")
    for r in range(16):
        e(f"    v_fma_f32 v{112+r}, v{81+2*r}, v{80+2*r}, v{112+r}")
    for r in range(16):
        e(f"    v_max_f32 v{112+r}, 0, v{112+r}")
    if 'fine3' in X: stamp_at(13)
    e("    s_waitcnt vmcnt(0)")
    if 'fine3' in X: stamp_at(14)
    for r in range(16):
        e(f"""    v_lshlrev_b32 v{64+r}, 16, v{64+r}
    v_add_f32 v{112+r}, v{112+r}, v{64+r}""")
    for r in range(0, 16, 2):
        e(f"    v_cvt_pk_bf16_f32 v{80+r//2}, v{112+r}, v{113+r}")
    for r in range(0, 16, 2):
        i, j = r >> 2, r & 3
        e(f"""    buffer_store_short v{80+r//2}, v2, {SRD_OUT}, 0 offen offset:{(8*i+j)*128}
    buffer_store_short_d16_hi v{80+r//2}, v2, {SRD_OUT}, 0 offen offset:{(8*i+j+1)*128}""")
    stamp()
    if DBG and 'fine' not in X: e(f"    s_waitcnt vmcnt(0)\n    s_memrealtime s[98:99]\n    s_waitcnt lgkmcnt(0)\n    v_writelane_b32 v{vDBG}, s98, 15")
    stamp_flush(sWV, 1)
    e("K2_END:\n    s_endpgm\nK2_CODE_END:")

def desc(name, nv, acc, ns):
    return f""".amdhsa_kernel {name}
  .amdhsa_next_free_vgpr {nv}
  .amdhsa_next_free_sgpr {ns}
  .amdhsa_accum_offset {acc}
  .amdhsa_group_segment_fixed_size 0
  .amdhsa_kernarg_size 96
  .amdhsa_user_sgpr_count 2
  .amdhsa_user_sgpr_kernarg_segment_ptr 1
  .amdhsa_system_sgpr_workgroup_id_x 1
  .amdhsa_float_denorm_mode_32 3
.end_amdhsa_kernel"""

def main(out):
    hdr = open('gather_scatter__edge_featured_mpnn_gatedgcn__graph.s.ref').read().split('\n')
    head = [x for x in hdr if x.startswith(';') and '@launch' not in x and 'Override launch' not in x and 'grid=ceil' not in x]
    for x in head: e(x)
    e(f"; @launch kernel=k1_kernel grid=({NCH+8},1,1) block=(448,1,1) lds={K1_LDS}")
    e(f"; @launch kernel=k2_kernel grid=({NBINS},1,1) block=(512,1,1) lds={K2_LDS}")
    e('.amdgcn_target "amdgcn-amd-amdhsa--gfx950"')
    e(".text")
    gen_k1()
    gen_k2()
    e('.section .rodata,"a"\n.p2align 6')
    e(desc("k1_kernel", 96, 96, 40))
    e(desc("k2_kernel", 256, 128, 100))
    open(out, 'w').write("\n".join(L) + "\n")

if __name__ == "__main__":
    main(sys.argv[1] if len(sys.argv) > 1 else "gather_scatter__edge_featured_mpnn_gatedgcn__graph.s")
```

```python
import sys, struct

N = 25000
E = 800000
NB = 98
NBINS = 256
NCH = 250
CH = 3200

WS_REC = 0
WS_TAB = 0x700000
WS_W = 0x780000
WS_ACC = 0x800000
WS_SIZE = 0x2000000

LOG2E = 1.4426950408889634
def f32bits(x): return struct.unpack('<I', struct.pack('<f', x))[0]
NEG_LOG2E = f32bits(-LOG2E)
BIG = f32bits(2.0**100)

K1_HIST = 0
K1_OFFS = 1024
K1_STAGE = 2048
K1_LDS = 2048 + CH * 8

A_OFF = 0
CNT = 16384
GS = CNT + 768
GSA = GS + 512
HEADN = GSA + 768
FLAG = HEADN + 64
GAT = 18688
GFT = GAT + 4096
GKT = GFT + 4096
RECS = GKT + 4096
DUMMY = RECS + 31232
ROWS = DUMMY + 512
HEADS = ROWS + NB * 512
XST = HEADS + 16 * 512
K2_LDS = XST + 32768
XBS = RECS
assert GAT % 256 == 0 and XST % 128 == 0 and XBS % 128 == 0
GMAX = 960

import os
DBG = int(os.environ.get('DBG','0'))
WS_DBG = 0x1800000
X = set(os.environ.get('X','').split(','))
NST = [0]
vDBG = 38
def stamp(name=None):
    if not DBG: return
    i = NST[0]; NST[0] += 1
    e(f"    s_memtime s[96:97]")
    e(f"    s_waitcnt lgkmcnt(0)")
    e(f"    v_writelane_b32 v{vDBG}, s96, {i}")
NST1 = [0]
def stamp1():
    if not DBG: return
    i = NST1[0]; NST1[0] += 1
    e(f"    s_memtime s[32:33]")
    e(f"    s_waitcnt lgkmcnt(0)")
    e(f"    v_writelane_b32 v61, s32, {i}")
    if i == 0:
        e("    s_memrealtime s[34:35]\n    s_waitcnt lgkmcnt(0)\n    v_writelane_b32 v61, s34, 14")
def stamp_at(i):
    e(f"    s_memtime s[96:97]")
    e(f"    s_waitcnt lgkmcnt(0)")
    e(f"    v_writelane_b32 v{vDBG}, s96, {i}")
def stamp_flush(wave_sgpr, kid):
    if not DBG: return
    e(f"    s_lshl_b32 s3, s2, 4")
    e(f"    s_add_u32 s3, s3, {wave_sgpr}")
    e(f"    s_lshl_b32 s3, s3, 6")
    e(f"    s_add_u32 s3, s3, {WS_DBG + kid*0x100000}")
    e(f"    s_mov_b64 exec, 0xffff")
    e(f"    v_and_b32 v2, 63, v0")
    e(f"    v_lshlrev_b32 v2, 2, v2")
    e(f"    v_add_u32 v2, s3, v2")
    e(f"    global_store_dword v2, v{vDBG}, {'s[6:7]' if kid else 's[10:11]'}")
    NST[0] = 0
L = []
def e(s=""):
    for line in s.split("\n"):
        L.append(line)
def c(s): L.append("    ; " + s)

def dpp_scan(v):
    for sh in (1, 2, 4, 8):
        e(f"    s_nop 1")
        e(f"    v_add_u32_dpp {v}, {v}, {v} row_shr:{sh} row_mask:0xf bank_mask:0xf")
    e("    s_nop 1")
    e(f"    v_add_u32_dpp {v}, {v}, {v} row_bcast:15 row_mask:0xa bank_mask:0xf")
    e("    s_nop 1")
    e(f"    v_add_u32_dpp {v}, {v}, {v} row_bcast:31 row_mask:0xc bank_mask:0xf")

def gen_k1():
    STP = '' if 'plainst' in X else ('nt sc1' if 'ntst' in X else 'sc1')
    NT = 400
    e(".globl k1_kernel\n.p2align 8\n.type k1_kernel,@function\nk1_kernel:")
    e(f"""    s_cmp_ge_u32 s2, {NCH+8}
    s_cbranch_scc1 K1_END
    s_load_dwordx4 s[4:7], s[0:1], 16
    s_load_dwordx4 s[12:15], s[0:1], 0
    s_load_dwordx2 s[10:11], s[0:1], 88
    s_cmp_ge_u32 s2, {NCH}
    s_cbranch_scc1 K1_PREP
    s_mul_i32 s16, s2, {CH*4}
    v_lshlrev_b32 v1, 4, v0
    v_add_u32 v2, s16, v1
    v_add_u32 v3, {NT*16}, v2
    s_lshr_b32 s17, s16, 1
    v_add_u32 v4, s17, v1
    v_lshlrev_b32 v5, 2, v0
    v_mov_b32 v6, 0
    v_lshrrev_b32 v28, 6, v0
    v_mov_b32 v29, 1
    v_readfirstlane_b32 s23, v28
    v_cmp_gt_u32 vcc, 256, v0
    s_and_saveexec_b64 s[18:19], vcc
    ds_write_b32 v5, v6 offset:{K1_HIST}
    s_mov_b64 exec, s[18:19]
    v_cmp_gt_u32 vcc, {NT}, v0
    s_and_b64 exec, exec, vcc
    s_mov_b64 s[20:21], exec
    s_mov_b32 s22, {-NB & 0xffffffff}
    s_waitcnt lgkmcnt(0)""")
    stamp1()
    LDP = 'nt' if 'ntld' in X else ''
    e(f"""    global_load_dwordx4 v[8:11], v2, s[6:7] {LDP}
    global_load_dwordx4 v[12:15], v3, s[6:7] {LDP}
    s_barrier
    global_load_dwordx4 v[80:83], v2, s[4:5] {LDP}
    global_load_dwordx4 v[84:87], v3, s[4:5] {LDP}
    v_lshrrev_b32 v4, 1, v2
    v_lshrrev_b32 v7, 1, v3
    global_load_dwordx2 v[88:89], v4, s[14:15] {LDP}
    global_load_dwordx2 v[90:91], v7, s[14:15] {LDP}""")
    PF1 = 0
    def prefetch():
        c("light prefetch: every row of x is touched once (brings it into the memory-side cache)")
        e(f"""    s_mul_i32 s17, s2, 100
    v_add_u32 v6, s17, v0
    v_lshlrev_b32 v7, 7, v6
    v_cmp_gt_u32 vcc, 100, v0
    s_and_b64 exec, exec, vcc
    global_load_dword v62, v7, s[12:13]
    s_mov_b64 exec, s[20:21]""")
        if 'nocodepf' not in X:
            c("bring the second kernel's code into the caches (read as data)")
            e(f"""    s_cmp_ge_u32 s2, 16
    s_cbranch_scc1 K1_NOCPF
    s_getpc_b64 s[26:27]
K1_CPF:
    s_add_u32 s26, s26, k2_kernel-K1_CPF
    s_addc_u32 s27, s27, 0
    v_lshlrev_b32 v60, 7, v0
    v_cmp_gt_u32 vcc, (K2_CODE_END-k2_kernel+127)/128, v0
    s_and_b64 exec, exec, vcc
    s_cbranch_execz K1_CPF_SKIP
    global_load_dword v63, v60, s[26:27]
K1_CPF_SKIP:
    s_mov_b64 exec, s[20:21]
K1_NOCPF:""")
    e("    s_waitcnt vmcnt(5)")
    stamp1()
    def binops(k):
        d = 8 + k
        e(f"""    v_mul_u32_u24 v{32+k}, 42800, v{d}
    v_lshrrev_b32 v{32+k}, 22, v{32+k}
    v_mad_i32_i24 v{40+k}, v{32+k}, s22, v{d}
    v_lshlrev_b32 v{32+k}, 2, v{32+k}""")
    for k in range(4): binops(k)
    for k in range(4): e(f"    ds_add_rtn_u32 v{48+k}, v{32+k}, v29 offset:{K1_HIST}")
    e(f"    s_waitcnt vmcnt({4+PF1})")
    for k in range(4, 8): binops(k)
    for k in range(4, 8): e(f"    ds_add_rtn_u32 v{48+k}, v{32+k}, v29 offset:{K1_HIST}")
    e("    s_waitcnt lgkmcnt(0)")
    stamp1()
    e("""    s_barrier
    s_mov_b64 exec, -1
    v_and_b32 v30, 63, v0
    v_lshlrev_b32 v31, 4, v30""")
    e(f"""    ds_read_b128 v[8:11], v31 offset:{K1_HIST}
    s_waitcnt lgkmcnt(0)
    v_add_u32 v12, v8, v9
    v_add_u32 v13, v12, v10
    v_add_u32 v14, v13, v11
    v_mov_b32 v15, v14""")
    dpp_scan("v15")
    e(f"""    v_sub_u32 v16, v15, v14
    v_add_u32 v17, v16, v8
    v_add_u32 v18, v16, v12
    v_add_u32 v19, v16, v13
    ds_write_b128 v31, v[16:19] offset:{K1_OFFS}
    v_lshl_or_b32 v20, v17, 16, v16
    v_lshl_or_b32 v21, v18, 16, v17
    v_lshl_or_b32 v22, v19, 16, v18
    v_lshl_or_b32 v23, v15, 16, v19
    s_lshl_b32 s24, s2, 10
    s_add_u32 s24, s24, {WS_TAB}
    v_add_u32 v24, s24, v31
    s_waitcnt lgkmcnt(0)""")
    stamp1()
    e("    s_mov_b64 exec, s[20:21]")
    for k in range(8):
        e(f"    ds_read_b32 v{8+k}, v{32+k} offset:{K1_OFFS}")
    e("    s_waitcnt vmcnt(0)")
    e(f"""    s_cmp_lg_u32 s23, 0
    s_cbranch_scc1 K1_NOTAB2
    s_mov_b64 exec, -1
    global_store_dwordx4 v24, v[20:23], s[10:11] {STP}
    s_mov_b64 exec, s[20:21]
K1_NOTAB2:""")
    if 'nopf1' not in X: prefetch()
    for k in range(8):
        e(f"""    v_lshlrev_b32 v{64+2*k}, 7, v{80+k}
    v_lshl_or_b32 v{64+2*k}, v{40+k}, 24, v{64+2*k}""")
    for k in range(8):
        src = 88 + k//2
        e(f"    v_and_b32 v{65+2*k}, 0xffff, v{src}" if k % 2 == 0 else f"    v_lshrrev_b32 v{65+2*k}, 16, v{src}")
    e("    s_waitcnt lgkmcnt(0)")
    for k in range(8):
        e(f"    v_add_lshl_u32 v{8+k}, v{8+k}, v{48+k}, 3")
    for k in range(8):
        e(f"    ds_write_b64 v{8+k}, v[{64+2*k}:{65+2*k}] offset:{K1_STAGE}")
    e("    s_waitcnt lgkmcnt(0)")
    stamp1()
    e("    s_barrier")
    for k in range(4):
        e(f"    ds_read_b128 v[{8+4*k}:{11+4*k}], v1 offset:{K1_STAGE+6400*k}")
    e(f"""    s_mul_i32 s24, s2, {CH*8}
    v_add_u32 v24, s24, v1""")
    for k in range(1, 4):
        e(f"    v_add_u32 v{24+k}, {6400*k}, v24")
    for k in range(4):
        e(f"    s_waitcnt lgkmcnt({3-k})\n    global_store_dwordx4 v{24+k}, v[{8+4*k}:{11+4*k}], s[10:11] {STP}")
    stamp1()
    if DBG:
        e("    s_waitcnt vmcnt(0)")
        stamp1()
        e("    s_memrealtime s[34:35]\n    s_waitcnt lgkmcnt(0)\n    v_writelane_b32 v61, s34, 15")
        e(f"""    s_lshl_b32 s3, s2, 4
    s_add_u32 s3, s3, s23
    s_lshl_b32 s3, s3, 6
    s_add_u32 s3, s3, {WS_DBG}
    s_mov_b64 exec, 0xffff
    v_and_b32 v2, 63, v0
    v_lshlrev_b32 v2, 2, v2
    v_add_u32 v2, s3, v2
    global_store_dword v2, v61, s[10:11]""")
    e("    s_endpgm")
    e(f"""K1_PREP:
    s_sub_u32 s16, s2, {NCH}
    s_and_b32 s30, s16, 1
    s_lshr_b32 s16, s16, 1
    s_mov_b32 s26, 1.0
    s_cmp_eq_u32 s16, 0
    s_cbranch_scc1 K1_P0
    s_cmp_eq_u32 s16, 1
    s_cbranch_scc1 K1_P1
    s_cmp_eq_u32 s16, 2
    s_cbranch_scc1 K1_P2
    s_load_dwordx2 s[24:25], s[0:1], 56
    s_branch K1_PJ
K1_P0:
    s_load_dwordx2 s[24:25], s[0:1], 40
    s_mov_b32 s26, {NEG_LOG2E:#x}
    s_branch K1_PJ
K1_P1:
    s_load_dwordx2 s[24:25], s[0:1], 64
    s_branch K1_PJ
K1_P2:
    s_load_dwordx2 s[24:25], s[0:1], 32
    s_mov_b32 s26, {NEG_LOG2E:#x}
K1_PJ:
    s_load_dwordx2 s[28:29], s[0:1], 48
    s_lshl_b32 s31, s30, 8
    v_add_u32 v9, s31, v0
    v_and_b32 v1, 63, v9
    v_lshrrev_b32 v2, 6, v9
    v_and_b32 v3, 31, v1
    v_lshrrev_b32 v4, 5, v1
    v_lshrrev_b32 v5, 1, v2
    v_and_b32 v6, 1, v2
    v_lshlrev_b32 v7, 11, v5
    v_lshl_add_u32 v7, v4, 10, v7
    v_lshl_add_u32 v7, v6, 6, v7
    v_lshl_add_u32 v7, v3, 1, v7
    s_lshl_b32 s17, s16, 13
    s_add_u32 s17, s17, {WS_W}
    v_lshlrev_b32 v8, 4, v9
    v_add_u32 v8, s17, v8
    s_waitcnt lgkmcnt(0)
    v_cmp_gt_u32 vcc, 256, v0
    s_and_saveexec_b64 s[18:19], vcc
    s_cbranch_execz K1_PWC""")
    for j in range(8):
        e(f"    global_load_ushort v{10+j}, v7, s[24:25] offset:{128*j}")
    e("    s_waitcnt vmcnt(0)")
    for j in range(8):
        e(f"""    v_lshlrev_b32 v{10+j}, 16, v{10+j}
    v_mul_f32 v{10+j}, s26, v{10+j}""")
    for j in range(4):
        e(f"    v_cvt_pk_bf16_f32 v{20+j}, v{10+2*j}, v{11+2*j}")
    e(f"""    global_store_dwordx4 v8, v[20:23], s[10:11]
K1_PWC:
    s_mov_b64 exec, s[18:19]
    s_or_b32 s17, s16, s30
    s_cmp_lg_u32 s17, 0
    s_cbranch_scc1 K1_END
    v_subrev_u32 v9, 256, v0
    v_and_b32 v3, 31, v9
    v_bfe_u32 v4, v9, 5, 1
    v_cmp_gt_u32 vcc, 128, v9
    s_and_saveexec_b64 s[18:19], vcc
    s_cbranch_execz K1_END
    v_lshrrev_b32 v6, 6, v9
    v_lshlrev_b32 v7, 6, v6
    v_lshl_add_u32 v7, v3, 1, v7
    global_load_ushort v10, v7, s[28:29]
    v_lshlrev_b32 v8, 2, v9
    v_add_u32 v8, {WS_W+32768}, v8
    v_mov_b32 v12, {BIG:#x}
    s_waitcnt vmcnt(0)
    v_lshlrev_b32 v10, 16, v10
    v_mul_f32 v10, {NEG_LOG2E:#x}, v10
    v_cvt_pk_bf16_f32 v11, v10, v12
    v_cmp_eq_u32 vcc, 0, v4
    s_nop 1
    v_cndmask_b32 v11, 0, v11, vcc
    global_store_dword v8, v11, s[10:11]
K1_END:
    s_endpgm""")

S_X, S_WS, S_OUT = "s[4:5]", "s[6:7]", "s[8:9]"
SRD_X, SRD_XB, SRD_OUT, SRD_WS = "s[12:15]", "s[16:19]", "s[20:23]", "s[24:27]"
sB, sWV, sT, sCNT, sN0, sNL = "s28", "s29", "s30", "s31", "s33", "s34"
s4T, sG, sRND, sMORE, sKM = "s35", "s36", "s37", "s38", "s39"
sMSK22, sMSKA, sM0B = "s45", "s46", "s47"
sRHO, sFB = "s50", "s51"
sMASK = 56

GA, HA, GB, HB = 64, 80, 96, 112
ACC = {'A': 56, 'B': 58}
vXR = [2, 3, 4, 5]
vSRC_RD, vEW_RD, vGA_RD, vGF_RD = 6, 7, 8, 9
vCHA, vCHB, vAFC, vN4 = 10, 11, 12, 13
vN, vH = 14, 15
vGF = [16, 20]
vSRC = 24
vGA, vAFA = 28, 29
vLEN, vBASE = (30, 31), (32, 33)
vXP = 34
vGK = [40, 44]
vUT = 48
aWB, aWV, aAFA, aAFB, aO, aU = 0, 32, 80, 84, 88, 96
aX = [64, 112]

INLOOP = [False]
def mfma(d, a, b, cc):
    if 'nomfma' in X and INLOOP[0]: return "    s_nop 0"
    return f"    v_mfma_f32_32x32x16_bf16 {d}, {a}, {b}, {cc}"
def vr(b, n): return f"v[{b}:{b+n-1}]"
def ar(b, n): return f"a[{b}:{b+n-1}]"

def mfma_group(fb, xb):
    G, H = (GA, HA) if fb == 'A' else (GB, HB)
    f = 0 if fb == 'A' else 1
    af = aAFA if fb == 'A' else aAFB
    out = [mfma(vr(G, 16), ar(aO, 4), ar(af, 4), "0")]
    gs_ = [mfma(vr(G, 16), ar(aX[xb] + 4*s, 4), ar(aWB + (s*2+f)*4, 4), vr(G, 16)) for s in range(4)]
    hs_ = [mfma(vr(H, 16), ar(aX[xb] + 4*s, 4), ar(aWV + (s*2+f)*4, 4), "0" if s == 0 else vr(H, 16)) for s in range(4)]
    if 'swapop' in X:
        gs_ = gs_
    if 'share' in X:
        for s in range(4): out += [gs_[s], hs_[s]]
    else:
        out += gs_ + hs_
    return out

def dma_issue():
    grp = []
    for k in range(4):
        ch = vCHA if k % 2 == 0 else vCHB
        g = [f"    v_and_or_b32 v{vSRC+k}, v{vSRC+k}, {sMSK22}, v{ch}"]
        g.append(f"    s_mov_b32 m0, {sM0B}" if k == 0 else "    s_add_u32 m0, m0, 1024")
        g.append("    s_nop 0")
        if 'nodma' not in X: g.append(f"    buffer_load_dwordx4 v{vSRC+k}, {SRD_X}, 0 offen lds")
        grp.append(g)
    return grp

def src_reads(o1):
    return [f"    ds_read2_b32 v[{vSRC}:{vSRC+1}], v{vSRC_RD} offset0:{32*o1} offset1:{32*o1+8}",
            f"    ds_read2_b32 v[{vSRC+2}:{vSRC+3}], v{vSRC_RD} offset0:{32*o1+16} offset1:{32*o1+24}"]

def reads_next(xb, o1=0):
    o = []
    for s in range(4):
        o.append(f"    ds_read_b128 {ar(aX[xb]+4*s,4)}, v{vXR[s]}")
    o.append(f"    ds_read_b32 v{vGA}, v{vGA_RD} offset:{16*o1}")
    o += src_reads(o1)
    o.append(f"    ds_read_b32 a{aO+2}, v{vEW_RD} offset:{128*o1}")
    return o

def after_reads(npar, o1=0):
    return [f"    v_and_or_b32 v{vAFA}, v{vGA}, {sMSKA}, v{vAFC}",
            f"    ds_read_b64_tr_b16 {ar(aAFA,2)}, v{vAFA}",
            f"    ds_read_b64_tr_b16 {ar(aAFB,2)}, v{vAFA} offset:64",
            f"    ds_read_b128 {vr(vGF[npar],4)}, v{vGF_RD} offset:{16*o1}",
            f"    ds_read_b128 {vr(vGK[npar],4)}, v{vGF_RD} offset:{GKT-GFT+16*o1}"]
def gf_fix(npar):
    return [f"    v_add_u32 v{vGF[npar]+i}, v{vGF[npar]+i}, v{vN4}" for i in range(4)]

def advance_addrs(m):
    return [f"    v_add_u32 v{vEW_RD}, {128*m}, v{vEW_RD}", f"    v_add_u32 v{vSRC_RD}, {128*m}, v{vSRC_RD}",
            f"    v_add_u32 v{vGA_RD}, {16*m}, v{vGA_RD}", f"    v_add_u32 v{vGF_RD}, {16*m}, v{vGF_RD}"]

def phase(fb, par, mf, ex1, ex2):
    G, H = (GA, HA) if fb == 'A' else (GB, HB)
    d = ACC[fb]
    nov = 'novalu' in X
    def run(op, mfs, mpos, ex):
        k = 0
        for j in range(17):
            while k < len(mfs) and mpos[k] == j:
                e(mfs[k]); k += 1
            for x in ex.get(j, []): e(x)
            if j < 16: e(f"    {op} v{G+j}, v{G+j}" if not nov else "    s_nop 0")
        assert k == len(mfs)
    run("v_exp_f32", mf[0:5], [0, 3, 6, 9, 12], ex1)
    for j in range(0, 16, 2):
        e(f"    v_pk_add_f32 v[{G+j}:{G+j+1}], v[{G+j}:{G+j+1}], 1.0 op_sel_hi:[1,0]" if not nov else "    s_nop 0")
    run("v_rcp_f32", mf[5:9], [0, 3, 6, 9], ex2)
    f = 0 if fb == 'A' else 1
    clump = 'noclump' not in X
    xs = [34, 36, 60, 62]
    prev = d
    wr = []
    for i in range(4):
        g = G + 4*i; h = H + 4*i; k = vGK[par] + i
        u = vUT + 4*(i & 1); t = u + 2
        x = xs[i] if clump else vXP + 2*(i & 1)
        dst = (x if i < 3 else d) if clump else d
        if not nov:
            e(f"    v_pk_mul_f32 v[{t}:{t+1}], v[{g}:{g+1}], v[{h}:{h+1}]")
            e(f"    v_pk_add_f32 v[{u}:{u+1}], v[{g}:{g+1}], v[{g+2}:{g+3}]")
            e(f"    v_pk_fma_f32 v[{t}:{t+1}], v[{g+2}:{g+3}], v[{h+2}:{h+3}], v[{t}:{t+1}]")
            e(f"    v_add_f32 v{x}, v{u}, v{u+1}")
            e(f"    v_add_f32 v{x+1}, v{t}, v{t+1}")
            e(f"    v_pk_fma_f32 v[{dst}:{dst+1}], v[{prev}:{prev+1}], v[{k & ~1}:{(k & ~1)+1}], v[{x}:{x+1}] op_sel:[0,{k&1},0] op_sel_hi:[1,{k&1},1]")
            w = f"    ds_write2_b32 v{vGF[par]+i}, v{dst}, v{dst+1} offset0:{f*32} offset1:{64+f*32}"
            if 'nowr' not in X:
                if clump: wr.append(w)
                else: e(w)
            prev = dst
    for w in wr: e(w)

def tile_body(par):
    npar = 1 - par
    dm = dma_issue()
    ex1 = {1: ["    s_waitcnt vmcnt(0)"] + reads_next(npar, par)}
    ex2 = {1: ["    s_waitcnt lgkmcnt(0)"] + after_reads(npar, par), 4: dm[0], 7: dm[1], 10: dm[2], 12: dm[3]}
    if 'nodmaclump' not in X:
        ex2 = {1: ["    s_waitcnt lgkmcnt(0)"] + after_reads(npar, par), 4: dm[0] + dm[1] + dm[2] + dm[3]}
    if par == 1: ex2[14] = advance_addrs(2)
    exB1 = {2: gf_fix(npar)}
    pa, pb = 3 - 2*par, 2 - 2*par
    if 'prioAB' in X: pa, pb = 1, 0
    if 'prioBA' in X: pa, pb = 0, 1
    if 'prio2' in X: pa, pb = (1, 1) if par == 0 else (0, 0)
    if 'noprio' not in X: e(f"    s_setprio {pa}")
    phase('A', par, mfma_group('B', par), ex1, ex2)
    if 'noprio' not in X: e(f"    s_setprio {pb}")
    mA = mfma_group('A', npar)
    mA[0] = ("    s_waitcnt lgkmcnt(4)\n" if 'nowr' not in X and 'novalu' not in X else "    s_waitcnt lgkmcnt(0)\n") + mA[0]
    phase('B', par, mA, exB1, {})

vLANE = 1
vTAB = (16, 17)
vLR, vREM = (18, 19), (20, 21)
vREC = 64
vA = 96
vRK = 112
def slot_list(ks):
    for k in ks:
        for r in range(2):
            for p in range(2):
                yield k, r, p, (2*k+r)*2 + p
def msk(q): return f"s[{sMASK+2*q}:{sMASK+2*q+1}]"

def slot_pass(name, fns):
    for fn in fns:
        for sl in slot_list([0, 1]):
            e(fn(*sl))
    for k in (2, 3):
        e(f"    s_cmp_le_u32 {sKM}, {k}\n    s_cbranch_scc1 {name}_DONE")
        for fn in fns:
            for sl in slot_list([k]):
                e(fn(*sl))
    e(f"{name}_DONE:")

def seg_masks():
    c("per-round segment limits and slot masks")
    for r in range(2):
        e(f"    v_sub_u32 v{vREM[r]}, v{vLR[r]}, v22")
    for k, r, p, q in slot_list(range(4)):
        e(f"    v_cmp_lt_i32 {msk(q)}, {8*k+p}, v{vREM[r]}")
    q20, q21, q30, q31 = 8, 10, 12, 14
    e(f"""    s_mov_b32 {sKM}, 2
    s_or_b64 s[52:53], {msk(q20)}, {msk(q21)}
    s_cmp_lg_u64 s[52:53], 0
    s_cselect_b32 {sKM}, 3, {sKM}
    s_or_b64 s[52:53], {msk(q30)}, {msk(q31)}
    s_cmp_lg_u64 s[52:53], 0
    s_cselect_b32 {sKM}, 4, {sKM}""")

PFN = 2 if 'pf2' in X else 0
def gen_k2():
    e(".globl k2_kernel\n.p2align 8\n.type k2_kernel,@function\nk2_kernel:")
    e(f"""    s_cmp_ge_u32 s2, {NBINS}
    s_cbranch_scc1 K2_END
    s_load_dwordx2 {S_WS}, s[0:1], 88
    s_load_dwordx2 {S_X}, s[0:1], 0
    s_load_dwordx2 {S_OUT}, s[0:1], 72
    s_and_b32 {sB}, s2, 7
    s_lshl_b32 {sB}, {sB}, 5
    s_lshr_b32 s3, s2, 3
    s_add_u32 {sB}, {sB}, s3
    s_mul_i32 {sN0}, {sB}, {NB}
    s_sub_u32 {sNL}, {N}, {sN0}
    s_min_u32 {sNL}, {sNL}, {NB}
    v_lshrrev_b32 v2, 6, v0
    v_and_b32 v{vLANE}, 63, v0
    v_readfirstlane_b32 {sWV}, v2
    s_mov_b32 {sMSK22}, 0x3fffff
    s_mov_b32 {sMSKA}, 0x3f80
    s_mov_b32 {sRND}, 0
    s_lshl_b32 s3, {sN0}, 7
    s_lshl_b32 s49, {sNL}, 7
    v_lshrrev_b32 v2, 2, v0
    v_lshlrev_b32 v3, 10, v2
    s_lshl_b32 s48, {sB}, 2
    s_add_u32 s48, s48, {WS_TAB}
    v_add_u32 v3, s48, v3
    v_add_u32 v4, {128*1024}, v3
    s_waitcnt lgkmcnt(0)
    s_mov_b32 s24, s6
    s_mov_b32 s25, s7
    s_mov_b32 s26, {WS_SIZE}
    s_mov_b32 s27, 0x00020000
    buffer_load_dword v{vTAB[0]}, v3, {SRD_WS}, 0 offen
    buffer_load_dword v{vTAB[1]}, v4, {SRD_WS}, 0 offen
    s_mov_b32 s12, s4
    s_mov_b32 s13, s5
    s_mov_b32 s14, {N*128}
    s_mov_b32 s15, 0x00020000
    s_add_u32 s16, s4, s3
    s_addc_u32 s17, s5, 0
    s_mov_b32 s18, s49
    s_mov_b32 s19, 0x00020000
    s_add_u32 s20, s8, s3
    s_addc_u32 s21, s9, 0
    s_mov_b32 s22, s49
    s_mov_b32 s23, 0x00020000""")
    stamp()
    if DBG and 'fine' not in X: e(f"    s_memrealtime s[98:99]\n    s_waitcnt lgkmcnt(0)\n    v_writelane_b32 v{vDBG}, s98, 14")
    if 'nobar0' not in X: e("    s_barrier")
    c("lane constants")
    e(f"""    s_lshr_b32 {sRHO}, {sWV}, 1
    s_and_b32 {sFB}, {sWV}, 1
    v_and_b32 v{vN}, 31, v{vLANE}
    v_lshrrev_b32 v{vH}, 5, v{vLANE}
    v_lshrrev_b32 v22, 4, v{vLANE}
    v_and_b32 v{vCHB}, 7, v{vLANE}
    v_xor_b32 v{vCHA}, v22, v{vCHB}
    v_lshlrev_b32 v{vCHA}, 4, v{vCHA}
    v_xor_b32 v{vCHB}, 64, v{vCHA}""")
    c("W fragments -> LDS (XST area), 4KB per wave")
    e(f"""    s_lshl_b32 s3, {sWV}, 12
    s_add_u32 {sM0B}, s3, {XST}
    s_mov_b32 m0, {sM0B}
    v_lshlrev_b32 v3, 4, v{vLANE}
    s_add_u32 s3, s3, {WS_W}
    v_add_u32 v3, s3, v3""")
    for k in range(4):
        e(f"    buffer_load_dwordx4 v3, {SRD_WS}, 0 offen offset:{1024*k} lds")
    c("x_bin rows 16w..16w+15 -> LDS (swizzled)")
    e(f"""    s_lshl_b32 s3, {sWV}, 11
    s_add_u32 s48, s3, {XBS}
    s_mov_b32 m0, s48
    v_lshrrev_b32 v22, 3, v{vLANE}
    v_lshlrev_b32 v22, 7, v22
    v_add_u32 v22, s3, v22
    v_add_u32 v3, v22, v{vCHA}
    v_add_u32 v4, v22, v{vCHB}
    v_add_u32 v4, 1024, v4
    buffer_load_dwordx4 v3, {SRD_XB}, 0 offen lds
    s_add_u32 m0, m0, 1024
    v_lshlrev_b32 v7, 2, v{vLANE}
    buffer_load_dwordx4 v4, {SRD_XB}, 0 offen lds""")
    c("wc words")
    e(f"""    v_add_u32 v7, {WS_W+32768}, v7
    buffer_load_dword a{aAFA+2}, v7, {SRD_WS}, 0 offen
    buffer_load_dword a{aAFB+2}, v7, {SRD_WS}, 0 offen offset:256""")
    e(f"""    v_bfe_u32 v22, v{vN}, 1, 3
    v_xor_b32 v22, v22, v{vH}
    v_lshlrev_b32 v22, 4, v22
    v_lshl_add_u32 v22, v{vN}, 7, v22
    v_add_u32 v{vXR[0]}, {sM0B}, v22""")
    for s in range(1, 4):
        e(f"    v_xor_b32 v{vXR[s]}, {32*s}, v{vXR[0]}")
    e(f"""    v_bfe_u32 v22, v{vLANE}, 4, 1
    v_and_b32 v{vAFC}, 3, v{vLANE}
    v_lshlrev_b32 v{vAFC}, 3, v{vAFC}
    v_lshl_add_u32 v{vAFC}, v22, 5, v{vAFC}
    v_lshlrev_b32 v{vN4}, 2, v{vN}""")
    e(f"""    v_lshrrev_b32 v40, 3, v{vN}
    v_bfe_u32 v41, v{vN}, 2, 1
    v_cmp_eq_u32 vcc, v41, v{vH}
    v_mov_b32 v42, 0x3f80
    v_and_b32 v43, 1, v40
    v_cndmask_b32 v42, 0, v42, vcc
    v_lshlrev_b32 v43, 4, v43
    v_lshlrev_b32 v42, v43, v42
    v_cmp_gt_u32 vcc, 2, v40
    v_mov_b32 v45, 0
    s_nop 0
    v_cndmask_b32 v43, 0, v42, vcc
    v_cndmask_b32 v44, v42, 0, vcc
    v_accvgpr_write_b32 a{aO}, v43
    v_accvgpr_write_b32 a{aO+1}, v44
    v_accvgpr_write_b32 a{aO+3}, v45
    v_accvgpr_write_b32 a{aAFA+3}, v45
    v_accvgpr_write_b32 a{aAFB+3}, v45""")
    e("K2_ROUND_INIT:")
    c("LDS init: cnt = 0, headn = -1, flag = 0")
    e(f"""    v_lshlrev_b32 v40, 2, v0
    v_mov_b32 v41, 0
    v_cmp_gt_u32 vcc, 192, v0
    s_and_saveexec_b64 s[52:53], vcc
    ds_write_b32 v40, v41 offset:{CNT}
    v_cmp_gt_u32 vcc, 17, v0
    s_and_b64 exec, exec, vcc
    v_cmp_gt_u32 vcc, 16, v0
    v_mov_b32 v42, -1
    s_nop 0
    v_cndmask_b32 v42, 0, v42, vcc
    ds_write_b32 v40, v42 offset:{HEADN}
    s_mov_b64 exec, s[52:53]
    v_and_b32 v22, 3, v0
    v_lshlrev_b32 v22, 1, v22""")
    assert FLAG == HEADN + 64
    e(f"""    s_cmp_lg_u32 {sRND}, 0
    s_cbranch_scc1 K2_ROUND_N""")
    c("segment descriptors: segment r of this thread = (tid>>2) + 128 r ; c = tid&3")
    e(f"""    v_lshrrev_b32 v40, 2, v0
    v_add_u32 v41, 128, v40
    v_cmp_gt_u32 vcc, {NCH}, v41
    v_mul_u32_u24 v40, {CH}, v40
    v_mul_u32_u24 v41, {CH}, v41
    v_add_u32 v40, v40, v22
    v_add_u32 v41, v41, v22
    s_waitcnt vmcnt(0)
    v_and_b32 v42, 0xffff, v{vTAB[0]}
    v_lshrrev_b32 v43, 16, v{vTAB[0]}
    v_and_b32 v44, 0xffff, v{vTAB[1]}
    v_lshrrev_b32 v45, 16, v{vTAB[1]}
    v_sub_u32 v{vLEN[0]}, v43, v42
    v_sub_u32 v{vLEN[1]}, v45, v44
    v_add_lshl_u32 v{vBASE[0]}, v40, v42, 3
    v_add_lshl_u32 v{vBASE[1]}, v41, v44, 3
    v_cndmask_b32 v{vLEN[1]}, 0, v{vLEN[1]}, vcc
K2_ROUND_N:
    v_min_u32 v{vLR[0]}, 32, v{vLEN[0]}
    v_min_u32 v{vLR[1]}, 32, v{vLEN[1]}""")
    seg_masks()
    stamp()
    def rec_loads():
        c("record loads")
        for k in range(4):
            for r in range(2):
                q = (2*k+r)*2
                e(f"    s_mov_b64 exec, {msk(q)}")
                e(f"    buffer_load_dwordx4 {vr(vREC+(2*k+r)*4,4)}, v{vBASE[r]}, {SRD_WS}, 0 offen offset:{64*k}")
        e("    s_mov_b64 exec, -1")
        if 'fine2' in X: stamp_at(12)
    def w_stuff():
        c("x_bin A fragments, W fragments")
        e(f"""    s_lshl_b32 s3, {sRHO}, 12
        s_add_u32 s3, s3, {XBS}
        s_sub_u32 s3, s3, {sM0B}""")
        for s in range(4):
            e(f"    v_add_u32 v{60+s}, s3, v{vXR[s]}")
        e(f"""    v_lshlrev_b32 v22, 4, v{vLANE}
        v_add_u32 v22, {XST}, v22
        s_lshl_b32 s3, {sFB}, 10
        v_add_u32 v23, s3, v22""")
        for s in range(4):
            e(f"    ds_read_b128 {vr(40+4*s,4)}, v{60+s}")
        for s in range(4):
            e(f"    ds_read_b128 {ar(112+4*s,4)}, v23 offset:{16384+2048*s}")
        for s in range(4):
            e(f"    ds_read_b128 {ar(64+4*s,4)}, v23 offset:{24576+2048*s}")
        for k in range(16):
            e(f"    ds_read_b128 {ar(4*k,4)}, v22 offset:{1024*k}")
        e("    s_waitcnt lgkmcnt(15)")
        e("    s_waitcnt lgkmcnt(15)")
        for s in range(4):
            e(mfma(vr(vA,16), vr(40+4*s,4), ar(112+4*s,4), "0" if s == 0 else vr(vA,16)))
        for s in range(4):
            e(mfma(ar(aU,16), vr(40+4*s,4), ar(64+4*s,4), "0" if s == 0 else ar(aU,16)))
        c("A' block -> bf16 -> LDS [node][64]; node = 32rho + 8i+4h+j ; feature = 32fb+n")
        e(f"""    s_lshl_b32 s3, {sRHO}, 12
        s_lshl_b32 s49, {sFB}, 6
        s_add_u32 s3, s3, s49
        v_lshlrev_b32 v22, 9, v{vH}
        v_lshl_add_u32 v22, v{vN}, 1, v22
        v_add_u32 v22, s3, v22
        s_nop 7""")
        for r in range(0, 16, 2):
            e(f"    v_cvt_pk_bf16_f32 v{40+r//2}, v{vA+r}, v{vA+r+1}")
        for r in range(0, 16, 2):
            i, j = r >> 2, r & 3
            e(f"""    ds_write_b16 v22, v{40+r//2} offset:{A_OFF + (8*i+j)*128}
        ds_write_b16_d16_hi v22, v{40+r//2} offset:{A_OFF + (8*i+j+1)*128}""")
    e(f"""    s_cmp_lg_u32 {sRND}, 0
    s_cbranch_scc1 K2_LATER""")
    c("all early loads (table, W, x_bin, wc) have landed: vmcnt(0) above")
    e("    s_waitcnt lgkmcnt(0)\n    s_barrier")
    stamp()
    e(f"    s_cmp_ge_u32 {sWV}, 4\n    s_cbranch_scc1 K2_ORD_B")
    rec_loads()
    w_stuff()
    e("    s_branch K2_COUNT0")
    e("K2_ORD_B:")
    w_stuff()
    rec_loads()
    e("    s_branch K2_COUNT0")
    e("K2_LATER:")
    rec_loads()
    e("K2_SKIPW:")
    e("    s_waitcnt vmcnt(0) lgkmcnt(0)\n    s_barrier")
    e("K2_COUNT0:")
    stamp()
    e("K2_COUNT:")
    c("counting pass (records arrive in k order)")
    e("    v_mov_b32 v40, 1")
    cfn = [lambda k, r, p, q: f"    v_lshrrev_b32 v{vA+q}, 22, v{vREC+(2*k+r)*4+2*p}",
           lambda k, r, p, q: f"    s_mov_b64 exec, {msk(q)}\n    ds_add_rtn_u32 v{vRK+q}, v{vA+q}, v40 offset:{CNT}",
           lambda k, r, p, q: "    s_mov_b64 exec, -1" if q % 4 == 3 else ""]
    for k in range(4):
        if k >= 2: e(f"    s_cmp_le_u32 {sKM}, {k}\n    s_cbranch_scc1 K2_CNT_DONE")
        e(f"    s_waitcnt vmcnt({PFN + 6 - 2*k})")
        if 'fine2' in X and k < 2: stamp_at(13 + k)
        for fn in cfn:
            for sl in slot_list([k]): e(fn(*sl))
    e("K2_CNT_DONE:")
    e("    s_mov_b64 exec, -1\n    s_waitcnt lgkmcnt(0)\n    s_barrier")
    stamp()
    c("scan over nodes (every wave redundantly)")
    e(f"""    v_lshlrev_b32 v40, 3, v{vLANE}
    ds_read_b64 v[42:43], v40 offset:{CNT}
    s_waitcnt lgkmcnt(0)
    v_add_u32 v44, 3, v42
    v_add_u32 v45, 3, v43
    v_lshrrev_b32 v44, 2, v44
    v_lshrrev_b32 v45, 2, v45
    v_add_u32 v46, v44, v45
    v_mov_b32 v47, v46""")
    dpp_scan("v47")
    e(f"""    v_sub_u32 v48, v47, v46
    v_add_u32 v49, v48, v44
    v_readlane_b32 {sG}, v47, 63
    v_lshlrev_b32 v50, 5, v48
    v_lshlrev_b32 v51, 5, v49
    v_add_u32 v50, {RECS}, v50
    v_add_u32 v51, {RECS}, v51
    s_cmp_le_u32 {sG}, {GMAX}
    s_cbranch_scc1 K2_FITS""")
    c("overflow: redo this round with 12 records per segment")
    e(f"""    s_barrier
    v_lshlrev_b32 v40, 2, v0
    v_mov_b32 v41, 0
    v_cmp_gt_u32 vcc, 192, v0
    s_and_saveexec_b64 s[52:53], vcc
    ds_write_b32 v40, v41 offset:{CNT}
    s_mov_b64 exec, s[52:53]
    v_min_u32 v{vLR[0]}, 12, v{vLEN[0]}
    v_min_u32 v{vLR[1]}, 12, v{vLEN[1]}
    v_and_b32 v22, 3, v0
    v_lshlrev_b32 v22, 1, v22""")
    seg_masks()
    e(f"""    s_waitcnt lgkmcnt(0)
    s_barrier
    s_branch K2_COUNT
K2_FITS:
    ds_write_b64 v40, v[48:49] offset:{GS}
    ds_write_b64 v40, v[50:51] offset:{GSA}
    s_add_u32 {sT}, {sG}, 63
    s_lshr_b32 {sT}, {sT}, 6
    s_max_u32 {sT}, {sT}, 1
    s_lshl_b32 {s4T}, {sT}, 2
    v_cvt_f32_u32 v52, {s4T}
    v_rcp_f32 v52, v52
    v_lshrrev_b32 v54, 2, v0
    v_lshlrev_b32 v40, 2, v54
    v_mul_f32 v53, 0.5, v52
    s_waitcnt lgkmcnt(0)""")
    if 'fine' in X: stamp()
    c("node data + scatter lookups")
    e(f"""    ds_read_b32 v42, v40 offset:{GS}
    ds_read_b32 v43, v40 offset:{GS+4}
    ds_read_b32 v44, v40 offset:{CNT}""")
    slot_pass("K2_S1", [lambda k, r, p, q: f"    s_mov_b64 exec, {msk(q)}\n    ds_read_b32 v{vA+q}, v{vA+q} offset:{GSA}"])
    e("    s_mov_b64 exec, -1")
    c("more-records flag")
    e(f"""    v_cmp_gt_u32 vcc, v{vLEN[0]}, v{vLR[0]}
    v_cmp_gt_u32 s[52:53], v{vLEN[1]}, v{vLR[1]}
    v_and_b32 v45, 3, v0
    s_nop 0
    s_or_b64 vcc, vcc, s[52:53]
    s_and_saveexec_b64 s[52:53], vcc
    v_mov_b32 v46, 1
    v_mov_b32 v47, {FLAG}
    ds_write_b32 v47, v46
    s_mov_b64 exec, s[52:53]""")
    if 'fine' in X: stamp()
    c("node jobs: thread (nu = tid>>2, q = tid&3)")
    e(f"""    v_cmp_gt_u32 vcc, {NB}, v54
    s_and_b64 exec, exec, vcc
    s_cbranch_execz K2_NODE_DONE
    v_lshlrev_b32 v46, 7, v54
    v_lshlrev_b32 v47, 9, v54
    v_add_u32 v47, {ROWS}, v47
    s_mov_b64 s[54:55], exec
    s_waitcnt lgkmcnt(0)
    v_sub_u32 v43, v43, v42""")
    c("empty nodes: zero the row")
    e(f"""    v_cmp_eq_u32 vcc, 0, v44
    s_and_b64 exec, exec, vcc
    s_cbranch_execz K2_NOZERO
    v_lshl_add_u32 v48, v45, 7, v47
    v_mov_b64 v[56:57], 0
    v_mov_b64 v[58:59], 0""")
    for k in range(8):
        e(f"    ds_write_b128 v48, v[56:59] offset:{16*k}")
    e(f"""K2_NOZERO:
    s_mov_b64 exec, s[54:55]""")
    c("pad slots in the last group")
    e(f"""    v_add_u32 v48, v44, v45
    v_lshlrev_b32 v49, 2, v43
    v_cmp_lt_u32 vcc, v48, v49
    v_lshlrev_b32 v49, 5, v42
    v_lshl_add_u32 v49, v48, 3, v49
    v_mov_b32 v50, 0
    v_mov_b32 v51, 0x3f800000
    s_and_b64 exec, exec, vcc
    ds_write_b64 v49, v[50:51] offset:{RECS}
    s_mov_b64 exec, s[54:55]""")
    c("stream of first / last group")
    e(f"""    v_add_u32 v48, v42, v43
    v_max_u32 v49, 1, v43
    v_add_u32 v49, v42, v49
    v_subrev_u32 v49, 1, v49
    v_cvt_f32_u32 v50, v42
    v_cvt_f32_u32 v51, v49
    v_fma_f32 v50, v50, v52, v53
    v_fma_f32 v51, v51, v52, v53
    v_cvt_u32_f32 v50, v50
    v_cvt_u32_f32 v51, v51
    v_add_u32 v55, 1, v50
    v_mul_u32_u24 v56, {s4T}, v55
    v_lshlrev_b32 v57, 9, v55
    v_add_u32 v57, {HEADS}, v57
    v_cmp_lt_u32 vcc, v50, v51
    v_lshlrev_b32 v58, 2, v55
    s_and_b64 exec, exec, vcc
    ds_write_b32 v58, v54 offset:{HEADN}
    s_mov_b64 exec, s[54:55]""")
    c("groups q, q+4, q+8, q+12 (fast path)")
    e(f"""    v_add_u32 v59, v42, v45
    v_mov_b32 v60, 1.0
    v_mov_b32 v61, 0""")
    for m in range(4):
        e(f"""    v_cmp_lt_u32 vcc, v59, v48
    s_and_b64 exec, exec, vcc
    v_cmp_ge_u32 vcc, v59, v56
    v_cmp_eq_u32 s[52:53], v59, v56
    v_cmp_eq_u32 s[88:89], v59, v42
    v_lshlrev_b32 v62, 2, v59
    v_cndmask_b32 v63, v47, v57, vcc
    s_or_b64 s[52:53], s[52:53], s[88:89]
    ds_write2st64_b32 v62, v46, v63 offset0:{GAT//256} offset1:{GFT//256}
    v_cndmask_b32 v63, v60, v61, s[52:53]
    v_add_u32 v59, 4, v59
    ds_write_b32 v62, v63 offset:{GKT}""")
    c("rare: more than 16 groups, or a node spanning more than two streams")
    e(f"""    s_mov_b64 exec, s[54:55]
    v_cmp_lt_u32 vcc, 16, v43
    v_add_u32 v59, 1, v50
    v_cmp_lt_u32 s[52:53], v59, v51
    s_nop 1
    s_or_b64 vcc, vcc, s[52:53]
    s_cbranch_vccz K2_NODE_DONE
    v_add_lshl_u32 v58, v42, v45, 2
    v_cmp_eq_u32 vcc, 0, v45
    v_mov_b32 v49, v45
    v_mov_b32 v55, 1.0
    v_mov_b32 v59, 0
    v_cndmask_b32 v56, 1.0, v59, vcc
K2_BULK:
    v_cmp_lt_u32 vcc, v49, v43
    s_and_b64 exec, exec, vcc
    s_cbranch_execz K2_BULK_DONE
    ds_write2st64_b32 v58, v46, v47 offset0:{GAT//256} offset1:{GFT//256}
    ds_write_b32 v58, v56 offset:{GKT}
    v_mov_b32 v56, v55
    v_add_u32 v58, 16, v58
    v_add_u32 v49, 4, v49
    s_branch K2_BULK
K2_BULK_DONE:
    s_mov_b64 exec, s[54:55]
    v_cmp_lt_u32 vcc, 0, v43
    s_and_b64 exec, exec, vcc
    s_cbranch_execz K2_NODE_DONE
K2_BND:
    v_cmp_lt_u32 vcc, v50, v51
    s_and_b64 exec, exec, vcc
    s_cbranch_execz K2_NODE_DONE
    v_add_u32 v50, 1, v50
    v_mul_u32_u24 v55, {s4T}, v50
    v_lshlrev_b32 v56, 9, v50
    v_add_u32 v56, {HEADS}, v56
    v_lshlrev_b32 v57, 2, v50
    v_lshlrev_b32 v58, 2, v55
    v_mov_b32 v59, 0
    ds_write_b32 v57, v54 offset:{HEADN}
    ds_write_b32 v58, v59 offset:{GKT}
    v_add_u32 v60, {s4T}, v55
    v_min_u32 v60, v60, v48
    v_add_u32 v55, v55, v45
    s_mov_b64 s[52:53], exec
K2_BND2:
    v_cmp_lt_u32 vcc, v55, v60
    s_and_b64 exec, exec, vcc
    s_cbranch_execz K2_BND2_DONE
    v_lshlrev_b32 v58, 2, v55
    ds_write_b32 v58, v56 offset:{GFT}
    v_add_u32 v55, 4, v55
    s_branch K2_BND2
K2_BND2_DONE:
    s_mov_b64 exec, s[52:53]
    s_branch K2_BND
K2_NODE_DONE:
    s_mov_b64 exec, -1""")
    c("pad groups [G, 64T)")
    e(f"""    s_lshl_b32 s3, {sT}, 6
    s_sub_u32 s3, s3, {sG}
    s_lshl_b32 s49, s3, 2
    v_cmp_gt_u32 vcc, s49, v0
    s_and_saveexec_b64 s[52:53], vcc
    s_cbranch_execz K2_PADG_DONE
    s_lshl_b32 s48, {sG}, 5
    v_lshlrev_b32 v48, 3, v0
    v_add_u32 v48, s48, v48
    v_mov_b32 v50, 0
    v_mov_b32 v51, 0x3f800000
    ds_write_b64 v48, v[50:51] offset:{RECS}
    v_cmp_gt_u32 vcc, s3, v0
    s_lshl_b32 s48, {sG}, 2
    v_lshlrev_b32 v48, 2, v0
    v_add_u32 v48, s48, v48
    v_mov_b32 v51, {HEADS}
    s_and_b64 exec, exec, vcc
    ds_write2st64_b32 v48, v50, v51 offset0:{GAT//256} offset1:{GFT//256}
    ds_write_b32 v48, v50 offset:{GKT}
K2_PADG_DONE:
    s_mov_b64 exec, s[52:53]
    v_lshlrev_b32 v41, 3, v{vLANE}
    v_add_u32 v41, {DUMMY}, v41
    s_waitcnt lgkmcnt(0)""")
    if 'fine' in X: stamp()
    c("scatter")
    slot_pass("K2_S3", [
        lambda k, r, p, q: f"    v_lshl_add_u32 v{vA+q}, v{vRK+q}, 3, v{vA+q}",
        lambda k, r, p, q: f"    s_mov_b64 exec, {msk(q)}\n    ds_write_b64 v{vA+q}, v[{vREC+(2*k+r)*4+2*p}:{vREC+(2*k+r)*4+2*p+1}]",
        lambda k, r, p, q: "    s_mov_b64 exec, -1" if q % 4 == 3 else ""])
    e("    s_mov_b64 exec, -1")
    if 'fine' in X: stamp()
    c("advance segment pointers for a possible next round; T-dependent addresses")
    for r in range(2):
        e(f"""    v_sub_u32 v{vLEN[r]}, v{vLEN[r]}, v{vLR[r]}
    v_lshl_add_u32 v{vBASE[r]}, v{vLR[r]}, 3, v{vBASE[r]}""")
    e(f"""    s_lshl_b32 s3, {sWV}, 1
    s_mul_i32 s3, s3, {sT}
    s_lshl_b32 s48, s3, 7
    s_add_u32 s48, s48, {RECS}
    s_lshl_b32 s49, {sT}, 7
    v_mul_u32_u24 v41, s49, v{vH}
    v_add_u32 v41, s48, v41
    v_bfe_u32 v42, v{vLANE}, 3, 2
    v_lshl_add_u32 v{vSRC_RD}, v42, 3, v41
    v_bfe_u32 v42, v{vN}, 2, 1
    v_mul_u32_u24 v42, s49, v42
    v_add_u32 v42, s48, v42
    v_lshrrev_b32 v43, 3, v{vN}
    v_lshl_add_u32 v42, v43, 5, v42
    v_and_b32 v43, 3, v{vN}
    v_lshl_add_u32 v42, v43, 3, v42
    v_add_u32 v{vEW_RD}, 4, v42
    s_lshl_b32 s48, s3, 4
    s_lshl_b32 s49, {sT}, 4
    v_mul_u32_u24 v41, s49, v{vH}
    v_add_u32 v41, s48, v41
    v_add_u32 v{vGF_RD}, {GFT}, v41
    v_bfe_u32 v42, v{vLANE}, 2, 2
    v_lshl_add_u32 v41, v42, 2, v41
    v_add_u32 v{vGA_RD}, {GAT}, v41
    v_mov_b64 v[56:57], 0
    v_mov_b64 v[58:59], 0
    s_waitcnt lgkmcnt(0)
    s_barrier""")
    stamp()
    c("pipeline prologue")
    for x in src_reads(0): e(x)
    e("    s_waitcnt lgkmcnt(0)")
    for g in dma_issue():
        for x in g: e(x)
    e(f"    v_add_u32 v{vSRC_RD}, 128, v{vSRC_RD}")
    rn = reads_next(0, 0)
    for x in rn[4:]: e(x)
    e("    s_waitcnt lgkmcnt(0)")
    for x in after_reads(0, 0): e(x)
    e("    s_waitcnt vmcnt(0)")
    for x in rn[:4]: e(x)
    e("    s_waitcnt lgkmcnt(0)")
    for g in dma_issue():
        for x in g: e(x)
    for x in advance_addrs(1): e(x)
    for x in gf_fix(0): e(x)
    for x in mfma_group('A', 0): e(x)
    stamp()
    if 'solo' in X:
        e(f"    s_cmp_ge_u32 {sWV}, 4\n    s_cbranch_scc1 K2_LOOP_END")
    e(f"""    s_nop 15
    s_mov_b32 {sCNT}, {sT}
.p2align 6
K2_LOOP:""")
    INLOOP[0] = True
    tile_body(0)
    e(f"""    s_sub_u32 {sCNT}, {sCNT}, 1
    s_cmp_eq_u32 {sCNT}, 0
    s_cbranch_scc1 K2_LOOP_END""")
    tile_body(1)
    INLOOP[0] = False
    e(f"""    s_sub_u32 {sCNT}, {sCNT}, 1
    s_cmp_lg_u32 {sCNT}, 0
    s_cbranch_scc1 K2_LOOP
K2_LOOP_END:
    s_setprio 0
    s_waitcnt vmcnt(0)
    s_lshl_b32 s3, {sWV}, 11
    v_lshlrev_b32 v40, 4, v{vLANE}
    v_add_u32 v40, s3, v40
    s_mov_b32 m0, {sM0B}
    s_nop 0
    buffer_load_dwordx4 v40, {SRD_XB}, 0 offen lds
    buffer_load_dwordx4 v40, {SRD_XB}, 0 offen offset:1024 lds
    s_waitcnt lgkmcnt(0)""")
    stamp()
    e("    s_barrier")
    stamp()
    c("head fix-up")
    e(f"""    v_lshlrev_b32 v40, 2, v{vLANE}
    ds_read_b32 v41, v40 offset:{HEADN}
    ds_read_b32 v42, v40 offset:{HEADN+4}
    v_mov_b32 v43, {FLAG}
    ds_read_b32 v44, v43
    s_lshl_b32 s3, {sWV}, 1
    v_add_u32 v45, s3, v{vH}
    v_lshlrev_b32 v46, 2, v45
    ds_read_b32 v47, v46 offset:{HEADN}
    v_lshlrev_b32 v45, 9, v45
    v_add_u32 v45, {HEADS}, v45
    v_add_u32 v45, v45, v{vN4}
    s_waitcnt lgkmcnt(0)
    v_readfirstlane_b32 {sMORE}, v44
    v_cmp_eq_u32 vcc, v41, v42
    v_cmp_le_i32 s[52:53], 0, v41
    s_nop 1
    s_and_b64 vcc, vcc, s[52:53]
    s_and_b32 s52, vcc_lo, 0x7fff
    s_cmp_lg_u32 s52, 0
    s_cbranch_scc1 K2_FIX_SLOW
    v_cmp_le_i32 vcc, 0, v47
    s_and_saveexec_b64 s[52:53], vcc
    s_cbranch_execz K2_FIX_DONE
    v_lshlrev_b32 v47, 9, v47
    v_add_u32 v47, {ROWS}, v47
    v_add_u32 v47, v47, v{vN4}""")
    for q in range(4):
        e(f"""    ds_read_b32 v{16+q}, v45 offset:{128*q}
    ds_read_b32 v{20+q}, v47 offset:{128*q}""")
    e("    s_waitcnt lgkmcnt(0)")
    for q in range(4):
        e(f"""    v_add_f32 v{16+q}, v{16+q}, v{20+q}
    ds_write_b32 v47, v{16+q} offset:{128*q}""")
    e(f"""    s_branch K2_FIX_DONE
K2_FIX_SLOW:
    s_mov_b64 s[52:53], exec
    s_cmp_lg_u32 {sWV}, 0
    s_cbranch_scc1 K2_FIX_DONE
    s_mov_b32 s3, 0
K2_FIX_SL:
    v_readlane_b32 s49, v41, s3
    s_nop 3
    s_cmp_lt_i32 s49, 0
    s_cbranch_scc1 K2_FIX_SN
    s_lshl_b32 s49, s49, 9
    s_add_u32 s49, s49, {ROWS}
    s_lshl_b32 s54, s3, 9
    s_add_u32 s54, s54, {HEADS}
    v_lshlrev_b32 v45, 3, v{vLANE}
    v_add_u32 v46, s54, v45
    v_add_u32 v47, s49, v45
    ds_read_b64 v[16:17], v46
    ds_read_b64 v[18:19], v47
    s_waitcnt lgkmcnt(0)
    v_add_f32 v16, v16, v18
    v_add_f32 v17, v17, v19
    ds_write_b64 v47, v[16:17]
    s_waitcnt lgkmcnt(0)
K2_FIX_SN:
    s_add_u32 s3, s3, 1
    s_cmp_lt_u32 s3, 16
    s_cbranch_scc1 K2_FIX_SL
K2_FIX_DONE:
    s_mov_b64 exec, s[52:53]
    s_waitcnt vmcnt(0) lgkmcnt(0)
    s_barrier""")
    e(f"""    s_or_b32 s3, {sRND}, {sMORE}
    s_cmp_eq_u32 s3, 0
    s_cbranch_scc1 K2_EPI""")
    c("rare: several rounds. rows += saved (round>0); if more: save rows and restart")
    e(f"""    s_mul_i32 s3, {sB}, {NB*512}
    s_add_u32 s3, s3, {WS_ACC}
    v_lshlrev_b32 v40, 4, v0
    v_add_u32 v41, {ROWS}, v40
    v_add_u32 v42, s3, v40
    s_mov_b32 s49, 0
K2_MR:
    v_cmp_gt_u32 vcc, {NB*512}, v40
    s_and_saveexec_b64 s[52:53], vcc
    s_cbranch_execz K2_MR_N
    ds_read_b128 v[16:19], v41
    s_cmp_eq_u32 {sRND}, 0
    s_cbranch_scc1 K2_MR_A
    buffer_load_dwordx4 v[20:23], v42, {SRD_WS}, 0 offen
    s_waitcnt vmcnt(0) lgkmcnt(0)
    v_add_f32 v16, v16, v20
    v_add_f32 v17, v17, v21
    v_add_f32 v18, v18, v22
    v_add_f32 v19, v19, v23
    ds_write_b128 v41, v[16:19]
K2_MR_A:
    s_waitcnt lgkmcnt(0)
    s_cmp_eq_u32 {sMORE}, 0
    s_cbranch_scc1 K2_MR_N
    buffer_store_dwordx4 v[16:19], v42, {SRD_WS}, 0 offen
    s_waitcnt vmcnt(0)
K2_MR_N:
    s_mov_b64 exec, s[52:53]
    v_add_u32 v40, 8192, v40
    v_add_u32 v41, 8192, v41
    v_add_u32 v42, 8192, v42
    s_add_u32 s49, s49, 1
    s_cmp_lt_u32 s49, 7
    s_cbranch_scc1 K2_MR
    s_waitcnt vmcnt(0) lgkmcnt(0)
    s_barrier
    s_cmp_eq_u32 {sMORE}, 0
    s_cbranch_scc1 K2_EPI
    s_mov_b32 {sRND}, 1
    s_branch K2_ROUND_INIT""")
    e("K2_EPI:")
    stamp()
    c("wave (rho, fb): node = 32rho+8i+4h+j, feature = 32fb+n")
    DEN, NUM, XP, UU = 64, 80, 96, 112
    e(f"""    s_lshl_b32 s3, {sRHO}, 14
    s_lshl_b32 s49, {sFB}, 7
    s_add_u32 s3, s3, s49
    s_add_u32 s3, s3, {ROWS}
    v_lshlrev_b32 v3, 11, v{vH}
    v_add_u32 v3, v3, v{vN4}
    v_add_u32 v3, s3, v3""")
    for r in range(0, 16, 2):
        i, j = r >> 2, r & 3
        e(f"    ds_read2st64_b32 v[{DEN+r}:{DEN+r+1}], v3 offset0:{(8*i+j)*2} offset1:{(8*i+j+1)*2}")
    for r in range(0, 16, 2):
        i, j = r >> 2, r & 3
        e(f"    ds_read2st64_b32 v[{NUM+r}:{NUM+r+1}], v3 offset0:{(8*i+j)*2+1} offset1:{(8*i+j+1)*2+1}")
    c("x (residual) through transposing reads of the staged rows")
    e(f"""    s_lshl_b32 s3, {sRHO}, 13
    s_lshl_b32 s49, {sFB}, 6
    s_add_u32 s3, s3, s49
    s_add_u32 s3, s3, {XST}
    v_bfe_u32 v4, v{vLANE}, 2, 2
    v_lshl_add_u32 v4, v{vH}, 2, v4
    v_lshlrev_b32 v4, 7, v4
    v_add_u32 v4, v4, v{vAFC}
    v_add_u32 v4, s3, v4""")
    for i in range(4):
        e(f"    ds_read_b64_tr_b16 v[{XP+2*i}:{XP+2*i+1}], v4 offset:{(i>>1)*4096 + (i&1)*1024}")
    e(f"""    s_lshl_b32 s3, {sRHO}, 12
    s_lshl_b32 s49, {sFB}, 6
    s_add_u32 s3, s3, s49
    v_lshlrev_b32 v2, 9, v{vH}
    v_lshl_add_u32 v2, v{vN}, 1, v2
    v_add_u32 v2, s3, v2
    s_mov_b32 s48, {f32bits(1e-6):#x}
    s_mov_b32 s49, {f32bits(1e-6):#x}""")
    for r in range(16):
        e(f"    v_accvgpr_read_b32 v{UU+r}, a{aU+r}")
    e("    s_waitcnt lgkmcnt(12)")
    for r in range(0, 16, 2):
        e(f"    v_pk_add_f32 v[{DEN+r}:{DEN+r+1}], v[{DEN+r}:{DEN+r+1}], s[48:49]")
    for r in range(16):
        e(f"    v_rcp_f32 v{DEN+r}, v{DEN+r}")
    e("    s_waitcnt lgkmcnt(0)")
    for r in range(0, 16, 2):
        e(f"    v_pk_fma_f32 v[{UU+r}:{UU+r+1}], v[{NUM+r}:{NUM+r+1}], v[{DEN+r}:{DEN+r+1}], v[{UU+r}:{UU+r+1}]")
    for r in range(16):
        e(f"    v_max_f32 v{UU+r}, 0, v{UU+r}")
    for r in range(0, 16, 2):
        e(f"""    v_lshlrev_b32 v{DEN+r}, 16, v{XP+r//2}
    v_and_b32 v{DEN+r+1}, 0xffff0000, v{XP+r//2}""")
    for r in range(0, 16, 2):
        e(f"    v_pk_add_f32 v[{UU+r}:{UU+r+1}], v[{UU+r}:{UU+r+1}], v[{DEN+r}:{DEN+r+1}]")
    for r in range(0, 16, 2):
        e(f"    v_cvt_pk_bf16_f32 v{NUM+r//2}, v{UU+r}, v{UU+r+1}")
    for r in range(0, 16, 2):
        i, j = r >> 2, r & 3
        e(f"""    ds_write_b16 v2, v{NUM+r//2} offset:{A_OFF + (8*i+j)*128}
    ds_write_b16_d16_hi v2, v{NUM+r//2} offset:{A_OFF + (8*i+j+1)*128}""")
    OSP = '' if 'plainout' in X else 'sc1'
    e(f"""    v_lshlrev_b32 v5, 4, v0
    v_add_u32 v6, 8192, v5
    s_waitcnt lgkmcnt(0)
    s_barrier
    ds_read_b128 v[64:67], v5 offset:{A_OFF}
    ds_read_b128 v[68:71], v5 offset:{A_OFF+8192}
    s_waitcnt lgkmcnt(1)
    buffer_store_dwordx4 v[64:67], v5, {SRD_OUT}, 0 offen {OSP}
    s_waitcnt lgkmcnt(0)
    buffer_store_dwordx4 v[68:71], v6, {SRD_OUT}, 0 offen {OSP}""")
    stamp()
    if DBG and 'fine' not in X: e(f"    s_waitcnt vmcnt(0)\n    s_memrealtime s[98:99]\n    s_waitcnt lgkmcnt(0)\n    v_writelane_b32 v{vDBG}, s98, 15")
    stamp_flush(sWV, 1)
    e("K2_END:\n    s_endpgm\nK2_CODE_END:")

def desc(name, nv, acc, ns):
    return f""".amdhsa_kernel {name}
  .amdhsa_next_free_vgpr {nv}
  .amdhsa_next_free_sgpr {ns}
  .amdhsa_accum_offset {acc}
  .amdhsa_group_segment_fixed_size 0
  .amdhsa_kernarg_size 96
  .amdhsa_user_sgpr_count 2
  .amdhsa_user_sgpr_kernarg_segment_ptr 1
  .amdhsa_system_sgpr_workgroup_id_x 1
  .amdhsa_float_denorm_mode_32 3
.end_amdhsa_kernel"""

def main(out):
    hdr = open('gather_scatter__edge_featured_mpnn_gatedgcn__graph.s.ref').read().split('\n')
    head = [x for x in hdr if x.startswith(';') and '@launch' not in x and 'Override launch' not in x and 'grid=ceil' not in x]
    for x in head: e(x)
    e(f"; @launch kernel=k1_kernel grid=({NCH+8},1,1) block=(448,1,1) lds={K1_LDS}")
    e(f"; @launch kernel=k2_kernel grid=({NBINS},1,1) block=(512,1,1) lds={K2_LDS}")
    e('.amdgcn_target "amdgcn-amd-amdhsa--gfx950"')
    e(".text")
    gen_k1()
    gen_k2()
    e('.section .rodata,"a"\n.p2align 6')
    e(desc("k1_kernel", 96, 96, 40))
    e(desc("k2_kernel", 256, 128, 100))
    open(out, 'w').write("\n".join(L) + "\n")

if __name__ == "__main__":
    main(sys.argv[1] if len(sys.argv) > 1 else "gather_scatter__edge_featured_mpnn_gatedgcn__graph.s")
```

```python
import sys, struct

N = 25000
E = 800000
NB = 98
NBINS = 256
NCH = 250
CH = 3200

WS_REC = 0
WS_TAB = 0x700000
WS_W = 0x780000
WS_ACC = 0x800000
WS_SIZE = 0x2000000

LOG2E = 1.4426950408889634
def f32bits(x): return struct.unpack('<I', struct.pack('<f', x))[0]
NEG_LOG2E = f32bits(-LOG2E)
BIG = f32bits(2.0**100)

K1_HIST = 0
K1_OFFS = 1024
K1_STAGE = 2048
K1_LDS = 2048 + CH * 8

A_OFF = 0
CNT = 16384
GS = CNT + 768
GSA = GS + 512
HEADN = GSA + 768
FLAG = HEADN + 64
GAT = 18688
GFT = GAT + 4096
GKT = GFT + 4096
RECS = GKT + 4096
DUMMY = RECS + 31232
ROWS = DUMMY + 512
HEADS = ROWS + NB * 512
XST = HEADS + 16 * 512
K2_LDS = XST + 32768
XBS = RECS
assert GAT % 256 == 0 and XST % 128 == 0 and XBS % 128 == 0
GMAX = 960

import os
DBG = int(os.environ.get('DBG','0'))
WS_DBG = 0x1800000
X = set(os.environ.get('X','').split(','))
NST = [0]
vDBG = 38
def stamp(name=None):
    if not DBG: return
    i = NST[0]; NST[0] += 1
    e(f"    s_memtime s[96:97]")
    e(f"    s_waitcnt lgkmcnt(0)")
    e(f"    v_writelane_b32 v{vDBG}, s96, {i}")
NST1 = [0]
def stamp1():
    if not DBG: return
    i = NST1[0]; NST1[0] += 1
    e(f"    s_memtime s[32:33]")
    e(f"    s_waitcnt lgkmcnt(0)")
    e(f"    v_writelane_b32 v61, s32, {i}")
    if i == 0:
        e("    s_memrealtime s[34:35]\n    s_waitcnt lgkmcnt(0)\n    v_writelane_b32 v61, s34, 14")
def stamp_at(i):
    e(f"    s_memtime s[96:97]")
    e(f"    s_waitcnt lgkmcnt(0)")
    e(f"    v_writelane_b32 v{vDBG}, s96, {i}")
def stamp_flush(wave_sgpr, kid):
    if not DBG: return
    e(f"    s_lshl_b32 s3, s2, 4")
    e(f"    s_add_u32 s3, s3, {wave_sgpr}")
    e(f"    s_lshl_b32 s3, s3, 6")
    e(f"    s_add_u32 s3, s3, {WS_DBG + kid*0x100000}")
    e(f"    s_mov_b64 exec, 0xffff")
    e(f"    v_and_b32 v2, 63, v0")
    e(f"    v_lshlrev_b32 v2, 2, v2")
    e(f"    v_add_u32 v2, s3, v2")
    e(f"    global_store_dword v2, v{vDBG}, {'s[6:7]' if kid else 's[10:11]'}")
    NST[0] = 0
L = []
def e(s=""):
    for line in s.split("\n"):
        L.append(line)
def c(s): L.append("    ; " + s)

def dpp_scan(v):
    for sh in (1, 2, 4, 8):
        e(f"    s_nop 1")
        e(f"    v_add_u32_dpp {v}, {v}, {v} row_shr:{sh} row_mask:0xf bank_mask:0xf")
    e("    s_nop 1")
    e(f"    v_add_u32_dpp {v}, {v}, {v} row_bcast:15 row_mask:0xa bank_mask:0xf")
    e("    s_nop 1")
    e(f"    v_add_u32_dpp {v}, {v}, {v} row_bcast:31 row_mask:0xc bank_mask:0xf")

def gen_k1():
    STP = '' if 'plainst' in X else ('nt sc1' if 'ntsc1' in X else ('nt' if 'ntst' in X else ('sc1' if 'sc1only' in X else 'sc0 sc1')))
    NT = 400
    e(".globl k1_kernel\n.p2align 8\n.type k1_kernel,@function\nk1_kernel:")
    e(f"""    s_cmp_ge_u32 s2, {NCH+8}
    s_cbranch_scc1 K1_END
    s_load_dwordx4 s[4:7], s[0:1], 16
    s_load_dwordx4 s[12:15], s[0:1], 0
    s_load_dwordx2 s[10:11], s[0:1], 88
    s_cmp_ge_u32 s2, {NCH}
    s_cbranch_scc1 K1_PREP
    s_mul_i32 s16, s2, {CH*4}
    v_lshlrev_b32 v1, 4, v0
    v_add_u32 v2, s16, v1
    v_add_u32 v3, {NT*16}, v2
    s_lshr_b32 s17, s16, 1
    v_add_u32 v4, s17, v1
    v_lshlrev_b32 v5, 2, v0
    v_mov_b32 v6, 0
    v_lshrrev_b32 v28, 6, v0
    v_mov_b32 v29, 1
    v_readfirstlane_b32 s23, v28
    v_cmp_gt_u32 vcc, 256, v0
    s_and_saveexec_b64 s[18:19], vcc
    ds_write_b32 v5, v6 offset:{K1_HIST}
    s_mov_b64 exec, s[18:19]
    v_cmp_gt_u32 vcc, {NT}, v0
    s_and_b64 exec, exec, vcc
    s_mov_b64 s[20:21], exec
    s_mov_b32 s22, {-NB & 0xffffffff}
    s_waitcnt lgkmcnt(0)""")
    stamp1()
    LDP = 'nt' if 'ntld' in X else ''
    e(f"""    global_load_dwordx4 v[8:11], v2, s[6:7] {LDP}
    global_load_dwordx4 v[12:15], v3, s[6:7] {LDP}
    s_barrier
    global_load_dwordx4 v[80:83], v2, s[4:5] {LDP}
    global_load_dwordx4 v[84:87], v3, s[4:5] {LDP}
    v_lshrrev_b32 v4, 1, v2
    v_lshrrev_b32 v7, 1, v3
    global_load_dwordx2 v[88:89], v4, s[14:15] {LDP}
    global_load_dwordx2 v[90:91], v7, s[14:15] {LDP}""")
    PF1 = 0
    def prefetch():
        c("light prefetch: every row of x is touched once (brings it into the memory-side cache)")
        e(f"""    s_mul_i32 s17, s2, 100
    v_add_u32 v6, s17, v0
    v_lshlrev_b32 v7, 7, v6
    v_cmp_gt_u32 vcc, 100, v0
    s_and_b64 exec, exec, vcc
    global_load_dword v62, v7, s[12:13]
    s_mov_b64 exec, s[20:21]""")
        if 'nocodepf' not in X:
            c("bring the second kernel's code into the caches (read as data)")
            e(f"""    s_cmp_ge_u32 s2, 16
    s_cbranch_scc1 K1_NOCPF
    s_getpc_b64 s[26:27]
K1_CPF:
    s_add_u32 s26, s26, k2_kernel-K1_CPF
    s_addc_u32 s27, s27, 0
    v_lshlrev_b32 v60, 7, v0
    v_cmp_gt_u32 vcc, (K2_CODE_END-k2_kernel+127)/128, v0
    s_and_b64 exec, exec, vcc
    s_cbranch_execz K1_CPF_SKIP
    global_load_dword v63, v60, s[26:27]
K1_CPF_SKIP:
    s_mov_b64 exec, s[20:21]
K1_NOCPF:""")
    e("    s_waitcnt vmcnt(5)")
    stamp1()
    def binops(k):
        d = 8 + k
        e(f"""    v_mul_u32_u24 v{32+k}, 42800, v{d}
    v_lshrrev_b32 v{32+k}, 22, v{32+k}
    v_mad_i32_i24 v{40+k}, v{32+k}, s22, v{d}
    v_lshlrev_b32 v{32+k}, 2, v{32+k}""")
    for k in range(4): binops(k)
    for k in range(4): e(f"    ds_add_rtn_u32 v{48+k}, v{32+k}, v29 offset:{K1_HIST}")
    e(f"    s_waitcnt vmcnt({4+PF1})")
    for k in range(4, 8): binops(k)
    for k in range(4, 8): e(f"    ds_add_rtn_u32 v{48+k}, v{32+k}, v29 offset:{K1_HIST}")
    e("    s_waitcnt lgkmcnt(0)")
    stamp1()
    e("""    s_barrier
    s_mov_b64 exec, -1
    v_and_b32 v30, 63, v0
    v_lshlrev_b32 v31, 4, v30""")
    e(f"""    ds_read_b128 v[8:11], v31 offset:{K1_HIST}
    s_waitcnt lgkmcnt(0)
    v_add_u32 v12, v8, v9
    v_add_u32 v13, v12, v10
    v_add_u32 v14, v13, v11
    v_mov_b32 v15, v14""")
    dpp_scan("v15")
    e(f"""    v_sub_u32 v16, v15, v14
    v_add_u32 v17, v16, v8
    v_add_u32 v18, v16, v12
    v_add_u32 v19, v16, v13
    ds_write_b128 v31, v[16:19] offset:{K1_OFFS}
    v_lshl_or_b32 v20, v17, 16, v16
    v_lshl_or_b32 v21, v18, 16, v17
    v_lshl_or_b32 v22, v19, 16, v18
    v_lshl_or_b32 v23, v15, 16, v19
    s_lshl_b32 s24, s2, 10
    s_add_u32 s24, s24, {WS_TAB}
    v_add_u32 v24, s24, v31
    s_waitcnt lgkmcnt(0)""")
    stamp1()
    e("    s_mov_b64 exec, s[20:21]")
    for k in range(8):
        e(f"    ds_read_b32 v{8+k}, v{32+k} offset:{K1_OFFS}")
    e("    s_waitcnt vmcnt(0)")
    e(f"""    s_cmp_lg_u32 s23, 0
    s_cbranch_scc1 K1_NOTAB2
    s_mov_b64 exec, -1
    global_store_dwordx4 v24, v[20:23], s[10:11] {STP}
    s_mov_b64 exec, s[20:21]
K1_NOTAB2:""")
    if 'nopf1' not in X: prefetch()
    for k in range(8):
        e(f"""    v_lshlrev_b32 v{64+2*k}, 7, v{80+k}
    v_lshl_or_b32 v{64+2*k}, v{40+k}, 24, v{64+2*k}""")
    for k in range(8):
        src = 88 + k//2
        e(f"    v_and_b32 v{65+2*k}, 0xffff, v{src}" if k % 2 == 0 else f"    v_lshrrev_b32 v{65+2*k}, 16, v{src}")
    e("    s_waitcnt lgkmcnt(0)")
    for k in range(8):
        e(f"    v_add_lshl_u32 v{8+k}, v{8+k}, v{48+k}, 3")
    for k in range(8):
        e(f"    ds_write_b64 v{8+k}, v[{64+2*k}:{65+2*k}] offset:{K1_STAGE}")
    e("    s_waitcnt lgkmcnt(0)")
    stamp1()
    e("    s_barrier")
    for k in range(4):
        e(f"    ds_read_b128 v[{8+4*k}:{11+4*k}], v1 offset:{K1_STAGE+6400*k}")
    e(f"""    s_mul_i32 s24, s2, {CH*8}
    v_add_u32 v24, s24, v1""")
    for k in range(1, 4):
        e(f"    v_add_u32 v{24+k}, {6400*k}, v24")
    for k in range(4):
        e(f"    s_waitcnt lgkmcnt({3-k})\n    global_store_dwordx4 v{24+k}, v[{8+4*k}:{11+4*k}], s[10:11] {STP}")
    stamp1()
    if DBG:
        e("    s_waitcnt vmcnt(0)")
        stamp1()
        e("    s_memrealtime s[34:35]\n    s_waitcnt lgkmcnt(0)\n    v_writelane_b32 v61, s34, 15")
        e(f"""    s_lshl_b32 s3, s2, 4
    s_add_u32 s3, s3, s23
    s_lshl_b32 s3, s3, 6
    s_add_u32 s3, s3, {WS_DBG}
    s_mov_b64 exec, 0xffff
    v_and_b32 v2, 63, v0
    v_lshlrev_b32 v2, 2, v2
    v_add_u32 v2, s3, v2
    global_store_dword v2, v61, s[10:11]""")
    e("    s_endpgm")
    e(f"""K1_PREP:
    s_sub_u32 s16, s2, {NCH}
    s_and_b32 s30, s16, 1
    s_lshr_b32 s16, s16, 1
    s_mov_b32 s26, 1.0
    s_cmp_eq_u32 s16, 0
    s_cbranch_scc1 K1_P0
    s_cmp_eq_u32 s16, 1
    s_cbranch_scc1 K1_P1
    s_cmp_eq_u32 s16, 2
    s_cbranch_scc1 K1_P2
    s_load_dwordx2 s[24:25], s[0:1], 56
    s_branch K1_PJ
K1_P0:
    s_load_dwordx2 s[24:25], s[0:1], 40
    s_mov_b32 s26, {NEG_LOG2E:#x}
    s_branch K1_PJ
K1_P1:
    s_load_dwordx2 s[24:25], s[0:1], 64
    s_branch K1_PJ
K1_P2:
    s_load_dwordx2 s[24:25], s[0:1], 32
    s_mov_b32 s26, {NEG_LOG2E:#x}
K1_PJ:
    s_load_dwordx2 s[28:29], s[0:1], 48
    s_lshl_b32 s31, s30, 8
    v_add_u32 v9, s31, v0
    v_and_b32 v1, 63, v9
    v_lshrrev_b32 v2, 6, v9
    v_and_b32 v3, 31, v1
    v_lshrrev_b32 v4, 5, v1
    v_lshrrev_b32 v5, 1, v2
    v_and_b32 v6, 1, v2
    v_lshlrev_b32 v7, 11, v5
    v_lshl_add_u32 v7, v4, 10, v7
    v_lshl_add_u32 v7, v6, 6, v7
    v_lshl_add_u32 v7, v3, 1, v7
    s_lshl_b32 s17, s16, 13
    s_add_u32 s17, s17, {WS_W}
    v_lshlrev_b32 v8, 4, v9
    v_add_u32 v8, s17, v8
    s_waitcnt lgkmcnt(0)
    v_cmp_gt_u32 vcc, 256, v0
    s_and_saveexec_b64 s[18:19], vcc
    s_cbranch_execz K1_PWC""")
    for j in range(8):
        e(f"    global_load_ushort v{10+j}, v7, s[24:25] offset:{128*j}")
    e("    s_waitcnt vmcnt(0)")
    for j in range(8):
        e(f"""    v_lshlrev_b32 v{10+j}, 16, v{10+j}
    v_mul_f32 v{10+j}, s26, v{10+j}""")
    for j in range(4):
        e(f"    v_cvt_pk_bf16_f32 v{20+j}, v{10+2*j}, v{11+2*j}")
    e(f"""    global_store_dwordx4 v8, v[20:23], s[10:11]
K1_PWC:
    s_mov_b64 exec, s[18:19]
    s_or_b32 s17, s16, s30
    s_cmp_lg_u32 s17, 0
    s_cbranch_scc1 K1_END
    v_subrev_u32 v9, 256, v0
    v_and_b32 v3, 31, v9
    v_bfe_u32 v4, v9, 5, 1
    v_cmp_gt_u32 vcc, 128, v9
    s_and_saveexec_b64 s[18:19], vcc
    s_cbranch_execz K1_END
    v_lshrrev_b32 v6, 6, v9
    v_lshlrev_b32 v7, 6, v6
    v_lshl_add_u32 v7, v3, 1, v7
    global_load_ushort v10, v7, s[28:29]
    v_lshlrev_b32 v8, 2, v9
    v_add_u32 v8, {WS_W+32768}, v8
    v_mov_b32 v12, {BIG:#x}
    s_waitcnt vmcnt(0)
    v_lshlrev_b32 v10, 16, v10
    v_mul_f32 v10, {NEG_LOG2E:#x}, v10
    v_cvt_pk_bf16_f32 v11, v10, v12
    v_cmp_eq_u32 vcc, 0, v4
    s_nop 1
    v_cndmask_b32 v11, 0, v11, vcc
    global_store_dword v8, v11, s[10:11]
K1_END:
    s_endpgm""")

S_X, S_WS, S_OUT = "s[4:5]", "s[6:7]", "s[8:9]"
SRD_X, SRD_XB, SRD_OUT, SRD_WS = "s[12:15]", "s[16:19]", "s[20:23]", "s[24:27]"
sB, sWV, sT, sCNT, sN0, sNL = "s28", "s29", "s30", "s31", "s33", "s34"
s4T, sG, sRND, sMORE, sKM = "s35", "s36", "s37", "s38", "s39"
sMSK22, sMSKA, sM0B = "s45", "s46", "s47"
sLA, sLB, sDD, sCAP = "s40", "s41", "s42", "s43"
sRHO, sFB = "s50", "s51"
sMASK = 56

GA, HA, GB, HB = 64, 80, 96, 112
ACC = {'A': 56, 'B': 58}
vXR = [2, 3, 4, 5]
vSRC_RD, vEW_RD, vGA_RD, vGF_RD = 6, 7, 8, 9
vCHA, vCHB, vAFC, vN4 = 10, 11, 12, 13
vN, vH = 14, 15
vGF = [16, 20]
vSRC = 24
vGA, vAFA = 28, 29
vLEN, vBASE = (30, 31), (32, 33)
vXP = 34
vGK = [40, 44]
vUT = 48
aWB, aWV, aAFA, aAFB, aO, aU = 0, 32, 80, 84, 88, 96
aX = [64, 112]

INLOOP = [False]
def mfma(d, a, b, cc):
    if 'nomfma' in X and INLOOP[0]: return "    s_nop 0"
    return f"    v_mfma_f32_32x32x16_bf16 {d}, {a}, {b}, {cc}"
def vr(b, n): return f"v[{b}:{b+n-1}]"
def ar(b, n): return f"a[{b}:{b+n-1}]"

def mfma_group(fb, xb):
    G, H = (GA, HA) if fb == 'A' else (GB, HB)
    f = 0 if fb == 'A' else 1
    af = aAFA if fb == 'A' else aAFB
    out = [mfma(vr(G, 16), ar(aO, 4), ar(af, 4), "0")]
    gs_ = [mfma(vr(G, 16), ar(aX[xb] + 4*s, 4), ar(aWB + (s*2+f)*4, 4), vr(G, 16)) for s in range(4)]
    hs_ = [mfma(vr(H, 16), ar(aX[xb] + 4*s, 4), ar(aWV + (s*2+f)*4, 4), "0" if s == 0 else vr(H, 16)) for s in range(4)]
    if 'swapop' in X:
        gs_ = gs_
    if 'share' in X:
        for s in range(4): out += [gs_[s], hs_[s]]
    else:
        out += gs_ + hs_
    return out

def dma_issue():
    grp = []
    for k in range(4):
        ch = vCHA if k % 2 == 0 else vCHB
        g = [f"    v_and_or_b32 v{vSRC+k}, v{vSRC+k}, {sMSK22}, v{ch}"]
        g.append(f"    s_mov_b32 m0, {sM0B}" if k == 0 else "    s_add_u32 m0, m0, 1024")
        g.append("    s_nop 0")
        if 'nodma' not in X: g.append(f"    buffer_load_dwordx4 v{vSRC+k}, {SRD_X}, 0 offen lds")
        grp.append(g)
    return grp

def src_reads(o1):
    return [f"    ds_read2_b32 v[{vSRC}:{vSRC+1}], v{vSRC_RD} offset0:{32*o1} offset1:{32*o1+8}",
            f"    ds_read2_b32 v[{vSRC+2}:{vSRC+3}], v{vSRC_RD} offset0:{32*o1+16} offset1:{32*o1+24}"]

def reads_next(xb, o1=0):
    o = []
    for s in range(4):
        o.append(f"    ds_read_b128 {ar(aX[xb]+4*s,4)}, v{vXR[s]}")
    o.append(f"    ds_read_b32 v{vGA}, v{vGA_RD} offset:{16*o1}")
    o += src_reads(o1)
    o.append(f"    ds_read_b32 a{aO+2}, v{vEW_RD} offset:{128*o1}")
    return o

def after_reads(npar, o1=0):
    return [f"    v_bitop3_b32 v{vAFA}, v{vGA}, {sMSKA}, v{vAFC} bitop3:0x6a",
            f"    ds_read_b64_tr_b16 {ar(aAFA,2)}, v{vAFA}",
            f"    ds_read_b64_tr_b16 {ar(aAFB,2)}, v{vAFA} offset:64",
            f"    ds_read_b128 {vr(vGF[npar],4)}, v{vGF_RD} offset:{16*o1}",
            f"    ds_read_b128 {vr(vGK[npar],4)}, v{vGF_RD} offset:{GKT-GFT+16*o1}"]
def gf_fix(npar):
    return [f"    v_add_u32 v{vGF[npar]+i}, v{vGF[npar]+i}, v{vN4}" for i in range(4)]

def advance_addrs(m):
    return [f"    v_add_u32 v{vEW_RD}, {128*m}, v{vEW_RD}", f"    v_add_u32 v{vSRC_RD}, {128*m}, v{vSRC_RD}",
            f"    v_add_u32 v{vGA_RD}, {16*m}, v{vGA_RD}", f"    v_add_u32 v{vGF_RD}, {16*m}, v{vGF_RD}"]

def phase(fb, par, mf, ex1, ex2):
    G, H = (GA, HA) if fb == 'A' else (GB, HB)
    d = ACC[fb]
    nov = 'novalu' in X
    def run(op, mfs, mpos, ex):
        k = 0
        for j in range(17):
            while k < len(mfs) and mpos[k] == j:
                e(mfs[k]); k += 1
            for x in ex.get(j, []): e(x)
            if j < 16: e(f"    {op} v{G+j}, v{G+j}" if not nov else "    s_nop 0")
        assert k == len(mfs)
    run("v_exp_f32", mf[0:5], [0, 3, 6, 9, 12], ex1)
    for j in range(0, 16, 2):
        e(f"    v_pk_add_f32 v[{G+j}:{G+j+1}], v[{G+j}:{G+j+1}], 1.0 op_sel_hi:[1,0]" if not nov else "    s_nop 0")
    run("v_rcp_f32", mf[5:9], [0, 3, 6, 9], ex2)
    f = 0 if fb == 'A' else 1
    clump = 'noclump' not in X
    xs = [34, 36, 60, 62]
    prev = d
    wr = []
    for i in range(4):
        g = G + 4*i; h = H + 4*i; k = vGK[par] + i
        u = vUT + 4*(i & 1); t = u + 2
        x = xs[i] if clump else vXP + 2*(i & 1)
        dst = (x if i < 3 else d) if clump else d
        if not nov:
            e(f"    v_pk_mul_f32 v[{t}:{t+1}], v[{g}:{g+1}], v[{h}:{h+1}]")
            e(f"    v_pk_add_f32 v[{u}:{u+1}], v[{g}:{g+1}], v[{g+2}:{g+3}]")
            e(f"    v_pk_fma_f32 v[{t}:{t+1}], v[{g+2}:{g+3}], v[{h+2}:{h+3}], v[{t}:{t+1}]")
            e(f"    v_add_f32 v{x}, v{u}, v{u+1}")
            e(f"    v_add_f32 v{x+1}, v{t}, v{t+1}")
            e(f"    v_pk_fma_f32 v[{dst}:{dst+1}], v[{prev}:{prev+1}], v[{k & ~1}:{(k & ~1)+1}], v[{x}:{x+1}] op_sel:[0,{k&1},0] op_sel_hi:[1,{k&1},1]")
            w = f"    ds_write2_b32 v{vGF[par]+i}, v{dst}, v{dst+1} offset0:{f*32} offset1:{64+f*32}"
            if 'nowr' not in X:
                if clump: wr.append(w)
                else: e(w)
            prev = dst
    for w in wr: e(w)

def tile_body(par):
    npar = 1 - par
    dm = dma_issue()
    ex1 = {1: ["    s_waitcnt vmcnt(0)"] + reads_next(npar, par)}
    ex2 = {1: ["    s_waitcnt lgkmcnt(0)"] + after_reads(npar, par), 4: dm[0], 7: dm[1], 10: dm[2], 12: dm[3]}
    if 'nodmaclump' not in X:
        ex2 = {1: ["    s_waitcnt lgkmcnt(0)"] + after_reads(npar, par), 4: dm[0] + dm[1] + dm[2] + dm[3]}
    if par == 1: ex2[14] = advance_addrs(2)
    exB1 = {2: gf_fix(npar)}
    pa, pb = 3 - 2*par, 2 - 2*par
    if 'prioAB' in X: pa, pb = 1, 0
    if 'prioBA' in X: pa, pb = 0, 1
    if 'prio2' in X: pa, pb = (1, 1) if par == 0 else (0, 0)
    if 'noprio' not in X: e(f"    s_setprio {pa}")
    phase('A', par, mfma_group('B', par), ex1, ex2)
    if 'noprio' not in X: e(f"    s_setprio {pb}")
    mA = mfma_group('A', npar)
    mA[0] = ("    s_waitcnt lgkmcnt(4)\n" if 'nowr' not in X and 'novalu' not in X else "    s_waitcnt lgkmcnt(0)\n") + mA[0]
    phase('B', par, mA, exB1, {})

vLANE = 1
vTAB = (16, 17)
vLR, vREM = (18, 19), (20, 21)
vREC = 64
vA = 96
vRK = 112
def slot_list(ks):
    for k in ks:
        for r in range(2):
            for p in range(2):
                yield k, r, p, (2*k+r)*2 + p
def msk(q): return f"s[{sMASK+2*q}:{sMASK+2*q+1}]"

def slot_pass(name, fns):
    for fn in fns:
        for sl in slot_list([0, 1]):
            e(fn(*sl))
    for k in (2, 3):
        e(f"    s_cmp_le_u32 {sKM}, {k}\n    s_cbranch_scc1 {name}_DONE")
        for fn in fns:
            for sl in slot_list([k]):
                e(fn(*sl))
    e(f"{name}_DONE:")

def seg_masks():
    c("per-round segment limits and slot masks")
    for r in range(2):
        e(f"    v_sub_u32 v{vREM[r]}, v{vLR[r]}, v22")
    for k, r, p, q in slot_list(range(4)):
        e(f"    v_cmp_lt_i32 {msk(q)}, {8*k+p}, v{vREM[r]}")
    q20, q21, q30, q31 = 8, 10, 12, 14
    e(f"""    s_mov_b32 {sKM}, 2
    s_or_b64 s[52:53], {msk(q20)}, {msk(q21)}
    s_cmp_lg_u64 s[52:53], 0
    s_cselect_b32 {sKM}, 3, {sKM}
    s_or_b64 s[52:53], {msk(q30)}, {msk(q31)}
    s_cmp_lg_u64 s[52:53], 0
    s_cselect_b32 {sKM}, 4, {sKM}""")

PFN = 2 if 'pf2' in X else 0
def gen_k2():
    e(".globl k2_kernel\n.p2align 8\n.type k2_kernel,@function\nk2_kernel:")
    if DBG and 'vstart' in X:
        e(f"    s_memrealtime s[94:95]")
    e(f"""    s_cmp_ge_u32 s2, {NBINS}
    s_cbranch_scc1 K2_END
    s_load_dwordx2 {S_WS}, s[0:1], 88
    s_load_dwordx2 {S_X}, s[0:1], 0
    s_load_dwordx2 {S_OUT}, s[0:1], 72
    s_and_b32 {sB}, s2, 7
    s_lshl_b32 {sB}, {sB}, 5
    s_lshr_b32 s3, s2, 3
    s_add_u32 {sB}, {sB}, s3
    s_mul_i32 {sN0}, {sB}, {NB}
    s_sub_u32 {sNL}, {N}, {sN0}
    s_min_u32 {sNL}, {sNL}, {NB}
    v_lshrrev_b32 v2, 6, v0
    v_and_b32 v{vLANE}, 63, v0
    v_readfirstlane_b32 {sWV}, v2
    s_mov_b32 {sMSK22}, 0x3fffff
    s_mov_b32 {sMSKA}, 0x3fb8
    s_mov_b32 {sRND}, 0
    s_lshl_b32 s3, {sN0}, 7
    s_lshl_b32 s49, {sNL}, 7
    v_lshrrev_b32 v2, 2, v0
    v_lshlrev_b32 v3, 10, v2
    s_lshl_b32 s48, {sB}, 2
    s_add_u32 s48, s48, {WS_TAB}
    v_add_u32 v3, s48, v3
    v_add_u32 v4, {128*1024}, v3
    s_waitcnt lgkmcnt(0)
    s_mov_b32 s24, s6
    s_mov_b32 s25, s7
    s_mov_b32 s26, {WS_SIZE}
    s_mov_b32 s27, 0x00020000
    buffer_load_dword v{vTAB[0]}, v3, {SRD_WS}, 0 offen
    buffer_load_dword v{vTAB[1]}, v4, {SRD_WS}, 0 offen
    s_mov_b32 s12, s4
    s_mov_b32 s13, s5
    s_mov_b32 s14, {N*128}
    s_mov_b32 s15, 0x00020000
    s_add_u32 s16, s4, s3
    s_addc_u32 s17, s5, 0
    s_mov_b32 s18, s49
    s_mov_b32 s19, 0x00020000
    s_add_u32 s20, s8, s3
    s_addc_u32 s21, s9, 0
    s_mov_b32 s22, s49
    s_mov_b32 s23, 0x00020000""")
    stamp()
    if DBG and 'fine' not in X and 'fine3' not in X: e(f"    s_memrealtime s[98:99]\n    s_waitcnt lgkmcnt(0)\n    v_writelane_b32 v{vDBG}, s98, 14")
    if DBG and 'vstart' in X: e(f"    v_writelane_b32 v{vDBG}, s94, 13")
    if 'nobar0' not in X: e("    s_barrier")
    c("lane constants")
    e(f"""    s_lshr_b32 {sRHO}, {sWV}, 1
    s_and_b32 {sFB}, {sWV}, 1
    v_and_b32 v{vN}, 31, v{vLANE}
    v_lshrrev_b32 v{vH}, 5, v{vLANE}
    v_lshrrev_b32 v22, 4, v{vLANE}
    v_and_b32 v{vCHB}, 7, v{vLANE}
    v_xor_b32 v{vCHA}, v22, v{vCHB}
    v_lshlrev_b32 v{vCHA}, 4, v{vCHA}
    v_xor_b32 v{vCHB}, 64, v{vCHA}""")
    c("W fragments -> LDS (XST area), 4KB per wave")
    e(f"""    s_lshl_b32 s3, {sWV}, 12
    s_add_u32 {sM0B}, s3, {XST}
    s_add_u32 s48, s3, {ROWS}
    s_mov_b32 m0, s48
    v_lshlrev_b32 v3, 4, v{vLANE}
    s_add_u32 s3, s3, {WS_W}
    v_add_u32 v3, s3, v3""")
    for k in range(4):
        e(f"    buffer_load_dwordx4 v3, {SRD_WS}, 0 offen offset:{1024*k} lds")
    c("x_bin rows 16w..16w+15 -> LDS (swizzled)")
    e(f"""    s_lshl_b32 s3, {sWV}, 11
    s_add_u32 s48, s3, {XBS}
    s_mov_b32 m0, s48
    v_lshrrev_b32 v22, 3, v{vLANE}
    v_lshlrev_b32 v22, 7, v22
    v_add_u32 v22, s3, v22
    v_add_u32 v3, v22, v{vCHA}
    v_add_u32 v4, v22, v{vCHB}
    v_add_u32 v4, 1024, v4
    buffer_load_dwordx4 v3, {SRD_XB}, 0 offen lds
    s_add_u32 m0, m0, 1024
    v_lshlrev_b32 v7, 2, v{vLANE}
    buffer_load_dwordx4 v4, {SRD_XB}, 0 offen lds""")
    c("wc words")
    e(f"""    v_add_u32 v7, {WS_W+32768}, v7
    buffer_load_dword a{aAFA+2}, v7, {SRD_WS}, 0 offen
    buffer_load_dword a{aAFB+2}, v7, {SRD_WS}, 0 offen offset:256""")
    e(f"""    v_bfe_u32 v22, v{vN}, 1, 3
    v_xor_b32 v22, v22, v{vH}
    v_lshlrev_b32 v22, 4, v22
    v_lshl_add_u32 v22, v{vN}, 7, v22
    v_add_u32 v{vXR[0]}, {sM0B}, v22""")
    for s in range(1, 4):
        e(f"    v_xor_b32 v{vXR[s]}, {32*s}, v{vXR[0]}")
    e(f"""    v_bfe_u32 v22, v{vLANE}, 4, 1
    v_and_b32 v{vAFC}, 3, v{vLANE}
    v_lshlrev_b32 v{vAFC}, 3, v{vAFC}
    v_lshl_add_u32 v{vAFC}, v22, 5, v{vAFC}
    v_lshlrev_b32 v{vN4}, 2, v{vN}""")
    e(f"""    v_lshrrev_b32 v40, 3, v{vN}
    v_bfe_u32 v41, v{vN}, 2, 1
    v_cmp_eq_u32 vcc, v41, v{vH}
    v_mov_b32 v42, 0x3f80
    v_and_b32 v43, 1, v40
    v_cndmask_b32 v42, 0, v42, vcc
    v_lshlrev_b32 v43, 4, v43
    v_lshlrev_b32 v42, v43, v42
    v_cmp_gt_u32 vcc, 2, v40
    v_mov_b32 v45, 0
    s_nop 0
    v_cndmask_b32 v43, 0, v42, vcc
    v_cndmask_b32 v44, v42, 0, vcc
    v_accvgpr_write_b32 a{aO}, v43
    v_accvgpr_write_b32 a{aO+1}, v44
    v_accvgpr_write_b32 a{aO+3}, v45
    v_accvgpr_write_b32 a{aAFA+3}, v45
    v_accvgpr_write_b32 a{aAFB+3}, v45""")
    e("K2_ROUND_INIT:")
    c("LDS init: cnt = 0, headn = -1, flag = 0")
    e(f"""    v_lshlrev_b32 v40, 2, v0
    v_mov_b32 v41, 0
    v_cmp_gt_u32 vcc, 192, v0
    s_and_saveexec_b64 s[52:53], vcc
    ds_write_b32 v40, v41 offset:{CNT}
    v_cmp_gt_u32 vcc, 18, v0
    s_and_b64 exec, exec, vcc
    v_cmp_gt_u32 vcc, 16, v0
    v_mov_b32 v42, -1
    s_nop 0
    v_cndmask_b32 v42, 0, v42, vcc
    ds_write_b32 v40, v42 offset:{HEADN}
    s_mov_b64 exec, s[52:53]
    v_and_b32 v22, 3, v0
    v_lshlrev_b32 v22, 1, v22""")
    assert FLAG == HEADN + 64
    e(f"""    s_cmp_lg_u32 {sRND}, 0
    s_cbranch_scc1 K2_ROUND_N""")
    c("segment descriptors: segment r of this thread = (tid>>2) + 128 r ; c = tid&3")
    e(f"""    v_lshrrev_b32 v40, 2, v0
    v_add_u32 v41, 128, v40
    v_cmp_gt_u32 vcc, {NCH}, v41
    v_mul_u32_u24 v40, {CH}, v40
    v_mul_u32_u24 v41, {CH}, v41
    v_add_u32 v40, v40, v22
    v_add_u32 v41, v41, v22
    s_waitcnt vmcnt(0)
    v_and_b32 v42, 0xffff, v{vTAB[0]}
    v_lshrrev_b32 v43, 16, v{vTAB[0]}
    v_and_b32 v44, 0xffff, v{vTAB[1]}
    v_lshrrev_b32 v45, 16, v{vTAB[1]}
    v_sub_u32 v{vLEN[0]}, v43, v42
    v_sub_u32 v{vLEN[1]}, v45, v44
    v_add_lshl_u32 v{vBASE[0]}, v40, v42, 3
    v_add_lshl_u32 v{vBASE[1]}, v41, v44, 3
    v_cndmask_b32 v{vLEN[1]}, 0, v{vLEN[1]}, vcc
K2_ROUND_N:
    v_min_u32 v{vLR[0]}, 32, v{vLEN[0]}
    v_min_u32 v{vLR[1]}, 32, v{vLEN[1]}""")
    seg_masks()
    stamp()
    def rec_loads():
        c("record loads")
        for k in range(4):
            for r in range(2):
                q = (2*k+r)*2
                e(f"    s_mov_b64 exec, {msk(q)}")
                e(f"    buffer_load_dwordx4 {vr(vREC+(2*k+r)*4,4)}, v{vBASE[r]}, {SRD_WS}, 0 offen offset:{64*k}")
        e("    s_mov_b64 exec, -1")
        if 'fine2' in X: stamp_at(12)
    def w_stuff():
        c("x_bin A fragments, Wa'/Wu fragments")
        e(f"""    s_lshl_b32 s3, {sRHO}, 12
    s_add_u32 s3, s3, {XBS}
    s_sub_u32 s3, s3, {sM0B}""")
        for s in range(4):
            e(f"    v_add_u32 v{60+s}, s3, v{vXR[s]}")
        e(f"""    v_lshlrev_b32 v22, 4, v{vLANE}
    s_lshl_b32 s3, {sFB}, 10
    s_add_u32 s3, s3, {ROWS}
    v_add_u32 v23, s3, v22""")
        for s in range(4):
            e(f"    ds_read_b128 {vr(40+4*s,4)}, v{60+s}")
        for s in range(4):
            e(f"    ds_read_b128 {ar(112+4*s,4)}, v23 offset:{16384+2048*s}")
        for s in range(4):
            e(f"    ds_read_b128 {ar(64+4*s,4)}, v23 offset:{24576+2048*s}")
        c("A' address: node = 32rho+n, 8-byte unit (2i+h) ^ (node&7)")
        e(f"""    s_lshl_b32 s3, {sRHO}, 12
    s_lshl_b32 s49, {sFB}, 6
    s_add_u32 s3, s3, s49
    v_and_b32 v22, 7, v{vN}
    v_xor_b32 v22, v22, v{vH}
    v_lshlrev_b32 v22, 3, v22
    v_lshl_add_u32 v22, v{vN}, 7, v22
    v_add_u32 v60, s3, v22
    v_xor_b32 v61, 16, v60
    v_xor_b32 v62, 32, v60
    v_xor_b32 v63, 48, v60
    s_waitcnt lgkmcnt(4)""")
        for s in range(4):
            e(mfma(vr(vA,16), ar(112+4*s,4), vr(40+4*s,4), "0" if s == 0 else vr(vA,16)))
        e("    s_waitcnt lgkmcnt(0)")
        for s in range(4):
            e(mfma(ar(aU,16), vr(40+4*s,4), ar(64+4*s,4), "0" if s == 0 else ar(aU,16)))
        e("    s_nop 7")
        for r in range(0, 16, 2):
            e(f"    v_cvt_pk_bf16_f32 v{48+r//2}, v{vA+r}, v{vA+r+1}")
        for i in range(4):
            e(f"    ds_write_b64 v{60+i}, v[{48+2*i}:{49+2*i}] offset:{A_OFF}")
    e(f"""    s_cmp_lg_u32 {sRND}, 0
    s_cbranch_scc1 K2_LATER""")
    c("all early loads (table, W, x_bin, wc) have landed: vmcnt(0) above")
    e("    s_waitcnt lgkmcnt(0)\n    s_barrier")
    stamp()
    e(f"    s_cmp_ge_u32 {sWV}, 4\n    s_cbranch_scc1 K2_ORD_B")
    rec_loads()
    w_stuff()
    e("    s_branch K2_COUNT0")
    e("K2_ORD_B:")
    w_stuff()
    rec_loads()
    e("    s_branch K2_COUNT0")
    e("K2_LATER:")
    rec_loads()
    e("K2_SKIPW:")
    e("    s_waitcnt vmcnt(0) lgkmcnt(0)\n    s_barrier")
    e("K2_COUNT0:")
    stamp()
    e("K2_COUNT:")
    c("counting pass (records arrive in k order)")
    e("    v_mov_b32 v40, 1")
    cfn = [lambda k, r, p, q: f"    v_lshrrev_b32 v{vA+q}, 22, v{vREC+(2*k+r)*4+2*p}",
           lambda k, r, p, q: f"    s_mov_b64 exec, {msk(q)}\n    ds_add_rtn_u32 v{vRK+q}, v{vA+q}, v40 offset:{CNT}",
           lambda k, r, p, q: "    s_mov_b64 exec, -1" if q % 4 == 3 else ""]
    for k in range(4):
        if k >= 2: e(f"    s_cmp_le_u32 {sKM}, {k}\n    s_cbranch_scc1 K2_CNT_DONE")
        e(f"    s_waitcnt vmcnt({PFN + 6 - 2*k})")
        if 'fine2' in X and k < 2: stamp_at(13 + k)
        for fn in cfn:
            for sl in slot_list([k]): e(fn(*sl))
    e("K2_CNT_DONE:")
    e("    s_mov_b64 exec, -1\n    s_waitcnt lgkmcnt(0)\n    s_barrier")
    stamp()
    c("scan over nodes (every wave redundantly)")
    e(f"""    v_lshlrev_b32 v40, 3, v{vLANE}
    ds_read_b64 v[42:43], v40 offset:{CNT}
    s_waitcnt lgkmcnt(0)
    v_add_u32 v44, 3, v42
    v_add_u32 v45, 3, v43
    v_lshrrev_b32 v44, 2, v44
    v_lshrrev_b32 v45, 2, v45
    v_add_u32 v46, v44, v45
    v_mov_b32 v47, v46""")
    dpp_scan("v47")
    e(f"""    v_sub_u32 v48, v47, v46
    v_add_u32 v49, v48, v44
    v_readlane_b32 {sG}, v47, 63
    v_lshlrev_b32 v50, 5, v48
    v_lshlrev_b32 v51, 5, v49
    v_add_u32 v50, {RECS}, v50
    v_add_u32 v51, {RECS}, v51
    s_cmp_le_u32 {sG}, {GMAX}
    s_cbranch_scc1 K2_FITS""")
    c("overflow: redo this round with 12 records per segment")
    e(f"""    s_barrier
    v_lshlrev_b32 v40, 2, v0
    v_mov_b32 v41, 0
    v_cmp_gt_u32 vcc, 192, v0
    s_and_saveexec_b64 s[52:53], vcc
    ds_write_b32 v40, v41 offset:{CNT}
    s_mov_b64 exec, s[52:53]
    v_min_u32 v{vLR[0]}, 12, v{vLEN[0]}
    v_min_u32 v{vLR[1]}, 12, v{vLEN[1]}
    v_and_b32 v22, 3, v0
    v_lshlrev_b32 v22, 1, v22""")
    seg_masks()
    e(f"""    s_waitcnt lgkmcnt(0)
    s_barrier
    s_branch K2_COUNT
K2_FITS:
    ds_write_b64 v40, v[48:49] offset:{GS}
    ds_write_b64 v40, v[50:51] offset:{GSA}
    s_add_u32 s3, {sG}, 31
    s_lshr_b32 s3, s3, 5
    s_max_u32 s3, s3, 2
    s_add_u32 {sLA}, s3, 1
    s_lshr_b32 {sLA}, {sLA}, 1
    s_lshr_b32 {sLB}, s3, 1
    s_cmp_lt_u32 {sWV}, 4
    s_cselect_b32 {sT}, {sLA}, {sLB}
    s_lshl_b32 {sLA}, {sLA}, 2
    s_lshl_b32 {sLB}, {sLB}, 2
    s_sub_u32 {sDD}, {sLA}, {sLB}
    s_lshl_b32 {sDD}, {sDD}, 3
    s_lshl_b32 {sCAP}, s3, 5
    v_cvt_f32_u32 v52, {sLA}
    v_cvt_f32_u32 v34, {sLB}
    v_rcp_f32 v52, v52
    v_rcp_f32 v34, v34
    s_lshl_b32 s3, {sLA}, 3
    v_cvt_f32_u32 v35, s3
    v_sub_f32 v35, 0.5, v35
    v_mov_b32 v36, 0x41000000
    v_fma_f32 v35, v35, v34, v36
    v_lshrrev_b32 v54, 2, v0
    v_lshlrev_b32 v40, 2, v54
    v_mul_f32 v53, 0.5, v52
    s_waitcnt lgkmcnt(0)""")
    if 'fine' in X: stamp()
    c("node data + scatter lookups")
    e(f"""    ds_read_b32 v42, v40 offset:{GS}
    ds_read_b32 v43, v40 offset:{GS+4}
    ds_read_b32 v44, v40 offset:{CNT}""")
    slot_pass("K2_S1", [lambda k, r, p, q: f"    s_mov_b64 exec, {msk(q)}\n    ds_read_b32 v{vA+q}, v{vA+q} offset:{GSA}"])
    e("    s_mov_b64 exec, -1")
    c("more-records flag")
    e(f"""    v_cmp_gt_u32 vcc, v{vLEN[0]}, v{vLR[0]}
    v_cmp_gt_u32 s[52:53], v{vLEN[1]}, v{vLR[1]}
    v_and_b32 v45, 3, v0
    s_nop 0
    s_or_b64 vcc, vcc, s[52:53]
    s_and_saveexec_b64 s[52:53], vcc
    v_mov_b32 v46, 1
    v_mov_b32 v47, {FLAG}
    ds_write_b32 v47, v46
    s_mov_b64 exec, s[52:53]""")
    if 'fine' in X: stamp()
    c("node jobs: thread (nu = tid>>2, q = tid&3)")
    e(f"""    v_cmp_gt_u32 vcc, {NB}, v54
    s_and_b64 exec, exec, vcc
    s_cbranch_execz K2_NODE_DONE
    v_lshlrev_b32 v46, 7, v54
    v_and_b32 v47, 7, v54
    v_lshl_or_b32 v46, v47, 3, v46
    v_lshlrev_b32 v47, 9, v54
    v_add_u32 v47, {ROWS}, v47
    s_mov_b64 s[54:55], exec
    s_waitcnt lgkmcnt(0)
    v_sub_u32 v43, v43, v42""")
    c("empty nodes: raise a flag, their rows are zeroed after the W fragments have been read")
    e(f"""    v_cmp_eq_u32 vcc, 0, v44
    s_and_b64 exec, exec, vcc
    v_mov_b32 v48, 1
    v_mov_b32 v49, {FLAG+4}
    ds_write_b32 v49, v48
    s_mov_b64 exec, s[54:55]""")
    c("pad slots in the last group")
    e(f"""    v_add_u32 v48, v44, v45
    v_lshlrev_b32 v49, 2, v43
    v_cmp_lt_u32 vcc, v48, v49
    v_lshlrev_b32 v49, 5, v42
    v_lshl_add_u32 v49, v48, 3, v49
    v_mov_b32 v50, 0
    v_mov_b32 v51, 0x3f800000
    s_and_b64 exec, exec, vcc
    ds_write_b64 v49, v[50:51] offset:{RECS}
    s_mov_b64 exec, s[54:55]""")
    c("stream of first / last group")
    e(f"""    v_add_u32 v48, v42, v43
    v_max_u32 v49, 1, v43
    v_add_u32 v49, v42, v49
    v_subrev_u32 v49, 1, v49
    s_lshl_b32 s3, {sLA}, 3
    v_cvt_f32_u32 v50, v42
    v_cvt_f32_u32 v51, v49
    v_fma_f32 v55, v50, v34, v35
    v_fma_f32 v56, v51, v34, v35
    v_fma_f32 v50, v50, v52, v53
    v_fma_f32 v51, v51, v52, v53
    v_cmp_gt_u32 vcc, s3, v42
    v_cmp_gt_u32 s[52:53], s3, v49
    v_cvt_u32_f32 v55, v55
    v_cvt_u32_f32 v56, v56
    v_cvt_u32_f32 v50, v50
    v_cvt_u32_f32 v51, v51
    v_cndmask_b32 v50, v55, v50, vcc
    v_cndmask_b32 v51, v56, v51, s[52:53]
    v_add_u32 v55, 1, v50
    v_mul_u32_u24 v56, {sLA}, v55
    v_mul_u32_u24 v57, {sLB}, v55
    v_add_u32 v57, {sDD}, v57
    v_min_u32 v56, v56, v57
    v_lshlrev_b32 v57, 9, v55
    v_add_u32 v57, {HEADS}, v57
    v_cmp_lt_u32 vcc, v50, v51
    v_lshlrev_b32 v58, 2, v55
    s_and_b64 exec, exec, vcc
    ds_write_b32 v58, v54 offset:{HEADN}
    s_mov_b64 exec, s[54:55]""")
    c("groups q, q+4, q+8, q+12 (fast path)")
    e(f"""    v_add_u32 v59, v42, v45
    v_mov_b32 v60, 1.0
    v_mov_b32 v61, 0""")
    for m in range(4):
        e(f"""    v_cmp_lt_u32 vcc, v59, v48
    s_and_b64 exec, exec, vcc
    v_cmp_ge_u32 vcc, v59, v56
    v_cmp_eq_u32 s[52:53], v59, v56
    v_cmp_eq_u32 s[88:89], v59, v42
    v_lshlrev_b32 v62, 2, v59
    v_cndmask_b32 v63, v47, v57, vcc
    s_or_b64 s[52:53], s[52:53], s[88:89]
    ds_write2st64_b32 v62, v46, v63 offset0:{GAT//256} offset1:{GFT//256}
    v_cndmask_b32 v63, v60, v61, s[52:53]
    v_add_u32 v59, 4, v59
    ds_write_b32 v62, v63 offset:{GKT}""")
    c("rare: more than 16 groups, or a node spanning more than two streams")
    e(f"""    s_mov_b64 exec, s[54:55]
    v_cmp_lt_u32 vcc, 16, v43
    v_add_u32 v59, 1, v50
    v_cmp_lt_u32 s[52:53], v59, v51
    s_nop 1
    s_or_b64 vcc, vcc, s[52:53]
    s_cbranch_vccz K2_NODE_DONE
    v_add_lshl_u32 v58, v42, v45, 2
    v_cmp_eq_u32 vcc, 0, v45
    v_mov_b32 v49, v45
    v_mov_b32 v55, 1.0
    v_mov_b32 v59, 0
    v_cndmask_b32 v56, 1.0, v59, vcc
K2_BULK:
    v_cmp_lt_u32 vcc, v49, v43
    s_and_b64 exec, exec, vcc
    s_cbranch_execz K2_BULK_DONE
    ds_write2st64_b32 v58, v46, v47 offset0:{GAT//256} offset1:{GFT//256}
    ds_write_b32 v58, v56 offset:{GKT}
    v_mov_b32 v56, v55
    v_add_u32 v58, 16, v58
    v_add_u32 v49, 4, v49
    s_branch K2_BULK
K2_BULK_DONE:
    s_mov_b64 exec, s[54:55]
    v_cmp_lt_u32 vcc, 0, v43
    s_and_b64 exec, exec, vcc
    s_cbranch_execz K2_NODE_DONE
K2_BND:
    v_cmp_lt_u32 vcc, v50, v51
    s_and_b64 exec, exec, vcc
    s_cbranch_execz K2_NODE_DONE
    v_add_u32 v50, 1, v50
    v_mul_u32_u24 v55, {sLA}, v50
    v_mul_u32_u24 v56, {sLB}, v50
    v_add_u32 v56, {sDD}, v56
    v_min_u32 v55, v55, v56
    v_add_u32 v61, 1, v50
    v_mul_u32_u24 v60, {sLA}, v61
    v_mul_u32_u24 v61, {sLB}, v61
    v_add_u32 v61, {sDD}, v61
    v_min_u32 v60, v60, v61
    v_lshlrev_b32 v56, 9, v50
    v_add_u32 v56, {HEADS}, v56
    v_lshlrev_b32 v57, 2, v50
    v_lshlrev_b32 v58, 2, v55
    v_mov_b32 v59, 0
    ds_write_b32 v57, v54 offset:{HEADN}
    ds_write_b32 v58, v59 offset:{GKT}
    v_min_u32 v60, v60, v48
    v_add_u32 v55, v55, v45
    s_mov_b64 s[52:53], exec
K2_BND2:
    v_cmp_lt_u32 vcc, v55, v60
    s_and_b64 exec, exec, vcc
    s_cbranch_execz K2_BND2_DONE
    v_lshlrev_b32 v58, 2, v55
    ds_write_b32 v58, v56 offset:{GFT}
    v_add_u32 v55, 4, v55
    s_branch K2_BND2
K2_BND2_DONE:
    s_mov_b64 exec, s[52:53]
    s_branch K2_BND
K2_NODE_DONE:
    s_mov_b64 exec, -1""")
    c("pad groups [G, 64T)")
    e(f"""    s_sub_u32 s3, {sCAP}, {sG}
    s_lshl_b32 s49, s3, 2
    v_cmp_gt_u32 vcc, s49, v0
    s_and_saveexec_b64 s[52:53], vcc
    s_cbranch_execz K2_PADG_DONE
    s_lshl_b32 s48, {sG}, 5
    v_lshlrev_b32 v48, 3, v0
    v_add_u32 v48, s48, v48
    v_mov_b32 v50, 0
    v_mov_b32 v51, 0x3f800000
    ds_write_b64 v48, v[50:51] offset:{RECS}
    v_cmp_gt_u32 vcc, s3, v0
    s_lshl_b32 s48, {sG}, 2
    v_lshlrev_b32 v48, 2, v0
    v_add_u32 v48, s48, v48
    v_mov_b32 v51, {HEADS}
    s_and_b64 exec, exec, vcc
    ds_write2st64_b32 v48, v50, v51 offset0:{GAT//256} offset1:{GFT//256}
    ds_write_b32 v48, v50 offset:{GKT}
K2_PADG_DONE:
    s_mov_b64 exec, s[52:53]
    v_lshlrev_b32 v41, 3, v{vLANE}
    v_add_u32 v41, {DUMMY}, v41
    s_waitcnt lgkmcnt(0)""")
    if 'fine' in X: stamp()
    c("scatter")
    slot_pass("K2_S3", [
        lambda k, r, p, q: f"    v_lshl_add_u32 v{vA+q}, v{vRK+q}, 3, v{vA+q}",
        lambda k, r, p, q: f"    s_mov_b64 exec, {msk(q)}\n    ds_write_b64 v{vA+q}, v[{vREC+(2*k+r)*4+2*p}:{vREC+(2*k+r)*4+2*p+1}]",
        lambda k, r, p, q: "    s_mov_b64 exec, -1" if q % 4 == 3 else ""])
    e("    s_mov_b64 exec, -1")
    if 'fine' in X: stamp()
    c("advance segment pointers for a possible next round; T-dependent addresses")
    for r in range(2):
        e(f"""    v_sub_u32 v{vLEN[r]}, v{vLEN[r]}, v{vLR[r]}
    v_lshl_add_u32 v{vBASE[r]}, v{vLR[r]}, 3, v{vBASE[r]}""")
    e(f"""    s_lshl_b32 s3, {sWV}, 1
    s_mul_i32 s48, s3, {sLA}
    s_mul_i32 s49, s3, {sLB}
    s_add_u32 s49, s49, {sDD}
    s_min_u32 s3, s48, s49
    s_lshl_b32 s48, s3, 5
    s_add_u32 s48, s48, {RECS}
    s_lshl_b32 s49, {sT}, 7
    v_mul_u32_u24 v41, s49, v{vH}
    v_add_u32 v41, s48, v41
    v_bfe_u32 v42, v{vLANE}, 3, 2
    v_lshl_add_u32 v{vSRC_RD}, v42, 3, v41
    v_bfe_u32 v42, v{vN}, 2, 1
    v_mul_u32_u24 v42, s49, v42
    v_add_u32 v42, s48, v42
    v_lshrrev_b32 v43, 3, v{vN}
    v_lshl_add_u32 v42, v43, 5, v42
    v_and_b32 v43, 3, v{vN}
    v_lshl_add_u32 v42, v43, 3, v42
    v_add_u32 v{vEW_RD}, 4, v42
    s_lshl_b32 s48, s3, 2
    s_lshl_b32 s49, {sT}, 4
    v_mul_u32_u24 v41, s49, v{vH}
    v_add_u32 v41, s48, v41
    v_add_u32 v{vGF_RD}, {GFT}, v41
    v_bfe_u32 v42, v{vLANE}, 2, 2
    v_lshl_add_u32 v41, v42, 2, v41
    v_add_u32 v{vGA_RD}, {GAT}, v41
    v_mov_b64 v[56:57], 0
    v_mov_b64 v[58:59], 0
    s_waitcnt lgkmcnt(0)
    s_barrier""")
    stamp()
    c("pipeline prologue")
    for x in src_reads(0): e(x)
    e(f"""    v_mov_b32 v40, {FLAG+4}
    ds_read_b32 v41, v40
    s_waitcnt lgkmcnt(0)""")
    for g in dma_issue():
        for x in g: e(x)
    e(f"    v_add_u32 v{vSRC_RD}, 128, v{vSRC_RD}")
    e(f"    v_readfirstlane_b32 s48, v41")
    rn = reads_next(0, 0)
    for x in rn[4:]: e(x)
    c("Wb'/Wv fragments (first round only) while the first gather is in flight")
    e(f"""    s_cmp_lg_u32 {sRND}, 0
    s_cbranch_scc1 K2_NOW2
    v_lshlrev_b32 v42, 4, v{vLANE}
    v_add_u32 v42, {ROWS}, v42""")
    for k in range(16):
        e(f"    ds_read_b128 {ar(4*k,4)}, v42 offset:{1024*k}")
    e("K2_NOW2:")
    e("    s_waitcnt lgkmcnt(0)")
    for x in after_reads(0, 0): e(x)
    e("    s_barrier")
    c("rare: zero the rows of nodes without edges")
    e(f"""    s_cmp_eq_u32 s48, 0
    s_cbranch_scc1 K2_NOEMPTY
    v_lshrrev_b32 v60, 2, v0
    v_lshlrev_b32 v61, 2, v60
    ds_read_b32 v62, v61 offset:{CNT}
    v_and_b32 v63, 3, v0
    v_lshlrev_b32 v52, 9, v60
    v_lshl_add_u32 v52, v63, 7, v52
    v_add_u32 v52, {ROWS}, v52
    v_mov_b64 v[48:49], 0
    v_mov_b64 v[50:51], 0
    s_waitcnt lgkmcnt(0)
    v_cmp_gt_u32 vcc, {NB}, v60
    v_cmp_eq_u32 s[52:53], 0, v62
    s_nop 1
    s_and_b64 vcc, vcc, s[52:53]
    s_and_saveexec_b64 s[52:53], vcc
    s_cbranch_execz K2_EMPTY2""")
    for k in range(8):
        e(f"    ds_write_b128 v52, v[48:51] offset:{16*k}")
    e(f"""K2_EMPTY2:
    s_mov_b64 exec, s[52:53]
    s_waitcnt lgkmcnt(0)
    s_barrier
K2_NOEMPTY:""")
    e("    s_waitcnt vmcnt(0)")
    for x in rn[:4]: e(x)
    e("    s_waitcnt lgkmcnt(0)")
    for g in dma_issue():
        for x in g: e(x)
    for x in advance_addrs(1): e(x)
    for x in gf_fix(0): e(x)
    for x in mfma_group('A', 0): e(x)
    stamp()
    if 'solo' in X:
        e(f"    s_cmp_ge_u32 {sWV}, 4\n    s_cbranch_scc1 K2_LOOP_END")
    e(f"""    s_nop 15
    s_mov_b32 {sCNT}, {sT}
.p2align 6
K2_LOOP:""")
    INLOOP[0] = True
    tile_body(0)
    e(f"""    s_sub_u32 {sCNT}, {sCNT}, 1
    s_cmp_eq_u32 {sCNT}, 0
    s_cbranch_scc1 K2_LOOP_END""")
    tile_body(1)
    INLOOP[0] = False
    e(f"""    s_sub_u32 {sCNT}, {sCNT}, 1
    s_cmp_lg_u32 {sCNT}, 0
    s_cbranch_scc1 K2_LOOP
K2_LOOP_END:
    s_setprio 0
    s_waitcnt vmcnt(0)
    s_lshl_b32 s3, {sWV}, 11
    v_lshlrev_b32 v40, 4, v{vLANE}
    v_add_u32 v40, s3, v40
    s_mov_b32 m0, {sM0B}
    s_nop 0
    buffer_load_dwordx4 v40, {SRD_XB}, 0 offen lds
    buffer_load_dwordx4 v40, {SRD_XB}, 0 offen offset:1024 lds
    s_waitcnt lgkmcnt(0)""")
    stamp()
    e("    s_barrier")
    stamp()
    c("head fix-up")
    e(f"""    v_lshlrev_b32 v40, 2, v{vLANE}
    ds_read_b32 v41, v40 offset:{HEADN}
    ds_read_b32 v42, v40 offset:{HEADN+4}
    v_mov_b32 v43, {FLAG}
    ds_read_b32 v44, v43
    s_lshl_b32 s3, {sWV}, 1
    v_add_u32 v45, s3, v{vH}
    v_lshlrev_b32 v46, 2, v45
    ds_read_b32 v47, v46 offset:{HEADN}
    v_lshlrev_b32 v45, 9, v45
    v_add_u32 v45, {HEADS}, v45
    v_add_u32 v45, v45, v{vN4}
    s_waitcnt lgkmcnt(0)
    v_readfirstlane_b32 {sMORE}, v44
    v_cmp_eq_u32 vcc, v41, v42
    v_cmp_le_i32 s[52:53], 0, v41
    s_nop 1
    s_and_b64 vcc, vcc, s[52:53]
    s_and_b32 s52, vcc_lo, 0x7fff
    s_cmp_lg_u32 s52, 0
    s_cbranch_scc1 K2_FIX_SLOW
    v_cmp_le_i32 vcc, 0, v47
    s_and_saveexec_b64 s[52:53], vcc
    s_cbranch_execz K2_FIX_DONE
    v_lshlrev_b32 v47, 9, v47
    v_add_u32 v47, {ROWS}, v47
    v_add_u32 v47, v47, v{vN4}""")
    for q in range(4):
        e(f"""    ds_read_b32 v{16+q}, v45 offset:{128*q}
    ds_read_b32 v{20+q}, v47 offset:{128*q}""")
    e("    s_waitcnt lgkmcnt(0)")
    for q in range(4):
        e(f"""    v_add_f32 v{16+q}, v{16+q}, v{20+q}
    ds_write_b32 v47, v{16+q} offset:{128*q}""")
    e(f"""    s_branch K2_FIX_DONE
K2_FIX_SLOW:
    s_mov_b64 s[52:53], exec
    s_cmp_lg_u32 {sWV}, 0
    s_cbranch_scc1 K2_FIX_DONE
    s_mov_b32 s3, 0
K2_FIX_SL:
    v_readlane_b32 s49, v41, s3
    s_nop 3
    s_cmp_lt_i32 s49, 0
    s_cbranch_scc1 K2_FIX_SN
    s_lshl_b32 s49, s49, 9
    s_add_u32 s49, s49, {ROWS}
    s_lshl_b32 s54, s3, 9
    s_add_u32 s54, s54, {HEADS}
    v_lshlrev_b32 v45, 3, v{vLANE}
    v_add_u32 v46, s54, v45
    v_add_u32 v47, s49, v45
    ds_read_b64 v[16:17], v46
    ds_read_b64 v[18:19], v47
    s_waitcnt lgkmcnt(0)
    v_add_f32 v16, v16, v18
    v_add_f32 v17, v17, v19
    ds_write_b64 v47, v[16:17]
    s_waitcnt lgkmcnt(0)
K2_FIX_SN:
    s_add_u32 s3, s3, 1
    s_cmp_lt_u32 s3, 16
    s_cbranch_scc1 K2_FIX_SL
K2_FIX_DONE:
    s_mov_b64 exec, s[52:53]
    s_waitcnt vmcnt(0) lgkmcnt(0)
    s_barrier""")
    e(f"""    s_or_b32 s3, {sRND}, {sMORE}
    s_cmp_eq_u32 s3, 0
    s_cbranch_scc1 K2_EPI""")
    c("rare: several rounds. rows += saved (round>0); if more: save rows and restart")
    e(f"""    s_mul_i32 s3, {sB}, {NB*512}
    s_add_u32 s3, s3, {WS_ACC}
    v_lshlrev_b32 v40, 4, v0
    v_add_u32 v41, {ROWS}, v40
    v_add_u32 v42, s3, v40
    s_mov_b32 s49, 0
K2_MR:
    v_cmp_gt_u32 vcc, {NB*512}, v40
    s_and_saveexec_b64 s[52:53], vcc
    s_cbranch_execz K2_MR_N
    ds_read_b128 v[16:19], v41
    s_cmp_eq_u32 {sRND}, 0
    s_cbranch_scc1 K2_MR_A
    buffer_load_dwordx4 v[20:23], v42, {SRD_WS}, 0 offen
    s_waitcnt vmcnt(0) lgkmcnt(0)
    v_add_f32 v16, v16, v20
    v_add_f32 v17, v17, v21
    v_add_f32 v18, v18, v22
    v_add_f32 v19, v19, v23
    ds_write_b128 v41, v[16:19]
K2_MR_A:
    s_waitcnt lgkmcnt(0)
    s_cmp_eq_u32 {sMORE}, 0
    s_cbranch_scc1 K2_MR_N
    buffer_store_dwordx4 v[16:19], v42, {SRD_WS}, 0 offen
    s_waitcnt vmcnt(0)
K2_MR_N:
    s_mov_b64 exec, s[52:53]
    v_add_u32 v40, 8192, v40
    v_add_u32 v41, 8192, v41
    v_add_u32 v42, 8192, v42
    s_add_u32 s49, s49, 1
    s_cmp_lt_u32 s49, 7
    s_cbranch_scc1 K2_MR
    s_waitcnt vmcnt(0) lgkmcnt(0)
    s_barrier
    s_cmp_eq_u32 {sMORE}, 0
    s_cbranch_scc1 K2_EPI
    s_mov_b32 {sRND}, 1
    s_branch K2_ROUND_INIT""")
    e("K2_EPI:")
    stamp()
    c("wave (rho, fb): node = 32rho+8i+4h+j, feature = 32fb+n")
    DEN, NUM, XP, UU = 64, 80, 96, 112
    e(f"""    s_lshl_b32 s3, {sRHO}, 14
    s_lshl_b32 s49, {sFB}, 7
    s_add_u32 s3, s3, s49
    s_add_u32 s3, s3, {ROWS}
    v_lshlrev_b32 v3, 11, v{vH}
    v_add_u32 v3, v3, v{vN4}
    v_add_u32 v3, s3, v3""")
    for r in range(0, 16, 2):
        i, j = r >> 2, r & 3
        e(f"    ds_read2st64_b32 v[{DEN+r}:{DEN+r+1}], v3 offset0:{(8*i+j)*2} offset1:{(8*i+j+1)*2}")
    for r in range(0, 16, 2):
        i, j = r >> 2, r & 3
        e(f"    ds_read2st64_b32 v[{NUM+r}:{NUM+r+1}], v3 offset0:{(8*i+j)*2+1} offset1:{(8*i+j+1)*2+1}")
    c("x (residual) through transposing reads of the staged rows")
    e(f"""    s_lshl_b32 s3, {sRHO}, 13
    s_lshl_b32 s49, {sFB}, 6
    s_add_u32 s3, s3, s49
    s_add_u32 s3, s3, {XST}
    v_bfe_u32 v4, v{vLANE}, 2, 2
    v_lshl_add_u32 v4, v{vH}, 2, v4
    v_lshlrev_b32 v4, 7, v4
    v_add_u32 v4, v4, v{vAFC}
    v_add_u32 v4, s3, v4""")
    for i in range(4):
        e(f"    ds_read_b64_tr_b16 v[{XP+2*i}:{XP+2*i+1}], v4 offset:{(i>>1)*4096 + (i&1)*1024}")
    e(f"""    s_lshl_b32 s3, {sRHO}, 12
    s_lshl_b32 s49, {sFB}, 6
    s_add_u32 s3, s3, s49
    v_lshlrev_b32 v2, 9, v{vH}
    v_lshl_add_u32 v2, v{vN}, 1, v2
    v_add_u32 v2, s3, v2
    s_mov_b32 s48, {f32bits(1e-6):#x}
    s_mov_b32 s49, {f32bits(1e-6):#x}""")
    for r in range(16):
        e(f"    v_accvgpr_read_b32 v{UU+r}, a{aU+r}")
    if 'fine3' in X: stamp_at(11)
    e("    s_waitcnt lgkmcnt(12)")
    for r in range(0, 16, 2):
        e(f"    v_pk_add_f32 v[{DEN+r}:{DEN+r+1}], v[{DEN+r}:{DEN+r+1}], s[48:49]")
    for r in range(16):
        e(f"    v_rcp_f32 v{DEN+r}, v{DEN+r}")
    e("    s_waitcnt lgkmcnt(0)")
    for r in range(0, 16, 2):
        e(f"    v_pk_fma_f32 v[{UU+r}:{UU+r+1}], v[{NUM+r}:{NUM+r+1}], v[{DEN+r}:{DEN+r+1}], v[{UU+r}:{UU+r+1}]")
    for r in range(16):
        e(f"    v_max_f32 v{UU+r}, 0, v{UU+r}")
    for r in range(0, 16, 2):
        e(f"""    v_lshlrev_b32 v{DEN+r}, 16, v{XP+r//2}
    v_and_b32 v{DEN+r+1}, 0xffff0000, v{XP+r//2}""")
    for r in range(0, 16, 2):
        e(f"    v_pk_add_f32 v[{UU+r}:{UU+r+1}], v[{UU+r}:{UU+r+1}], v[{DEN+r}:{DEN+r+1}]")
    for r in range(0, 16, 2):
        e(f"    v_cvt_pk_bf16_f32 v{NUM+r//2}, v{UU+r}, v{UU+r+1}")
    if 'fine3' in X: stamp_at(12)
    for r in range(0, 16, 2):
        i, j = r >> 2, r & 3
        e(f"""    ds_write_b16 v2, v{NUM+r//2} offset:{A_OFF + (8*i+j)*128}
    ds_write_b16_d16_hi v2, v{NUM+r//2} offset:{A_OFF + (8*i+j+1)*128}""")
    OSP = '' if 'plainout' in X else 'sc1'
    e(f"""    v_lshlrev_b32 v5, 4, v0
    v_add_u32 v6, 8192, v5
    s_waitcnt lgkmcnt(0)""")
    if 'fine3' in X: stamp_at(13)
    e(f"""    s_barrier""")
    if 'fine3' in X: stamp_at(14)
    e(f"""    ds_read_b128 v[64:67], v5 offset:{A_OFF}
    ds_read_b128 v[68:71], v5 offset:{A_OFF+8192}
    s_waitcnt lgkmcnt(1)
    buffer_store_dwordx4 v[64:67], v5, {SRD_OUT}, 0 offen {OSP}
    s_waitcnt lgkmcnt(0)
    buffer_store_dwordx4 v[68:71], v6, {SRD_OUT}, 0 offen {OSP}""")
    stamp()
    if DBG and 'fine' not in X: e(f"    s_waitcnt vmcnt(0)\n    s_memrealtime s[98:99]\n    s_waitcnt lgkmcnt(0)\n    v_writelane_b32 v{vDBG}, s98, 15")
    stamp_flush(sWV, 1)
    e("K2_END:\n    s_endpgm\nK2_CODE_END:")

def desc(name, nv, acc, ns):
    return f""".amdhsa_kernel {name}
  .amdhsa_next_free_vgpr {nv}
  .amdhsa_next_free_sgpr {ns}
  .amdhsa_accum_offset {acc}
  .amdhsa_group_segment_fixed_size 0
  .amdhsa_kernarg_size 96
  .amdhsa_user_sgpr_count 2
  .amdhsa_user_sgpr_kernarg_segment_ptr 1
  .amdhsa_system_sgpr_workgroup_id_x 1
  .amdhsa_float_denorm_mode_32 3
.end_amdhsa_kernel"""

def main(out):
    hdr = open('gather_scatter__edge_featured_mpnn_gatedgcn__graph.s.ref').read().split('\n')
    head = [x for x in hdr if x.startswith(';') and '@launch' not in x and 'Override launch' not in x and 'grid=ceil' not in x]
    for x in head: e(x)
    e(f"; @launch kernel=k1_kernel grid=({NCH+8},1,1) block=(448,1,1) lds={K1_LDS}")
    e(f"; @launch kernel=k2_kernel grid=({NBINS},1,1) block=(512,1,1) lds={K2_LDS}")
    e('.amdgcn_target "amdgcn-amd-amdhsa--gfx950"')
    e(".text")
    gen_k1()
    gen_k2()
    e('.section .rodata,"a"\n.p2align 6')
    e(desc("k1_kernel", 96, 96, 40))
    e(desc("k2_kernel", 256, 128, 100))
    open(out, 'w').write("\n".join(L) + "\n")

if __name__ == "__main__":
    main(sys.argv[1] if len(sys.argv) > 1 else "gather_scatter__edge_featured_mpnn_gatedgcn__graph.s")
```

```python
import sys, struct

N = 25000
E = 800000
NB = 98
NBINS = 256
NCH = 250
CH = 3200

WS_REC = 0
WS_TAB = 0x700000
WS_W = 0x780000
WS_ACC = 0x800000
WS_SIZE = 0x2000000

LOG2E = 1.4426950408889634
def f32bits(x): return struct.unpack('<I', struct.pack('<f', x))[0]
NEG_LOG2E = f32bits(-LOG2E)
BIG = f32bits(2.0**100)

K1_HIST = 0
K1_OFFS = 1024
K1_STAGE = 2048
K1_LDS = 2048 + CH * 8

A_OFF = 0
CNT = 16384
GS = CNT + 768
GSA = GS + 512
HEADN = GSA + 768
FLAG = HEADN + 64
GAT = 18688
GFT = GAT + 4096
GKT = GFT + 4096
RECS = GKT + 4096
DUMMY = RECS + 31232
ROWS = DUMMY + 512
HEADS = ROWS + NB * 512
XST = HEADS + 16 * 512
K2_LDS = XST + 32768
XBS = RECS
assert GAT % 256 == 0 and XST % 128 == 0 and XBS % 128 == 0
GMAX = 960

import os
DBG = int(os.environ.get('DBG','0'))
WS_DBG = 0x1800000
X = set(os.environ.get('X','').split(','))
NST = [0]
vDBG = 38
def stamp(name=None):
    if not DBG: return
    i = NST[0]; NST[0] += 1
    e(f"    s_memtime s[96:97]")
    e(f"    s_waitcnt lgkmcnt(0)")
    e(f"    v_writelane_b32 v{vDBG}, s96, {i}")
NST1 = [0]
def stamp1():
    if not DBG: return
    i = NST1[0]; NST1[0] += 1
    e(f"    s_memtime s[32:33]")
    e(f"    s_waitcnt lgkmcnt(0)")
    e(f"    v_writelane_b32 v61, s32, {i}")
    if i == 0:
        e("    s_memrealtime s[34:35]\n    s_waitcnt lgkmcnt(0)\n    v_writelane_b32 v61, s34, 14")
def stamp_at(i):
    e(f"    s_memtime s[96:97]")
    e(f"    s_waitcnt lgkmcnt(0)")
    e(f"    v_writelane_b32 v{vDBG}, s96, {i}")
def hstamp(word, invert=False):
    if 'hdbg' not in X: return
    lbl = f"HS_{word}"
    e(f"    s_cmp_lg_u32 s29, 0\n    s_cbranch_scc1 {lbl}")
    e("    s_memrealtime s[96:97]\n    s_waitcnt lgkmcnt(0)")
    if invert: e("    s_not_b32 s96, s96")
    e(f"    v_mov_b32 v38, {4*word}\n    v_mov_b32 v39, s96\n    s_mov_b64 s[98:99], exec\n    s_mov_b64 exec, 1\n    global_atomic_umax v38, v39, s[10:11]\n    s_mov_b64 exec, s[98:99]")
    e(f"{lbl}:")
def stamp_flush(wave_sgpr, kid):
    if not DBG: return
    e(f"    s_lshl_b32 s3, s2, 4")
    e(f"    s_add_u32 s3, s3, {wave_sgpr}")
    e(f"    s_lshl_b32 s3, s3, 6")
    e(f"    s_add_u32 s3, s3, {WS_DBG + kid*0x100000}")
    e(f"    s_mov_b64 exec, 0xffff")
    e(f"    v_and_b32 v2, 63, v0")
    e(f"    v_lshlrev_b32 v2, 2, v2")
    e(f"    v_add_u32 v2, s3, v2")
    e(f"    global_store_dword v2, v{vDBG}, {'s[6:7]' if kid else 's[10:11]'}")
    NST[0] = 0
L = []
def e(s=""):
    for line in s.split("\n"):
        L.append(line)
def c(s): L.append("    ; " + s)

def dpp_scan(v):
    for sh in (1, 2, 4, 8):
        e(f"    s_nop 1")
        e(f"    v_add_u32_dpp {v}, {v}, {v} row_shr:{sh} row_mask:0xf bank_mask:0xf")
    e("    s_nop 1")
    e(f"    v_add_u32_dpp {v}, {v}, {v} row_bcast:15 row_mask:0xa bank_mask:0xf")
    e("    s_nop 1")
    e(f"    v_add_u32_dpp {v}, {v}, {v} row_bcast:31 row_mask:0xc bank_mask:0xf")

def gen_k1():
    STP = '' if 'plainst' in X else ('nt sc1' if 'ntsc1' in X else ('nt' if 'ntst' in X else ('sc1' if 'sc1only' in X else 'sc0 sc1')))
    NT = 400
    e(".globl k1_kernel\n.p2align 8\n.type k1_kernel,@function\nk1_kernel:")
    e(f"""    s_cmp_ge_u32 s2, {NCH+8}
    s_cbranch_scc1 K1_END
    s_load_dwordx4 s[4:7], s[0:1], 16
    s_load_dwordx4 s[12:15], s[0:1], 0
    s_load_dwordx2 s[10:11], s[0:1], 88
    s_cmp_ge_u32 s2, {NCH}
    s_cbranch_scc1 K1_PREP
    s_mul_i32 s16, s2, {CH*4}
    v_lshlrev_b32 v1, 4, v0
    v_add_u32 v2, s16, v1
    v_add_u32 v3, {NT*16}, v2
    s_lshr_b32 s17, s16, 1
    v_add_u32 v4, s17, v1
    v_lshlrev_b32 v5, 2, v0
    v_mov_b32 v6, 0
    v_lshrrev_b32 v28, 6, v0
    v_mov_b32 v29, 1
    v_readfirstlane_b32 s23, v28
    v_cmp_gt_u32 vcc, 256, v0
    s_and_saveexec_b64 s[18:19], vcc
    ds_write_b32 v5, v6 offset:{K1_HIST}
    s_mov_b64 exec, s[18:19]
    v_cmp_gt_u32 vcc, {NT}, v0
    s_and_b64 exec, exec, vcc
    s_mov_b64 s[20:21], exec
    s_mov_b32 s22, {-NB & 0xffffffff}
    s_waitcnt lgkmcnt(0)""")
    stamp1()
    LDP = 'nt' if 'ntld' in X else ''
    e(f"""    global_load_dwordx4 v[8:11], v2, s[6:7] {LDP}
    global_load_dwordx4 v[12:15], v3, s[6:7] {LDP}
    s_barrier
    global_load_dwordx4 v[80:83], v2, s[4:5] {LDP}
    global_load_dwordx4 v[84:87], v3, s[4:5] {LDP}
    v_lshrrev_b32 v4, 1, v2
    v_lshrrev_b32 v7, 1, v3
    global_load_dwordx2 v[88:89], v4, s[14:15] {LDP}
    global_load_dwordx2 v[90:91], v7, s[14:15] {LDP}""")
    PF1 = 0
    def prefetch():
        c("light prefetch: every row of x is touched once (brings it into the memory-side cache)")
        e(f"""    s_mul_i32 s17, s2, 100
    v_add_u32 v6, s17, v0
    v_lshlrev_b32 v7, 7, v6
    v_cmp_gt_u32 vcc, 100, v0
    s_and_b64 exec, exec, vcc
    global_load_dword v62, v7, s[12:13]
    s_mov_b64 exec, s[20:21]""")
        if 'nocodepf' not in X:
            c("bring the second kernel's code into the caches (read as data)")
            e(f"""    s_cmp_ge_u32 s2, 16
    s_cbranch_scc1 K1_NOCPF
    s_getpc_b64 s[26:27]
K1_CPF:
    s_add_u32 s26, s26, k2_kernel-K1_CPF
    s_addc_u32 s27, s27, 0
    v_lshlrev_b32 v60, 7, v0
    v_cmp_gt_u32 vcc, (K2_CODE_END-k2_kernel+127)/128, v0
    s_and_b64 exec, exec, vcc
    s_cbranch_execz K1_CPF_SKIP
    global_load_dword v63, v60, s[26:27]
K1_CPF_SKIP:
    s_mov_b64 exec, s[20:21]
K1_NOCPF:""")
    e("    s_waitcnt vmcnt(5)")
    stamp1()
    def binops(k):
        d = 8 + k
        e(f"""    v_mul_u32_u24 v{32+k}, 42800, v{d}
    v_lshrrev_b32 v{32+k}, 22, v{32+k}
    v_mad_i32_i24 v{40+k}, v{32+k}, s22, v{d}
    v_lshlrev_b32 v{32+k}, 2, v{32+k}""")
    for k in range(4): binops(k)
    for k in range(4): e(f"    ds_add_rtn_u32 v{48+k}, v{32+k}, v29 offset:{K1_HIST}")
    e(f"    s_waitcnt vmcnt({4+PF1})")
    for k in range(4, 8): binops(k)
    for k in range(4, 8): e(f"    ds_add_rtn_u32 v{48+k}, v{32+k}, v29 offset:{K1_HIST}")
    e("    s_waitcnt lgkmcnt(0)")
    stamp1()
    e("""    s_barrier
    s_mov_b64 exec, -1
    v_and_b32 v30, 63, v0
    v_lshlrev_b32 v31, 4, v30""")
    e(f"""    ds_read_b128 v[8:11], v31 offset:{K1_HIST}
    s_waitcnt lgkmcnt(0)
    v_add_u32 v12, v8, v9
    v_add_u32 v13, v12, v10
    v_add_u32 v14, v13, v11
    v_mov_b32 v15, v14""")
    dpp_scan("v15")
    e(f"""    v_sub_u32 v16, v15, v14
    v_add_u32 v17, v16, v8
    v_add_u32 v18, v16, v12
    v_add_u32 v19, v16, v13
    ds_write_b128 v31, v[16:19] offset:{K1_OFFS}
    v_lshl_or_b32 v20, v17, 16, v16
    v_lshl_or_b32 v21, v18, 16, v17
    v_lshl_or_b32 v22, v19, 16, v18
    v_lshl_or_b32 v23, v15, 16, v19
    s_lshl_b32 s24, s2, 10
    s_add_u32 s24, s24, {WS_TAB}
    v_add_u32 v24, s24, v31
    s_waitcnt lgkmcnt(0)""")
    stamp1()
    e("    s_mov_b64 exec, s[20:21]")
    for k in range(8):
        e(f"    ds_read_b32 v{8+k}, v{32+k} offset:{K1_OFFS}")
    e("    s_waitcnt vmcnt(0)")
    e(f"""    s_cmp_lg_u32 s23, 0
    s_cbranch_scc1 K1_NOTAB2
    s_mov_b64 exec, -1
    global_store_dwordx4 v24, v[20:23], s[10:11] {STP}
    s_mov_b64 exec, s[20:21]
K1_NOTAB2:""")
    if 'nopf1' not in X: prefetch()
    for k in range(8):
        e(f"""    v_lshlrev_b32 v{64+2*k}, 7, v{80+k}
    v_lshl_or_b32 v{64+2*k}, v{40+k}, 24, v{64+2*k}""")
    for k in range(8):
        src = 88 + k//2
        e(f"    v_and_b32 v{65+2*k}, 0xffff, v{src}" if k % 2 == 0 else f"    v_lshrrev_b32 v{65+2*k}, 16, v{src}")
    e("    s_waitcnt lgkmcnt(0)")
    for k in range(8):
        e(f"    v_add_lshl_u32 v{8+k}, v{8+k}, v{48+k}, 3")
    for k in range(8):
        e(f"    ds_write_b64 v{8+k}, v[{64+2*k}:{65+2*k}] offset:{K1_STAGE}")
    e("    s_waitcnt lgkmcnt(0)")
    stamp1()
    e("    s_barrier")
    for k in range(4):
        e(f"    ds_read_b128 v[{8+4*k}:{11+4*k}], v1 offset:{K1_STAGE+6400*k}")
    e(f"""    s_mul_i32 s24, s2, {CH*8}
    v_add_u32 v24, s24, v1""")
    for k in range(1, 4):
        e(f"    v_add_u32 v{24+k}, {6400*k}, v24")
    for k in range(4):
        e(f"    s_waitcnt lgkmcnt({3-k})\n    global_store_dwordx4 v{24+k}, v[{8+4*k}:{11+4*k}], s[10:11] {STP}")
    stamp1()
    if DBG:
        e("    s_waitcnt vmcnt(0)")
        stamp1()
        e("    s_memrealtime s[34:35]\n    s_waitcnt lgkmcnt(0)\n    v_writelane_b32 v61, s34, 15")
        e(f"""    s_lshl_b32 s3, s2, 4
    s_add_u32 s3, s3, s23
    s_lshl_b32 s3, s3, 6
    s_add_u32 s3, s3, {WS_DBG}
    s_mov_b64 exec, 0xffff
    v_and_b32 v2, 63, v0
    v_lshlrev_b32 v2, 2, v2
    v_add_u32 v2, s3, v2
    global_store_dword v2, v61, s[10:11]""")
    e("    s_endpgm")
    e(f"""K1_PREP:
    s_sub_u32 s16, s2, {NCH}
    s_and_b32 s30, s16, 1
    s_lshr_b32 s16, s16, 1
    s_mov_b32 s26, 1.0
    s_cmp_eq_u32 s16, 0
    s_cbranch_scc1 K1_P0
    s_cmp_eq_u32 s16, 1
    s_cbranch_scc1 K1_P1
    s_cmp_eq_u32 s16, 2
    s_cbranch_scc1 K1_P2
    s_load_dwordx2 s[24:25], s[0:1], 56
    s_branch K1_PJ
K1_P0:
    s_load_dwordx2 s[24:25], s[0:1], 40
    s_mov_b32 s26, {NEG_LOG2E:#x}
    s_branch K1_PJ
K1_P1:
    s_load_dwordx2 s[24:25], s[0:1], 64
    s_branch K1_PJ
K1_P2:
    s_load_dwordx2 s[24:25], s[0:1], 32
    s_mov_b32 s26, {NEG_LOG2E:#x}
K1_PJ:
    s_load_dwordx2 s[28:29], s[0:1], 48
    s_lshl_b32 s31, s30, 8
    v_add_u32 v9, s31, v0
    v_and_b32 v1, 63, v9
    v_lshrrev_b32 v2, 6, v9
    v_and_b32 v3, 31, v1
    v_lshrrev_b32 v4, 5, v1
    v_lshrrev_b32 v5, 1, v2
    v_and_b32 v6, 1, v2
    v_lshlrev_b32 v7, 11, v5
    v_lshl_add_u32 v7, v4, 10, v7
    v_lshl_add_u32 v7, v6, 6, v7
    v_lshl_add_u32 v7, v3, 1, v7
    s_lshl_b32 s17, s16, 13
    s_add_u32 s17, s17, {WS_W}
    v_lshlrev_b32 v8, 4, v9
    v_add_u32 v8, s17, v8
    s_waitcnt lgkmcnt(0)
    v_cmp_gt_u32 vcc, 256, v0
    s_and_saveexec_b64 s[18:19], vcc
    s_cbranch_execz K1_PWC""")
    for j in range(8):
        e(f"    global_load_ushort v{10+j}, v7, s[24:25] offset:{128*j}")
    e("    s_waitcnt vmcnt(0)")
    for j in range(8):
        e(f"""    v_lshlrev_b32 v{10+j}, 16, v{10+j}
    v_mul_f32 v{10+j}, s26, v{10+j}""")
    for j in range(4):
        e(f"    v_cvt_pk_bf16_f32 v{20+j}, v{10+2*j}, v{11+2*j}")
    e(f"""    global_store_dwordx4 v8, v[20:23], s[10:11]
K1_PWC:
    s_mov_b64 exec, s[18:19]
    s_or_b32 s17, s16, s30
    s_cmp_lg_u32 s17, 0
    s_cbranch_scc1 K1_END
    v_subrev_u32 v9, 256, v0
    v_and_b32 v3, 31, v9
    v_bfe_u32 v4, v9, 5, 1
    v_cmp_gt_u32 vcc, 128, v9
    s_and_saveexec_b64 s[18:19], vcc
    s_cbranch_execz K1_END
    v_lshrrev_b32 v6, 6, v9
    v_lshlrev_b32 v7, 6, v6
    v_lshl_add_u32 v7, v3, 1, v7
    global_load_ushort v10, v7, s[28:29]
    v_lshlrev_b32 v8, 2, v9
    v_add_u32 v8, {WS_W+32768}, v8
    v_mov_b32 v12, {BIG:#x}
    s_waitcnt vmcnt(0)
    v_lshlrev_b32 v10, 16, v10
    v_mul_f32 v10, {NEG_LOG2E:#x}, v10
    v_cvt_pk_bf16_f32 v11, v10, v12
    v_cmp_eq_u32 vcc, 0, v4
    s_nop 1
    v_cndmask_b32 v11, 0, v11, vcc
    global_store_dword v8, v11, s[10:11]
K1_END:
    s_endpgm""")

S_X, S_WS, S_OUT = "s[4:5]", "s[6:7]", "s[8:9]"
SRD_X, SRD_XB, SRD_OUT, SRD_WS = "s[12:15]", "s[16:19]", "s[20:23]", "s[24:27]"
sB, sWV, sT, sCNT, sN0, sNL = "s28", "s29", "s30", "s31", "s33", "s34"
s4T, sG, sRND, sMORE, sKM = "s35", "s36", "s37", "s38", "s39"
sMSK22, sMSKA, sM0B = "s45", "s46", "s47"
sLA, sLB, sDD, sCAP = "s40", "s41", "s42", "s43"
sRHO, sFB = "s50", "s51"
sMASK = 56

GA, HA, GB, HB = 64, 80, 96, 112
ACC = {'A': 56, 'B': 58}
vXR = [2, 3, 4, 5]
vSRC_RD, vEW_RD, vGA_RD, vGF_RD = 6, 7, 8, 9
vCHA, vCHB, vAFC, vN4 = 10, 11, 12, 13
vN, vH = 14, 15
vGF = [16, 20]
vSRC = 24
vGA, vAFA = 28, 29
vLEN, vBASE = (30, 31), (32, 33)
vXP = 34
vGK = [40, 44]
vUT = 48
aWB, aWV, aAFA, aAFB, aO, aU = 0, 32, 80, 84, 88, 96
aX = [64, 112]

INLOOP = [False]
def mfma(d, a, b, cc):
    if 'nomfma' in X and INLOOP[0]: return "    s_nop 0"
    return f"    v_mfma_f32_32x32x16_bf16 {d}, {a}, {b}, {cc}"
def vr(b, n): return f"v[{b}:{b+n-1}]"
def ar(b, n): return f"a[{b}:{b+n-1}]"

def mfma_group(fb, xb):
    G, H = (GA, HA) if fb == 'A' else (GB, HB)
    f = 0 if fb == 'A' else 1
    af = aAFA if fb == 'A' else aAFB
    out = [mfma(vr(G, 16), ar(aO, 4), ar(af, 4), "0")]
    gs_ = [mfma(vr(G, 16), ar(aX[xb] + 4*s, 4), ar(aWB + (s*2+f)*4, 4), vr(G, 16)) for s in range(4)]
    hs_ = [mfma(vr(H, 16), ar(aX[xb] + 4*s, 4), ar(aWV + (s*2+f)*4, 4), "0" if s == 0 else vr(H, 16)) for s in range(4)]
    if 'swapop' in X:
        gs_ = gs_
    if 'share' in X:
        for s in range(4): out += [gs_[s], hs_[s]]
    else:
        out += gs_ + hs_
    return out

def dma_issue():
    grp = []
    for k in range(4):
        ch = vCHA if k % 2 == 0 else vCHB
        g = [f"    v_and_or_b32 v{vSRC+k}, v{vSRC+k}, {sMSK22}, v{ch}"]
        g.append(f"    s_mov_b32 m0, {sM0B}" if k == 0 else "    s_add_u32 m0, m0, 1024")
        g.append("    s_nop 0")
        if 'nodma' not in X: g.append(f"    buffer_load_dwordx4 v{vSRC+k}, {SRD_X}, 0 offen lds")
        grp.append(g)
    return grp

def src_reads(o1):
    return [f"    ds_read2_b32 v[{vSRC}:{vSRC+1}], v{vSRC_RD} offset0:{32*o1} offset1:{32*o1+8}",
            f"    ds_read2_b32 v[{vSRC+2}:{vSRC+3}], v{vSRC_RD} offset0:{32*o1+16} offset1:{32*o1+24}"]

def reads_next(xb, o1=0):
    o = []
    for s in range(4):
        o.append(f"    ds_read_b128 {ar(aX[xb]+4*s,4)}, v{vXR[s]}")
    o.append(f"    ds_read_b32 v{vGA}, v{vGA_RD} offset:{16*o1}")
    o += src_reads(o1)
    o.append(f"    ds_read_b32 a{aO+2}, v{vEW_RD} offset:{128*o1}")
    return o

def after_reads(npar, o1=0):
    return [f"    v_bitop3_b32 v{vAFA}, v{vGA}, {sMSKA}, v{vAFC} bitop3:0x6a",
            f"    ds_read_b64_tr_b16 {ar(aAFA,2)}, v{vAFA}",
            f"    ds_read_b64_tr_b16 {ar(aAFB,2)}, v{vAFA} offset:64",
            f"    ds_read_b128 {vr(vGF[npar],4)}, v{vGF_RD} offset:{16*o1}",
            f"    ds_read_b128 {vr(vGK[npar],4)}, v{vGF_RD} offset:{GKT-GFT+16*o1}"]
def gf_fix(npar):
    return [f"    v_add_u32 v{vGF[npar]+i}, v{vGF[npar]+i}, v{vN4}" for i in range(4)]

def advance_addrs(m):
    return [f"    v_add_u32 v{vEW_RD}, {128*m}, v{vEW_RD}", f"    v_add_u32 v{vSRC_RD}, {128*m}, v{vSRC_RD}",
            f"    v_add_u32 v{vGA_RD}, {16*m}, v{vGA_RD}", f"    v_add_u32 v{vGF_RD}, {16*m}, v{vGF_RD}"]

def phase(fb, par, mf, ex1, ex2):
    G, H = (GA, HA) if fb == 'A' else (GB, HB)
    d = ACC[fb]
    nov = 'novalu' in X
    def run(op, mfs, mpos, ex):
        k = 0
        for j in range(17):
            while k < len(mfs) and mpos[k] == j:
                e(mfs[k]); k += 1
            for x in ex.get(j, []): e(x)
            if j < 16: e(f"    {op} v{G+j}, v{G+j}" if not nov else "    s_nop 0")
        assert k == len(mfs)
    run("v_exp_f32", mf[0:5], [0, 3, 6, 9, 12], ex1)
    for j in range(0, 16, 2):
        e(f"    v_pk_add_f32 v[{G+j}:{G+j+1}], v[{G+j}:{G+j+1}], 1.0 op_sel_hi:[1,0]" if not nov else "    s_nop 0")
    run("v_rcp_f32", mf[5:9], [0, 3, 6, 9], ex2)
    f = 0 if fb == 'A' else 1
    clump = 'noclump' not in X
    xs = [34, 36, 60, 62]
    prev = d
    wr = []
    for i in range(4):
        g = G + 4*i; h = H + 4*i; k = vGK[par] + i
        u = vUT + 4*(i & 1); t = u + 2
        x = xs[i] if clump else vXP + 2*(i & 1)
        dst = (x if i < 3 else d) if clump else d
        if not nov:
            e(f"    v_pk_mul_f32 v[{t}:{t+1}], v[{g}:{g+1}], v[{h}:{h+1}]")
            e(f"    v_pk_add_f32 v[{u}:{u+1}], v[{g}:{g+1}], v[{g+2}:{g+3}]")
            e(f"    v_pk_fma_f32 v[{t}:{t+1}], v[{g+2}:{g+3}], v[{h+2}:{h+3}], v[{t}:{t+1}]")
            e(f"    v_add_f32 v{x}, v{u}, v{u+1}")
            e(f"    v_add_f32 v{x+1}, v{t}, v{t+1}")
            e(f"    v_pk_fma_f32 v[{dst}:{dst+1}], v[{prev}:{prev+1}], v[{k & ~1}:{(k & ~1)+1}], v[{x}:{x+1}] op_sel:[0,{k&1},0] op_sel_hi:[1,{k&1},1]")
            w = f"    ds_write2_b32 v{vGF[par]+i}, v{dst}, v{dst+1} offset0:{f*32} offset1:{64+f*32}"
            if 'nowr' not in X:
                if clump: wr.append(w)
                else: e(w)
            prev = dst
    for w in wr: e(w)

def tile_body(par):
    npar = 1 - par
    dm = dma_issue()
    ex1 = {1: ["    s_waitcnt vmcnt(0)"] + reads_next(npar, par)}
    ex2 = {1: ["    s_waitcnt lgkmcnt(0)"] + after_reads(npar, par), 4: dm[0], 7: dm[1], 10: dm[2], 12: dm[3]}
    if 'nodmaclump' not in X:
        ex2 = {1: ["    s_waitcnt lgkmcnt(0)"] + after_reads(npar, par), 4: dm[0] + dm[1] + dm[2] + dm[3]}
    if par == 1: ex2[14] = advance_addrs(2)
    exB1 = {2: gf_fix(npar)}
    pa, pb = 3 - 2*par, 2 - 2*par
    if 'prioAB' in X: pa, pb = 1, 0
    if 'prioBA' in X: pa, pb = 0, 1
    if 'prio2' in X: pa, pb = (1, 1) if par == 0 else (0, 0)
    if 'noprio' not in X: e(f"    s_setprio {pa}")
    phase('A', par, mfma_group('B', par), ex1, ex2)
    if 'noprio' not in X: e(f"    s_setprio {pb}")
    mA = mfma_group('A', npar)
    mA[0] = ("    s_waitcnt lgkmcnt(4)\n" if 'nowr' not in X and 'novalu' not in X else "    s_waitcnt lgkmcnt(0)\n") + mA[0]
    phase('B', par, mA, exB1, {})

vLANE = 1
vTAB = (16, 17)
vLR, vREM = (18, 19), (20, 21)
vREC = 64
vA = 96
vRK = 112
def slot_list(ks):
    for k in ks:
        for r in range(2):
            for p in range(2):
                yield k, r, p, (2*k+r)*2 + p
def msk(q): return f"s[{sMASK+2*q}:{sMASK+2*q+1}]"

def slot_pass(name, fns):
    for fn in fns:
        for sl in slot_list([0, 1]):
            e(fn(*sl))
    for k in (2, 3):
        e(f"    s_cmp_le_u32 {sKM}, {k}\n    s_cbranch_scc1 {name}_DONE")
        for fn in fns:
            for sl in slot_list([k]):
                e(fn(*sl))
    e(f"{name}_DONE:")

def seg_masks():
    c("per-round segment limits and slot masks")
    for r in range(2):
        e(f"    v_sub_u32 v{vREM[r]}, v{vLR[r]}, v22")
    for k, r, p, q in slot_list(range(4)):
        e(f"    v_cmp_lt_i32 {msk(q)}, {8*k+p}, v{vREM[r]}")
    q20, q21, q30, q31 = 8, 10, 12, 14
    e(f"""    s_mov_b32 {sKM}, 2
    s_or_b64 s[52:53], {msk(q20)}, {msk(q21)}
    s_cmp_lg_u64 s[52:53], 0
    s_cselect_b32 {sKM}, 3, {sKM}
    s_or_b64 s[52:53], {msk(q30)}, {msk(q31)}
    s_cmp_lg_u64 s[52:53], 0
    s_cselect_b32 {sKM}, 4, {sKM}""")

PFN = 2 if 'pf2' in X else 0
P1_HIST, P1_OFFS = 16384, 17408
P1_STAGE = RECS
S_DBG = "s[10:11]"
KNAME = "gather_scatter__edge_featured_mpnn_gatedgcn__graph_kernel"
def gen_k2():
    STP = 'sc0 sc1'
    NT = 400
    e(f".globl {KNAME}\n.p2align 8\n.type {KNAME},@function\n{KNAME}:")
    e(f"""    s_cmp_ge_u32 s2, {NBINS}
    s_cbranch_scc1 K2_END
    s_load_dwordx4 s[56:59], s[0:1], 16
    s_load_dwordx4 s[60:63], s[0:1], 0
    s_load_dwordx4 s[64:67], s[0:1], 32
    s_load_dwordx4 s[68:71], s[0:1], 48
    s_load_dwordx4 s[72:75], s[0:1], 64
    s_load_dwordx4 s[76:79], s[0:1], 80
    s_and_b32 {sB}, s2, 7
    s_lshl_b32 {sB}, {sB}, 5
    s_lshr_b32 s3, s2, 3
    s_add_u32 {sB}, {sB}, s3
    s_mul_i32 {sN0}, {sB}, {NB}
    s_sub_u32 {sNL}, {N}, {sN0}
    s_min_u32 {sNL}, {sNL}, {NB}
    v_lshrrev_b32 v2, 6, v0
    v_and_b32 v{vLANE}, 63, v0
    v_readfirstlane_b32 {sWV}, v2
    s_mov_b32 {sMSK22}, 0x3fffff
    s_mov_b32 {sMSKA}, 0x3fb8
    s_mov_b32 {sRND}, 0""")
    c("phase-1 addresses")
    e(f"""    s_mul_i32 s48, s2, {CH*4}
    v_lshlrev_b32 v40, 4, v0
    v_add_u32 v41, s48, v40
    v_add_u32 v42, {NT*16}, v41
    v_lshrrev_b32 v43, 1, v41
    v_lshrrev_b32 v44, 1, v42
    v_lshlrev_b32 v45, 2, v0
    v_mov_b32 v46, 0
    v_cmp_gt_u32 vcc, 256, v0
    s_and_saveexec_b64 s[52:53], vcc
    ds_write_b32 v45, v46 offset:{P1_HIST}
    s_mov_b64 exec, s[52:53]
    v_mov_b32 v46, 1
    v_cmp_gt_u32 vcc, {NT}, v0
    s_and_b64 s[54:55], exec, vcc
    s_lshl_b32 s3, {sN0}, 7
    s_lshl_b32 s49, {sNL}, 7
    s_waitcnt lgkmcnt(0)""")
    if DBG:
        e(f"    s_memrealtime s[98:99]\n    s_waitcnt lgkmcnt(0)\n    v_writelane_b32 v{vDBG}, s98, 13")
    e(f"""    s_cmp_ge_u32 s2, {NCH}
    s_cbranch_scc1 K2_P1A
    s_mov_b64 exec, s[54:55]
    global_load_dwordx4 v[64:67], v41, s[58:59]
    global_load_dwordx4 v[68:71], v42, s[58:59]
    s_mov_b64 exec, -1
K2_P1A:
    s_mov_b32 s4, s60
    s_mov_b32 s5, s61
    s_mov_b32 s6, s78
    s_mov_b32 s7, s79
    s_mov_b32 s10, s76
    s_mov_b32 s11, s77
    s_mov_b32 s24, s78
    s_mov_b32 s25, s79
    s_mov_b32 s26, {WS_SIZE}
    s_mov_b32 s27, 0x00020000
    s_mov_b32 s12, s60
    s_mov_b32 s13, s61
    s_mov_b32 s14, {N*128}
    s_mov_b32 s15, 0x00020000
    s_add_u32 s16, s60, s3
    s_addc_u32 s17, s61, 0
    s_mov_b32 s18, s49
    s_mov_b32 s19, 0x00020000
    s_add_u32 s20, s74, s3
    s_addc_u32 s21, s75, 0
    s_mov_b32 s22, s49
    s_mov_b32 s23, 0x00020000""")
    hstamp(1, True); hstamp(2)
    c("lane constants")
    e(f"""    s_lshr_b32 {sRHO}, {sWV}, 1
    s_and_b32 {sFB}, {sWV}, 1
    v_and_b32 v{vN}, 31, v{vLANE}
    v_lshrrev_b32 v{vH}, 5, v{vLANE}
    v_lshrrev_b32 v22, 4, v{vLANE}
    v_and_b32 v{vCHB}, 7, v{vLANE}
    v_xor_b32 v{vCHA}, v22, v{vCHB}
    v_lshlrev_b32 v{vCHA}, 4, v{vCHA}
    v_xor_b32 v{vCHB}, 64, v{vCHA}
    s_lshl_b32 s3, {sWV}, 12
    s_add_u32 {sM0B}, s3, {XST}
    s_barrier""")
    e(f"""    s_cmp_ge_u32 s2, {NCH}
    s_cbranch_scc1 K2_P1B
    s_mov_b64 exec, s[54:55]
    global_load_dwordx4 v[96:99], v41, s[56:57]
    global_load_dwordx4 v[100:103], v42, s[56:57]
    global_load_dwordx2 v[104:105], v43, s[62:63]
    global_load_dwordx2 v[106:107], v44, s[62:63]
    s_mov_b64 exec, -1
K2_P1B:""")
    def w_dma():
        c("raw weights -> LDS (ROWS area): [w_b | w_v | w_a | w_u], wave w loads half (w&1) of matrix w>>1")
        e(f"""    s_cmp_eq_u32 {sRHO}, 1
    s_cselect_b32 s80, s72, s66
    s_cselect_b32 s81, s73, s67
    s_cmp_eq_u32 {sRHO}, 2
    s_cselect_b32 s80, s64, s80
    s_cselect_b32 s81, s65, s81
    s_cmp_eq_u32 {sRHO}, 3
    s_cselect_b32 s80, s70, s80
    s_cselect_b32 s81, s71, s81
    s_lshl_b32 s3, {sWV}, 12
    s_add_u32 s48, s3, {ROWS}
    s_mov_b32 m0, s48
    s_lshl_b32 s3, {sFB}, 12
    v_lshlrev_b32 v36, 4, v{vLANE}
    v_add_u32 v36, s3, v36""")
        for k in range(4):
            e(f"    global_load_lds_dwordx4 v36, s[80:81] offset:{1024*k}")
    def x_dma():
        c("x_bin rows 16w..16w+15 -> LDS (XST area, swizzled)")
        e(f"""    s_lshl_b32 s3, {sWV}, 11
    s_add_u32 s48, s3, {XST}
    s_mov_b32 m0, s48
    v_lshrrev_b32 v22, 3, v{vLANE}
    v_lshlrev_b32 v22, 7, v22
    v_add_u32 v22, s3, v22
    v_add_u32 v36, v22, v{vCHA}
    v_add_u32 v37, v22, v{vCHB}
    v_add_u32 v37, 1024, v37
    buffer_load_dwordx4 v36, {SRD_XB}, 0 offen lds
    s_add_u32 m0, m0, 1024
    v_lshlrev_b32 v39, 1, v{vN}
    buffer_load_dwordx4 v37, {SRD_XB}, 0 offen lds
    global_load_ushort v34, v39, s[68:69]
    global_load_ushort v35, v39, s[68:69] offset:64""")
    WL = 'wlate' in X; XL = 'xlate' in X
    if not WL: w_dma()
    if not XL: x_dma()
    NY = (0 if WL else 4) + (0 if XL else 4)
    e(f"""    v_bfe_u32 v22, v{vN}, 1, 3
    v_xor_b32 v22, v22, v{vH}
    v_lshlrev_b32 v22, 4, v22
    v_lshl_add_u32 v22, v{vN}, 7, v22
    v_add_u32 v{vXR[0]}, {sM0B}, v22""")
    for s_ in range(1, 4):
        e(f"    v_xor_b32 v{vXR[s_]}, {32*s_}, v{vXR[0]}")
    e(f"""    v_bfe_u32 v22, v{vLANE}, 4, 1
    v_and_b32 v{vAFC}, 3, v{vLANE}
    v_lshlrev_b32 v{vAFC}, 3, v{vAFC}
    v_lshl_add_u32 v{vAFC}, v22, 5, v{vAFC}
    v_lshlrev_b32 v{vN4}, 2, v{vN}""")
    e(f"""    v_lshrrev_b32 v48, 3, v{vN}
    v_bfe_u32 v49, v{vN}, 2, 1
    v_cmp_eq_u32 vcc, v49, v{vH}
    v_mov_b32 v50, 0x3f80
    v_and_b32 v51, 1, v48
    v_cndmask_b32 v50, 0, v50, vcc
    v_lshlrev_b32 v51, 4, v51
    v_lshlrev_b32 v50, v51, v50
    v_cmp_gt_u32 vcc, 2, v48
    v_mov_b32 v53, 0
    s_nop 0
    v_cndmask_b32 v51, 0, v50, vcc
    v_cndmask_b32 v52, v50, 0, vcc
    v_accvgpr_write_b32 a{aO}, v51
    v_accvgpr_write_b32 a{aO+1}, v52
    v_accvgpr_write_b32 a{aO+3}, v53
    v_accvgpr_write_b32 a{aAFA+3}, v53
    v_accvgpr_write_b32 a{aAFB+3}, v53""")
    DST, BIN4, NU, RK, SRC, EE, REC = 64, 72, 80, 88, 96, 104, 108
    e(f"""    s_cmp_ge_u32 s2, {NCH}
    s_cbranch_scc1 K2_P1LATE
    s_mov_b64 exec, s[54:55]
    s_mov_b32 s48, {-NB & 0xffffffff}
    s_waitcnt vmcnt({5+NY})""")
    def binops(k):
        e(f"""    v_mul_u32_u24 v{BIN4+k}, 42800, v{DST+k}
    v_lshrrev_b32 v{BIN4+k}, 22, v{BIN4+k}
    v_mad_i32_i24 v{NU+k}, v{BIN4+k}, s48, v{DST+k}
    v_lshlrev_b32 v{BIN4+k}, 2, v{BIN4+k}""")
    for k in range(4): binops(k)
    for k in range(4): e(f"    ds_add_rtn_u32 v{RK+k}, v{BIN4+k}, v46 offset:{P1_HIST}")
    e(f"    s_waitcnt vmcnt({4+NY})")
    for k in range(4, 8): binops(k)
    for k in range(4, 8): e(f"    ds_add_rtn_u32 v{RK+k}, v{BIN4+k}, v46 offset:{P1_HIST}")
    e(f"""    s_waitcnt lgkmcnt(0)
    s_barrier
    s_mov_b64 exec, -1
    v_lshlrev_b32 v47, 4, v{vLANE}
    ds_read_b128 v[48:51], v47 offset:{P1_HIST}
    s_waitcnt lgkmcnt(0)
    v_add_u32 v52, v48, v49
    v_add_u32 v53, v52, v50
    v_add_u32 v54, v53, v51
    v_mov_b32 v55, v54""")
    dpp_scan("v55")
    e(f"""    v_sub_u32 v56, v55, v54
    v_add_u32 v57, v56, v48
    v_add_u32 v58, v56, v52
    v_add_u32 v59, v56, v53
    ds_write_b128 v47, v[56:59] offset:{P1_OFFS}
    v_lshl_or_b32 v60, v57, 16, v56
    v_lshl_or_b32 v61, v58, 16, v57
    v_lshl_or_b32 v62, v59, 16, v58
    v_lshl_or_b32 v63, v55, 16, v59
    s_lshl_b32 s3, s2, 10
    s_add_u32 s3, s3, {WS_TAB}
    v_add_u32 v47, s3, v47
    s_waitcnt lgkmcnt(0)
    s_mov_b64 exec, s[54:55]""")
    for k in range(8):
        e(f"    ds_read_b32 v{48+k}, v{BIN4+k} offset:{P1_OFFS}")
    e(f"""    s_waitcnt vmcnt({NY})
    s_cmp_lg_u32 {sWV}, 0
    s_cbranch_scc1 K2_NOTAB
    s_mov_b64 exec, -1
    global_store_dwordx4 v47, v[60:63], s[6:7] {STP}
    s_mov_b64 exec, s[54:55]
K2_NOTAB:""")
    for k in range(8):
        e(f"""    v_lshlrev_b32 v{REC+2*k}, 7, v{SRC+k}
    v_lshl_or_b32 v{REC+2*k}, v{NU+k}, 24, v{REC+2*k}""")
    for k in range(8):
        src = EE + k//2
        e(f"    v_and_b32 v{REC+1+2*k}, 0xffff, v{src}" if k % 2 == 0 else f"    v_lshrrev_b32 v{REC+1+2*k}, 16, v{src}")
    e("    s_waitcnt lgkmcnt(0)")
    for k in range(8):
        e(f"    v_add_lshl_u32 v{48+k}, v{48+k}, v{RK+k}, 3")
    for k in range(8):
        e(f"    ds_write_b64 v{48+k}, v[{REC+2*k}:{REC+1+2*k}] offset:{P1_STAGE}")
    e("    s_waitcnt lgkmcnt(0)\n    s_barrier")
    for k in range(4):
        e(f"    ds_read_b128 v[{64+4*k}:{67+4*k}], v40 offset:{P1_STAGE+6400*k}")
    e("K2_P1LATE:")
    e("    s_mov_b64 exec, -1")
    if WL: w_dma()
    if XL: x_dma()
    e(f"    s_cmp_ge_u32 s2, {NCH}\n    s_cbranch_scc1 K2_P1END\n    s_mov_b64 exec, s[54:55]")
    e(f"""    s_mul_i32 s3, s2, {CH*8}
    v_add_u32 v48, s3, v40""")
    for k in range(1, 4):
        e(f"    v_add_u32 v{48+k}, {6400*k}, v48")
    for k in range(4):
        e(f"    s_waitcnt lgkmcnt({3-k})\n    global_store_dwordx4 v{48+k}, v[{64+4*k}:{67+4*k}], s[6:7] {STP}")
    e(f"""    s_mov_b64 exec, -1
K2_P1END:
    s_waitcnt vmcnt(0)
    s_barrier""")
    c("signal: this workgroup's records and table row are out")
    e(f"""    s_cmp_ge_u32 s2, {NCH}
    s_cbranch_scc1 K2_NOSIG
    s_cmp_lg_u32 {sWV}, 0
    s_cbranch_scc1 K2_NOSIG
    s_and_b32 s3, s2, 3
    s_lshl_b32 s3, s3, 6
    v_mov_b32 v48, s3
    v_mov_b32 v49, 1
    s_mov_b64 exec, 1
    global_atomic_add v48, v49, s[10:11]
    s_mov_b64 exec, -1
K2_NOSIG:""")
    hstamp(3)
    if DBG:
        e(f"    s_memrealtime s[98:99]\n    s_waitcnt lgkmcnt(0)\n    v_writelane_b32 v{vDBG}, s98, 12")
    c("weight fragments from the raw row-major copies (transposing reads); w_b and w_a are scaled by -log2(e)")
    e(f"""    v_bfe_u32 v22, v{vLANE}, 2, 2
    v_lshl_add_u32 v22, v{vH}, 3, v22
    v_lshlrev_b32 v22, 7, v22
    v_add_u32 v22, v22, v{vAFC}
    v_add_u32 v22, {ROWS}, v22
    s_lshl_b32 s3, {sFB}, 6
    v_add_u32 v23, s3, v22
    s_mov_b32 s48, {NEG_LOG2E:#x}
    s_mov_b32 s49, {NEG_LOG2E:#x}""")
    def trd(dst, reg, off):
        return [f"    ds_read_b64_tr_b16 {dst(0)}, v{reg} offset:{off}", f"    ds_read_b64_tr_b16 {dst(2)}, v{reg} offset:{off+512}"]
    for s_ in range(4):
        for f in range(2):
            base = aWV + (s_*2+f)*4
            for x in trd(lambda o: ar(base+o, 2), 22, 8192 + s_*2048 + f*64): e(x)
    for s_ in range(4):
        base = 64 + 4*s_
        for x in trd(lambda o: ar(base+o, 2), 23, 24576 + s_*2048): e(x)
    for s_ in range(4):
        for f in range(2):
            base = 64 + (s_*2+f)*4
            for x in trd(lambda o: vr(base+o, 2), 22, s_*2048 + f*64): e(x)
    for s_ in range(4):
        base = 96 + 4*s_
        for x in trd(lambda o: vr(base+o, 2), 23, 16384 + s_*2048): e(x)
    c("x_bin A fragments")
    e(f"""    s_lshl_b32 s3, {sRHO}, 12
    s_add_u32 s3, s3, {XST}
    s_sub_u32 s3, s3, {sM0B}""")
    for s_ in range(4):
        e(f"    v_add_u32 v{60+s_}, s3, v{vXR[s_]}")
    for s_ in range(4):
        e(f"    ds_read_b128 {vr(40+4*s_,4)}, v{60+s_}")
    e("    s_waitcnt lgkmcnt(0)")
    def scale(r, toacc):
        e(f"""    v_lshlrev_b32 v112, 16, v{r}
    v_and_b32 v113, 0xffff0000, v{r}
    v_pk_mul_f32 v[112:113], v[112:113], s[48:49]
    v_cvt_pk_bf16_f32 v{r}, v112, v113""")
        if toacc is not None: e(f"    v_accvgpr_write_b32 a{toacc}, v{r}")
    for r in range(16): scale(96 + r, None)
    c("A'^T = Wa'^T x^T (lane = node), U = x Wu")
    e(f"""    s_lshl_b32 s3, {sRHO}, 12
    s_lshl_b32 s80, {sFB}, 6
    s_add_u32 s3, s3, s80
    v_and_b32 v22, 7, v{vN}
    v_xor_b32 v22, v22, v{vH}
    v_lshlrev_b32 v22, 3, v22
    v_lshl_add_u32 v22, v{vN}, 7, v22
    v_add_u32 v60, s3, v22
    v_xor_b32 v61, 16, v60
    v_xor_b32 v62, 32, v60
    v_xor_b32 v63, 48, v60""")
    for s_ in range(4):
        e(mfma(vr(112,16), vr(96+4*s_,4), vr(40+4*s_,4), "0" if s_ == 0 else vr(112,16)))
    for s_ in range(4):
        e(mfma(ar(aU,16), vr(40+4*s_,4), ar(64+4*s_,4), "0" if s_ == 0 else ar(aU,16)))
    e("    s_nop 7")
    for r in range(0, 16, 2):
        e(f"    v_cvt_pk_bf16_f32 v{48+r//2}, v{112+r}, v{113+r}")
    for i in range(4):
        e(f"    ds_write_b64 v{60+i}, v[{48+2*i}:{49+2*i}] offset:{A_OFF}")
    for r in range(32): scale(64 + r, aWB + r)
    c("w_c words: (bf16(-log2e*w_c) | BIG<<16) for the lower half-wave, 0 for the upper")
    e(f"""    v_lshlrev_b32 v34, 16, v34
    v_lshlrev_b32 v35, 16, v35
    v_mul_f32 v34, s48, v34
    v_mul_f32 v35, s48, v35
    v_mov_b32 v36, {BIG:#x}
    v_cmp_eq_u32 vcc, 0, v{vH}
    v_cvt_pk_bf16_f32 v34, v34, v36
    v_cvt_pk_bf16_f32 v35, v35, v36
    v_cndmask_b32 v34, 0, v34, vcc
    v_cndmask_b32 v35, 0, v35, vcc
    v_accvgpr_write_b32 a{aAFA+2}, v34
    v_accvgpr_write_b32 a{aAFB+2}, v35""")
    c("wait until every chunk has been published")
    e(f"""    s_cmp_lg_u32 {sWV}, 0
    s_cbranch_scc1 K2_POLLED
    v_lshlrev_b32 v48, 6, v{vLANE}
    s_mov_b32 s80, 0
    s_mov_b64 exec, 15
K2_POLL:
    global_load_dword v49, v48, s[10:11] sc1
    s_waitcnt vmcnt(0)
    v_readlane_b32 s81, v49, 0
    v_readlane_b32 s82, v49, 1
    v_readlane_b32 s83, v49, 2
    v_readlane_b32 s84, v49, 3
    s_add_u32 s81, s81, s82
    s_add_u32 s83, s83, s84
    s_add_u32 s81, s81, s83
    s_cmp_ge_u32 s81, {NCH}
    s_cbranch_scc1 K2_POLL_DONE
    s_sleep 2
    s_add_u32 s80, s80, 1
    s_cmp_lt_u32 s80, 40000
    s_cbranch_scc1 K2_POLL
K2_POLL_DONE:
    s_mov_b64 exec, -1
K2_POLLED:
    s_waitcnt lgkmcnt(0)
    s_barrier""")
    stamp()
    if DBG: e(f"    s_memrealtime s[98:99]\n    s_waitcnt lgkmcnt(0)\n    v_writelane_b32 v{vDBG}, s98, 14")
    hstamp(4)
    c("table words")
    e(f"""    v_lshrrev_b32 v42, 2, v0
    v_lshlrev_b32 v40, 10, v42
    s_lshl_b32 s48, {sB}, 2
    s_add_u32 s48, s48, {WS_TAB}
    v_add_u32 v40, s48, v40
    v_add_u32 v41, {128*1024}, v40
    buffer_load_dword v{vTAB[0]}, v40, {SRD_WS}, 0 offen sc1
    buffer_load_dword v{vTAB[1]}, v41, {SRD_WS}, 0 offen sc1""")
    e("K2_ROUND_INIT:")
    c("LDS init: cnt = 0, headn = -1, flag = 0")
    e(f"""    v_lshlrev_b32 v40, 2, v0
    v_mov_b32 v41, 0
    v_cmp_gt_u32 vcc, 192, v0
    s_and_saveexec_b64 s[52:53], vcc
    ds_write_b32 v40, v41 offset:{CNT}
    v_cmp_gt_u32 vcc, 18, v0
    s_and_b64 exec, exec, vcc
    v_cmp_gt_u32 vcc, 16, v0
    v_mov_b32 v42, -1
    s_nop 0
    v_cndmask_b32 v42, 0, v42, vcc
    ds_write_b32 v40, v42 offset:{HEADN}
    s_mov_b64 exec, s[52:53]
    v_and_b32 v22, 3, v0
    v_lshlrev_b32 v22, 1, v22""")
    assert FLAG == HEADN + 64
    e(f"""    s_cmp_lg_u32 {sRND}, 0
    s_cbranch_scc1 K2_ROUND_N""")
    c("segment descriptors: segment r of this thread = (tid>>2) + 128 r ; c = tid&3")
    e(f"""    v_lshrrev_b32 v40, 2, v0
    v_add_u32 v41, 128, v40
    v_cmp_gt_u32 vcc, {NCH}, v41
    v_mul_u32_u24 v40, {CH}, v40
    v_mul_u32_u24 v41, {CH}, v41
    v_add_u32 v40, v40, v22
    v_add_u32 v41, v41, v22
    s_waitcnt vmcnt(0)
    v_and_b32 v42, 0xffff, v{vTAB[0]}
    v_lshrrev_b32 v43, 16, v{vTAB[0]}
    v_and_b32 v44, 0xffff, v{vTAB[1]}
    v_lshrrev_b32 v45, 16, v{vTAB[1]}
    v_sub_u32 v{vLEN[0]}, v43, v42
    v_sub_u32 v{vLEN[1]}, v45, v44
    v_add_lshl_u32 v{vBASE[0]}, v40, v42, 3
    v_add_lshl_u32 v{vBASE[1]}, v41, v44, 3
    v_cndmask_b32 v{vLEN[1]}, 0, v{vLEN[1]}, vcc
K2_ROUND_N:
    v_min_u32 v{vLR[0]}, 32, v{vLEN[0]}
    v_min_u32 v{vLR[1]}, 32, v{vLEN[1]}""")
    seg_masks()
    stamp()
    def rec_loads():
        c("record loads")
        for k in range(4):
            for r in range(2):
                q = (2*k+r)*2
                e(f"    s_mov_b64 exec, {msk(q)}")
                e(f"    buffer_load_dwordx4 {vr(vREC+(2*k+r)*4,4)}, v{vBASE[r]}, {SRD_WS}, 0 offen offset:{64*k} sc1")
        e("    s_mov_b64 exec, -1")
    rec_loads()
    c("cnt / headn / flags initialised above must be visible before counting")
    e("    s_waitcnt lgkmcnt(0)\n    s_barrier")
    stamp()
    stamp()
    e("K2_COUNT:")
    c("counting pass (records arrive in k order)")
    e("    v_mov_b32 v40, 1")
    cfn = [lambda k, r, p, q: f"    v_lshrrev_b32 v{vA+q}, 22, v{vREC+(2*k+r)*4+2*p}",
           lambda k, r, p, q: f"    s_mov_b64 exec, {msk(q)}\n    ds_add_rtn_u32 v{vRK+q}, v{vA+q}, v40 offset:{CNT}",
           lambda k, r, p, q: "    s_mov_b64 exec, -1" if q % 4 == 3 else ""]
    for k in range(4):
        if k >= 2: e(f"    s_cmp_le_u32 {sKM}, {k}\n    s_cbranch_scc1 K2_CNT_DONE")
        e(f"    s_waitcnt vmcnt({PFN + 6 - 2*k})")
        if 'fine2' in X and k < 2: stamp_at(13 + k)
        for fn in cfn:
            for sl in slot_list([k]): e(fn(*sl))
    e("K2_CNT_DONE:")
    e("    s_mov_b64 exec, -1\n    s_waitcnt lgkmcnt(0)\n    s_barrier")
    stamp()
    c("scan over nodes (every wave redundantly)")
    e(f"""    v_lshlrev_b32 v40, 3, v{vLANE}
    ds_read_b64 v[42:43], v40 offset:{CNT}
    s_waitcnt lgkmcnt(0)
    v_add_u32 v44, 3, v42
    v_add_u32 v45, 3, v43
    v_lshrrev_b32 v44, 2, v44
    v_lshrrev_b32 v45, 2, v45
    v_add_u32 v46, v44, v45
    v_mov_b32 v47, v46""")
    dpp_scan("v47")
    e(f"""    v_sub_u32 v48, v47, v46
    v_add_u32 v49, v48, v44
    v_readlane_b32 {sG}, v47, 63
    v_lshlrev_b32 v50, 5, v48
    v_lshlrev_b32 v51, 5, v49
    v_add_u32 v50, {RECS}, v50
    v_add_u32 v51, {RECS}, v51
    s_cmp_le_u32 {sG}, {GMAX}
    s_cbranch_scc1 K2_FITS""")
    c("overflow: redo this round with 12 records per segment")
    e(f"""    s_barrier
    v_lshlrev_b32 v40, 2, v0
    v_mov_b32 v41, 0
    v_cmp_gt_u32 vcc, 192, v0
    s_and_saveexec_b64 s[52:53], vcc
    ds_write_b32 v40, v41 offset:{CNT}
    s_mov_b64 exec, s[52:53]
    v_min_u32 v{vLR[0]}, 12, v{vLEN[0]}
    v_min_u32 v{vLR[1]}, 12, v{vLEN[1]}
    v_and_b32 v22, 3, v0
    v_lshlrev_b32 v22, 1, v22""")
    seg_masks()
    e(f"""    s_waitcnt lgkmcnt(0)
    s_barrier
    s_branch K2_COUNT
K2_FITS:
    ds_write_b64 v40, v[48:49] offset:{GS}
    ds_write_b64 v40, v[50:51] offset:{GSA}
    s_add_u32 s3, {sG}, 31
    s_lshr_b32 s3, s3, 5
    s_max_u32 s3, s3, 2
    s_add_u32 {sLA}, s3, 1
    s_lshr_b32 {sLA}, {sLA}, 1
    s_lshr_b32 {sLB}, s3, 1
    s_cmp_lt_u32 {sWV}, 4
    s_cselect_b32 {sT}, {sLA}, {sLB}
    s_lshl_b32 {sLA}, {sLA}, 2
    s_lshl_b32 {sLB}, {sLB}, 2
    s_sub_u32 {sDD}, {sLA}, {sLB}
    s_lshl_b32 {sDD}, {sDD}, 3
    s_lshl_b32 {sCAP}, s3, 5
    v_cvt_f32_u32 v52, {sLA}
    v_cvt_f32_u32 v34, {sLB}
    v_rcp_f32 v52, v52
    v_rcp_f32 v34, v34
    s_lshl_b32 s3, {sLA}, 3
    v_cvt_f32_u32 v35, s3
    v_sub_f32 v35, 0.5, v35
    v_mov_b32 v36, 0x41000000
    v_fma_f32 v35, v35, v34, v36
    v_lshrrev_b32 v54, 2, v0
    v_lshlrev_b32 v40, 2, v54
    v_mul_f32 v53, 0.5, v52
    s_waitcnt lgkmcnt(0)""")
    if 'fine' in X: stamp()
    c("node data + scatter lookups")
    e(f"""    ds_read_b32 v42, v40 offset:{GS}
    ds_read_b32 v43, v40 offset:{GS+4}
    ds_read_b32 v44, v40 offset:{CNT}""")
    slot_pass("K2_S1", [lambda k, r, p, q: f"    s_mov_b64 exec, {msk(q)}\n    ds_read_b32 v{vA+q}, v{vA+q} offset:{GSA}"])
    e("    s_mov_b64 exec, -1")
    c("more-records flag")
    e(f"""    v_cmp_gt_u32 vcc, v{vLEN[0]}, v{vLR[0]}
    v_cmp_gt_u32 s[52:53], v{vLEN[1]}, v{vLR[1]}
    v_and_b32 v45, 3, v0
    s_nop 0
    s_or_b64 vcc, vcc, s[52:53]
    s_and_saveexec_b64 s[52:53], vcc
    v_mov_b32 v46, 1
    v_mov_b32 v47, {FLAG}
    ds_write_b32 v47, v46
    s_mov_b64 exec, s[52:53]""")
    if 'fine' in X: stamp()
    c("node jobs: thread (nu = tid>>2, q = tid&3)")
    e(f"""    v_cmp_gt_u32 vcc, {NB}, v54
    s_and_b64 exec, exec, vcc
    s_cbranch_execz K2_NODE_DONE
    v_lshlrev_b32 v46, 7, v54
    v_and_b32 v47, 7, v54
    v_lshl_or_b32 v46, v47, 3, v46
    v_lshlrev_b32 v47, 9, v54
    v_add_u32 v47, {ROWS}, v47
    s_mov_b64 s[54:55], exec
    s_waitcnt lgkmcnt(0)
    v_sub_u32 v43, v43, v42""")
    c("empty nodes: raise a flag, their rows are zeroed after the W fragments have been read")
    e(f"""    v_cmp_eq_u32 vcc, 0, v44
    s_and_b64 exec, exec, vcc
    v_mov_b32 v48, 1
    v_mov_b32 v49, {FLAG+4}
    ds_write_b32 v49, v48
    s_mov_b64 exec, s[54:55]""")
    c("pad slots in the last group")
    e(f"""    v_add_u32 v48, v44, v45
    v_lshlrev_b32 v49, 2, v43
    v_cmp_lt_u32 vcc, v48, v49
    v_lshlrev_b32 v49, 5, v42
    v_lshl_add_u32 v49, v48, 3, v49
    v_mov_b32 v50, 0
    v_mov_b32 v51, 0x3f800000
    s_and_b64 exec, exec, vcc
    ds_write_b64 v49, v[50:51] offset:{RECS}
    s_mov_b64 exec, s[54:55]""")
    c("stream of first / last group")
    e(f"""    v_add_u32 v48, v42, v43
    v_max_u32 v49, 1, v43
    v_add_u32 v49, v42, v49
    v_subrev_u32 v49, 1, v49
    s_lshl_b32 s3, {sLA}, 3
    v_cvt_f32_u32 v50, v42
    v_cvt_f32_u32 v51, v49
    v_fma_f32 v55, v50, v34, v35
    v_fma_f32 v56, v51, v34, v35
    v_fma_f32 v50, v50, v52, v53
    v_fma_f32 v51, v51, v52, v53
    v_cmp_gt_u32 vcc, s3, v42
    v_cmp_gt_u32 s[52:53], s3, v49
    v_cvt_u32_f32 v55, v55
    v_cvt_u32_f32 v56, v56
    v_cvt_u32_f32 v50, v50
    v_cvt_u32_f32 v51, v51
    v_cndmask_b32 v50, v55, v50, vcc
    v_cndmask_b32 v51, v56, v51, s[52:53]
    v_add_u32 v55, 1, v50
    v_mul_u32_u24 v56, {sLA}, v55
    v_mul_u32_u24 v57, {sLB}, v55
    v_add_u32 v57, {sDD}, v57
    v_min_u32 v56, v56, v57
    v_lshlrev_b32 v57, 9, v55
    v_add_u32 v57, {HEADS}, v57
    v_cmp_lt_u32 vcc, v50, v51
    v_lshlrev_b32 v58, 2, v55
    s_and_b64 exec, exec, vcc
    ds_write_b32 v58, v54 offset:{HEADN}
    s_mov_b64 exec, s[54:55]""")
    c("groups q, q+4, q+8, q+12 (fast path)")
    e(f"""    v_add_u32 v59, v42, v45
    v_mov_b32 v60, 1.0
    v_mov_b32 v61, 0""")
    for m in range(4):
        e(f"""    v_cmp_lt_u32 vcc, v59, v48
    s_and_b64 exec, exec, vcc
    v_cmp_ge_u32 vcc, v59, v56
    v_cmp_eq_u32 s[52:53], v59, v56
    v_cmp_eq_u32 s[88:89], v59, v42
    v_lshlrev_b32 v62, 2, v59
    v_cndmask_b32 v63, v47, v57, vcc
    s_or_b64 s[52:53], s[52:53], s[88:89]
    ds_write2st64_b32 v62, v46, v63 offset0:{GAT//256} offset1:{GFT//256}
    v_cndmask_b32 v63, v60, v61, s[52:53]
    v_add_u32 v59, 4, v59
    ds_write_b32 v62, v63 offset:{GKT}""")
    c("rare: more than 16 groups, or a node spanning more than two streams")
    e(f"""    s_mov_b64 exec, s[54:55]
    v_cmp_lt_u32 vcc, 16, v43
    v_add_u32 v59, 1, v50
    v_cmp_lt_u32 s[52:53], v59, v51
    s_nop 1
    s_or_b64 vcc, vcc, s[52:53]
    s_cbranch_vccz K2_NODE_DONE
    v_add_lshl_u32 v58, v42, v45, 2
    v_cmp_eq_u32 vcc, 0, v45
    v_mov_b32 v49, v45
    v_mov_b32 v55, 1.0
    v_mov_b32 v59, 0
    v_cndmask_b32 v56, 1.0, v59, vcc
K2_BULK:
    v_cmp_lt_u32 vcc, v49, v43
    s_and_b64 exec, exec, vcc
    s_cbranch_execz K2_BULK_DONE
    ds_write2st64_b32 v58, v46, v47 offset0:{GAT//256} offset1:{GFT//256}
    ds_write_b32 v58, v56 offset:{GKT}
    v_mov_b32 v56, v55
    v_add_u32 v58, 16, v58
    v_add_u32 v49, 4, v49
    s_branch K2_BULK
K2_BULK_DONE:
    s_mov_b64 exec, s[54:55]
    v_cmp_lt_u32 vcc, 0, v43
    s_and_b64 exec, exec, vcc
    s_cbranch_execz K2_NODE_DONE
K2_BND:
    v_cmp_lt_u32 vcc, v50, v51
    s_and_b64 exec, exec, vcc
    s_cbranch_execz K2_NODE_DONE
    v_add_u32 v50, 1, v50
    v_mul_u32_u24 v55, {sLA}, v50
    v_mul_u32_u24 v56, {sLB}, v50
    v_add_u32 v56, {sDD}, v56
    v_min_u32 v55, v55, v56
    v_add_u32 v61, 1, v50
    v_mul_u32_u24 v60, {sLA}, v61
    v_mul_u32_u24 v61, {sLB}, v61
    v_add_u32 v61, {sDD}, v61
    v_min_u32 v60, v60, v61
    v_lshlrev_b32 v56, 9, v50
    v_add_u32 v56, {HEADS}, v56
    v_lshlrev_b32 v57, 2, v50
    v_lshlrev_b32 v58, 2, v55
    v_mov_b32 v59, 0
    ds_write_b32 v57, v54 offset:{HEADN}
    ds_write_b32 v58, v59 offset:{GKT}
    v_min_u32 v60, v60, v48
    v_add_u32 v55, v55, v45
    s_mov_b64 s[52:53], exec
K2_BND2:
    v_cmp_lt_u32 vcc, v55, v60
    s_and_b64 exec, exec, vcc
    s_cbranch_execz K2_BND2_DONE
    v_lshlrev_b32 v58, 2, v55
    ds_write_b32 v58, v56 offset:{GFT}
    v_add_u32 v55, 4, v55
    s_branch K2_BND2
K2_BND2_DONE:
    s_mov_b64 exec, s[52:53]
    s_branch K2_BND
K2_NODE_DONE:
    s_mov_b64 exec, -1""")
    c("pad groups [G, 64T)")
    e(f"""    s_sub_u32 s3, {sCAP}, {sG}
    s_lshl_b32 s49, s3, 2
    v_cmp_gt_u32 vcc, s49, v0
    s_and_saveexec_b64 s[52:53], vcc
    s_cbranch_execz K2_PADG_DONE
    s_lshl_b32 s48, {sG}, 5
    v_lshlrev_b32 v48, 3, v0
    v_add_u32 v48, s48, v48
    v_mov_b32 v50, 0
    v_mov_b32 v51, 0x3f800000
    ds_write_b64 v48, v[50:51] offset:{RECS}
    v_cmp_gt_u32 vcc, s3, v0
    s_lshl_b32 s48, {sG}, 2
    v_lshlrev_b32 v48, 2, v0
    v_add_u32 v48, s48, v48
    v_mov_b32 v51, {HEADS}
    s_and_b64 exec, exec, vcc
    ds_write2st64_b32 v48, v50, v51 offset0:{GAT//256} offset1:{GFT//256}
    ds_write_b32 v48, v50 offset:{GKT}
K2_PADG_DONE:
    s_mov_b64 exec, s[52:53]
    v_lshlrev_b32 v41, 3, v{vLANE}
    v_add_u32 v41, {DUMMY}, v41
    s_waitcnt lgkmcnt(0)""")
    if 'fine' in X: stamp()
    c("scatter")
    slot_pass("K2_S3", [
        lambda k, r, p, q: f"    v_lshl_add_u32 v{vA+q}, v{vRK+q}, 3, v{vA+q}",
        lambda k, r, p, q: f"    s_mov_b64 exec, {msk(q)}\n    ds_write_b64 v{vA+q}, v[{vREC+(2*k+r)*4+2*p}:{vREC+(2*k+r)*4+2*p+1}]",
        lambda k, r, p, q: "    s_mov_b64 exec, -1" if q % 4 == 3 else ""])
    e("    s_mov_b64 exec, -1")
    if 'fine' in X: stamp()
    c("advance segment pointers for a possible next round; T-dependent addresses")
    for r in range(2):
        e(f"""    v_sub_u32 v{vLEN[r]}, v{vLEN[r]}, v{vLR[r]}
    v_lshl_add_u32 v{vBASE[r]}, v{vLR[r]}, 3, v{vBASE[r]}""")
    e(f"""    s_lshl_b32 s3, {sWV}, 1
    s_mul_i32 s48, s3, {sLA}
    s_mul_i32 s49, s3, {sLB}
    s_add_u32 s49, s49, {sDD}
    s_min_u32 s3, s48, s49
    s_lshl_b32 s48, s3, 5
    s_add_u32 s48, s48, {RECS}
    s_lshl_b32 s49, {sT}, 7
    v_mul_u32_u24 v41, s49, v{vH}
    v_add_u32 v41, s48, v41
    v_bfe_u32 v42, v{vLANE}, 3, 2
    v_lshl_add_u32 v{vSRC_RD}, v42, 3, v41
    v_bfe_u32 v42, v{vN}, 2, 1
    v_mul_u32_u24 v42, s49, v42
    v_add_u32 v42, s48, v42
    v_lshrrev_b32 v43, 3, v{vN}
    v_lshl_add_u32 v42, v43, 5, v42
    v_and_b32 v43, 3, v{vN}
    v_lshl_add_u32 v42, v43, 3, v42
    v_add_u32 v{vEW_RD}, 4, v42
    s_lshl_b32 s48, s3, 2
    s_lshl_b32 s49, {sT}, 4
    v_mul_u32_u24 v41, s49, v{vH}
    v_add_u32 v41, s48, v41
    v_add_u32 v{vGF_RD}, {GFT}, v41
    v_bfe_u32 v42, v{vLANE}, 2, 2
    v_lshl_add_u32 v41, v42, 2, v41
    v_add_u32 v{vGA_RD}, {GAT}, v41
    v_mov_b64 v[56:57], 0
    v_mov_b64 v[58:59], 0
    s_waitcnt lgkmcnt(0)
    s_barrier""")
    stamp()
    c("pipeline prologue")
    for x in src_reads(0): e(x)
    e(f"""    v_mov_b32 v40, {FLAG+4}
    ds_read_b32 v41, v40
    s_waitcnt lgkmcnt(0)""")
    for g in dma_issue():
        for x in g: e(x)
    e(f"    v_add_u32 v{vSRC_RD}, 128, v{vSRC_RD}")
    e(f"    v_readfirstlane_b32 s48, v41")
    rn = reads_next(0, 0)
    for x in rn[4:]: e(x)
    e("    s_waitcnt lgkmcnt(0)")
    for x in after_reads(0, 0): e(x)
    e("    s_barrier")
    c("rare: zero the rows of nodes without edges")
    e(f"""    s_cmp_eq_u32 s48, 0
    s_cbranch_scc1 K2_NOEMPTY
    v_lshrrev_b32 v60, 2, v0
    v_lshlrev_b32 v61, 2, v60
    ds_read_b32 v62, v61 offset:{CNT}
    v_and_b32 v63, 3, v0
    v_lshlrev_b32 v52, 9, v60
    v_lshl_add_u32 v52, v63, 7, v52
    v_add_u32 v52, {ROWS}, v52
    v_mov_b64 v[48:49], 0
    v_mov_b64 v[50:51], 0
    s_waitcnt lgkmcnt(0)
    v_cmp_gt_u32 vcc, {NB}, v60
    v_cmp_eq_u32 s[52:53], 0, v62
    s_nop 1
    s_and_b64 vcc, vcc, s[52:53]
    s_and_saveexec_b64 s[52:53], vcc
    s_cbranch_execz K2_EMPTY2""")
    for k in range(8):
        e(f"    ds_write_b128 v52, v[48:51] offset:{16*k}")
    e(f"""K2_EMPTY2:
    s_mov_b64 exec, s[52:53]
    s_waitcnt lgkmcnt(0)
    s_barrier
K2_NOEMPTY:""")
    e("    s_waitcnt vmcnt(0)")
    for x in rn[:4]: e(x)
    e("    s_waitcnt lgkmcnt(0)")
    for g in dma_issue():
        for x in g: e(x)
    for x in advance_addrs(1): e(x)
    for x in gf_fix(0): e(x)
    for x in mfma_group('A', 0): e(x)
    stamp()
    if 'solo' in X:
        e(f"    s_cmp_ge_u32 {sWV}, 4\n    s_cbranch_scc1 K2_LOOP_END")
    e(f"""    s_nop 15
    s_mov_b32 {sCNT}, {sT}
.p2align 6
K2_LOOP:""")
    INLOOP[0] = True
    tile_body(0)
    e(f"""    s_sub_u32 {sCNT}, {sCNT}, 1
    s_cmp_eq_u32 {sCNT}, 0
    s_cbranch_scc1 K2_LOOP_END""")
    tile_body(1)
    INLOOP[0] = False
    e(f"""    s_sub_u32 {sCNT}, {sCNT}, 1
    s_cmp_lg_u32 {sCNT}, 0
    s_cbranch_scc1 K2_LOOP
K2_LOOP_END:
    s_setprio 0
    s_waitcnt vmcnt(0)
    s_lshl_b32 s3, {sWV}, 11
    v_lshlrev_b32 v40, 4, v{vLANE}
    v_add_u32 v40, s3, v40
    s_mov_b32 m0, {sM0B}
    s_nop 0
    buffer_load_dwordx4 v40, {SRD_XB}, 0 offen lds
    buffer_load_dwordx4 v40, {SRD_XB}, 0 offen offset:1024 lds
    s_waitcnt lgkmcnt(0)""")
    stamp()
    e("    s_barrier")
    stamp()
    c("head fix-up")
    e(f"""    v_lshlrev_b32 v40, 2, v{vLANE}
    ds_read_b32 v41, v40 offset:{HEADN}
    ds_read_b32 v42, v40 offset:{HEADN+4}
    v_mov_b32 v43, {FLAG}
    ds_read_b32 v44, v43
    s_lshl_b32 s3, {sWV}, 1
    v_add_u32 v45, s3, v{vH}
    v_lshlrev_b32 v46, 2, v45
    ds_read_b32 v47, v46 offset:{HEADN}
    v_lshlrev_b32 v45, 9, v45
    v_add_u32 v45, {HEADS}, v45
    v_add_u32 v45, v45, v{vN4}
    s_waitcnt lgkmcnt(0)
    v_readfirstlane_b32 {sMORE}, v44
    v_cmp_eq_u32 vcc, v41, v42
    v_cmp_le_i32 s[52:53], 0, v41
    s_nop 1
    s_and_b64 vcc, vcc, s[52:53]
    s_and_b32 s52, vcc_lo, 0x7fff
    s_cmp_lg_u32 s52, 0
    s_cbranch_scc1 K2_FIX_SLOW
    v_cmp_le_i32 vcc, 0, v47
    s_and_saveexec_b64 s[52:53], vcc
    s_cbranch_execz K2_FIX_DONE
    v_lshlrev_b32 v47, 9, v47
    v_add_u32 v47, {ROWS}, v47
    v_add_u32 v47, v47, v{vN4}""")
    for q in range(4):
        e(f"""    ds_read_b32 v{16+q}, v45 offset:{128*q}
    ds_read_b32 v{20+q}, v47 offset:{128*q}""")
    e("    s_waitcnt lgkmcnt(0)")
    for q in range(4):
        e(f"""    v_add_f32 v{16+q}, v{16+q}, v{20+q}
    ds_write_b32 v47, v{16+q} offset:{128*q}""")
    e(f"""    s_branch K2_FIX_DONE
K2_FIX_SLOW:
    s_mov_b64 s[52:53], exec
    s_cmp_lg_u32 {sWV}, 0
    s_cbranch_scc1 K2_FIX_DONE
    s_mov_b32 s3, 0
K2_FIX_SL:
    v_readlane_b32 s49, v41, s3
    s_nop 3
    s_cmp_lt_i32 s49, 0
    s_cbranch_scc1 K2_FIX_SN
    s_lshl_b32 s49, s49, 9
    s_add_u32 s49, s49, {ROWS}
    s_lshl_b32 s54, s3, 9
    s_add_u32 s54, s54, {HEADS}
    v_lshlrev_b32 v45, 3, v{vLANE}
    v_add_u32 v46, s54, v45
    v_add_u32 v47, s49, v45
    ds_read_b64 v[16:17], v46
    ds_read_b64 v[18:19], v47
    s_waitcnt lgkmcnt(0)
    v_add_f32 v16, v16, v18
    v_add_f32 v17, v17, v19
    ds_write_b64 v47, v[16:17]
    s_waitcnt lgkmcnt(0)
K2_FIX_SN:
    s_add_u32 s3, s3, 1
    s_cmp_lt_u32 s3, 16
    s_cbranch_scc1 K2_FIX_SL
K2_FIX_DONE:
    s_mov_b64 exec, s[52:53]
    s_waitcnt vmcnt(0) lgkmcnt(0)
    s_barrier""")
    e(f"""    s_or_b32 s3, {sRND}, {sMORE}
    s_cmp_eq_u32 s3, 0
    s_cbranch_scc1 K2_EPI""")
    c("rare: several rounds. rows += saved (round>0); if more: save rows and restart")
    e(f"""    s_mul_i32 s3, {sB}, {NB*512}
    s_add_u32 s3, s3, {WS_ACC}
    v_lshlrev_b32 v40, 4, v0
    v_add_u32 v41, {ROWS}, v40
    v_add_u32 v42, s3, v40
    s_mov_b32 s49, 0
K2_MR:
    v_cmp_gt_u32 vcc, {NB*512}, v40
    s_and_saveexec_b64 s[52:53], vcc
    s_cbranch_execz K2_MR_N
    ds_read_b128 v[16:19], v41
    s_cmp_eq_u32 {sRND}, 0
    s_cbranch_scc1 K2_MR_A
    buffer_load_dwordx4 v[20:23], v42, {SRD_WS}, 0 offen
    s_waitcnt vmcnt(0) lgkmcnt(0)
    v_add_f32 v16, v16, v20
    v_add_f32 v17, v17, v21
    v_add_f32 v18, v18, v22
    v_add_f32 v19, v19, v23
    ds_write_b128 v41, v[16:19]
K2_MR_A:
    s_waitcnt lgkmcnt(0)
    s_cmp_eq_u32 {sMORE}, 0
    s_cbranch_scc1 K2_MR_N
    buffer_store_dwordx4 v[16:19], v42, {SRD_WS}, 0 offen
    s_waitcnt vmcnt(0)
K2_MR_N:
    s_mov_b64 exec, s[52:53]
    v_add_u32 v40, 8192, v40
    v_add_u32 v41, 8192, v41
    v_add_u32 v42, 8192, v42
    s_add_u32 s49, s49, 1
    s_cmp_lt_u32 s49, 7
    s_cbranch_scc1 K2_MR
    s_waitcnt vmcnt(0) lgkmcnt(0)
    s_barrier
    s_cmp_eq_u32 {sMORE}, 0
    s_cbranch_scc1 K2_EPI
    s_mov_b32 {sRND}, 1
    s_branch K2_ROUND_INIT""")
    e("K2_EPI:")
    stamp()
    c("wave (rho, fb): node = 32rho+8i+4h+j, feature = 32fb+n")
    DEN, NUM, XP, UU = 64, 80, 96, 112
    e(f"""    s_lshl_b32 s3, {sRHO}, 14
    s_lshl_b32 s49, {sFB}, 7
    s_add_u32 s3, s3, s49
    s_add_u32 s3, s3, {ROWS}
    v_lshlrev_b32 v3, 11, v{vH}
    v_add_u32 v3, v3, v{vN4}
    v_add_u32 v3, s3, v3""")
    for r in range(0, 16, 2):
        i, j = r >> 2, r & 3
        e(f"    ds_read2st64_b32 v[{DEN+r}:{DEN+r+1}], v3 offset0:{(8*i+j)*2} offset1:{(8*i+j+1)*2}")
    for r in range(0, 16, 2):
        i, j = r >> 2, r & 3
        e(f"    ds_read2st64_b32 v[{NUM+r}:{NUM+r+1}], v3 offset0:{(8*i+j)*2+1} offset1:{(8*i+j+1)*2+1}")
    c("x (residual) through transposing reads of the staged rows")
    e(f"""    s_lshl_b32 s3, {sRHO}, 13
    s_lshl_b32 s49, {sFB}, 6
    s_add_u32 s3, s3, s49
    s_add_u32 s3, s3, {XST}
    v_bfe_u32 v4, v{vLANE}, 2, 2
    v_lshl_add_u32 v4, v{vH}, 2, v4
    v_lshlrev_b32 v4, 7, v4
    v_add_u32 v4, v4, v{vAFC}
    v_add_u32 v4, s3, v4""")
    for i in range(4):
        e(f"    ds_read_b64_tr_b16 v[{XP+2*i}:{XP+2*i+1}], v4 offset:{(i>>1)*4096 + (i&1)*1024}")
    e(f"""    s_lshl_b32 s3, {sRHO}, 12
    s_lshl_b32 s49, {sFB}, 6
    s_add_u32 s3, s3, s49
    v_lshlrev_b32 v2, 9, v{vH}
    v_lshl_add_u32 v2, v{vN}, 1, v2
    v_add_u32 v2, s3, v2
    s_mov_b32 s48, {f32bits(1e-6):#x}
    s_mov_b32 s49, {f32bits(1e-6):#x}""")
    for r in range(16):
        e(f"    v_accvgpr_read_b32 v{UU+r}, a{aU+r}")
    if 'fine3' in X: stamp_at(11)
    e("    s_waitcnt lgkmcnt(12)")
    for r in range(0, 16, 2):
        e(f"    v_pk_add_f32 v[{DEN+r}:{DEN+r+1}], v[{DEN+r}:{DEN+r+1}], s[48:49]")
    for r in range(16):
        e(f"    v_rcp_f32 v{DEN+r}, v{DEN+r}")
    e("    s_waitcnt lgkmcnt(0)")
    for r in range(0, 16, 2):
        e(f"    v_pk_fma_f32 v[{UU+r}:{UU+r+1}], v[{NUM+r}:{NUM+r+1}], v[{DEN+r}:{DEN+r+1}], v[{UU+r}:{UU+r+1}]")
    for r in range(16):
        e(f"    v_max_f32 v{UU+r}, 0, v{UU+r}")
    for r in range(0, 16, 2):
        e(f"""    v_lshlrev_b32 v{DEN+r}, 16, v{XP+r//2}
    v_and_b32 v{DEN+r+1}, 0xffff0000, v{XP+r//2}""")
    for r in range(0, 16, 2):
        e(f"    v_pk_add_f32 v[{UU+r}:{UU+r+1}], v[{UU+r}:{UU+r+1}], v[{DEN+r}:{DEN+r+1}]")
    for r in range(0, 16, 2):
        e(f"    v_cvt_pk_bf16_f32 v{NUM+r//2}, v{UU+r}, v{UU+r+1}")
    if 'fine3' in X: stamp_at(12)
    for r in range(0, 16, 2):
        i, j = r >> 2, r & 3
        e(f"""    ds_write_b16 v2, v{NUM+r//2} offset:{A_OFF + (8*i+j)*128}
    ds_write_b16_d16_hi v2, v{NUM+r//2} offset:{A_OFF + (8*i+j+1)*128}""")
    OSP = '' if 'plainout' in X else 'sc1'
    e(f"""    v_lshlrev_b32 v5, 4, v0
    v_add_u32 v6, 8192, v5
    s_waitcnt lgkmcnt(0)""")
    if 'fine3' in X: stamp_at(13)
    e(f"""    s_barrier""")
    if 'fine3' in X: stamp_at(14)
    e(f"""    ds_read_b128 v[64:67], v5 offset:{A_OFF}
    ds_read_b128 v[68:71], v5 offset:{A_OFF+8192}
    s_waitcnt lgkmcnt(1)
    buffer_store_dwordx4 v[64:67], v5, {SRD_OUT}, 0 offen {OSP}
    s_waitcnt lgkmcnt(0)
    buffer_store_dwordx4 v[68:71], v6, {SRD_OUT}, 0 offen {OSP}""")
    stamp()
    if DBG and 'fine' not in X: e(f"    s_waitcnt vmcnt(0)\n    s_memrealtime s[98:99]\n    s_waitcnt lgkmcnt(0)\n    v_writelane_b32 v{vDBG}, s98, 15")
    if 'hdbg' in X: e("    s_waitcnt vmcnt(0)")
    hstamp(5)
    stamp_flush(sWV, 1)
    e("K2_END:\n    s_endpgm\nK2_CODE_END:")

def desc(name, nv, acc, ns):
    return f""".amdhsa_kernel {name}
  .amdhsa_next_free_vgpr {nv}
  .amdhsa_next_free_sgpr {ns}
  .amdhsa_accum_offset {acc}
  .amdhsa_group_segment_fixed_size 0
  .amdhsa_kernarg_size 96
  .amdhsa_user_sgpr_count 2
  .amdhsa_user_sgpr_kernarg_segment_ptr 1
  .amdhsa_system_sgpr_workgroup_id_x 1
  .amdhsa_float_denorm_mode_32 3
.end_amdhsa_kernel"""

def main(out):
    hdr = open('gather_scatter__edge_featured_mpnn_gatedgcn__graph.s.ref').read().split('\n')
    head = [x for x in hdr if x.startswith(';') and '@launch' not in x and 'Override launch' not in x and 'grid=ceil' not in x]
    for x in head: e(x)
    e(f"; @launch grid=({NBINS},1,1) block=(512,1,1) lds={K2_LDS}")
    e('.amdgcn_target "amdgcn-amd-amdhsa--gfx950"')
    e(".text")
    gen_k2()
    e('.section .rodata,"a"\n.p2align 6')
    e(desc(KNAME, 256, 128, 100))
    open(out, 'w').write("\n".join(L) + "\n")

if __name__ == "__main__":
    main(sys.argv[1] if len(sys.argv) > 1 else "gather_scatter__edge_featured_mpnn_gatedgcn__graph.s")
```

```python
import sys, struct

N = 25000
E = 800000
NB = 98
NBINS = 256
NCH = 250
CH = 3200

WS_REC = 0
WS_TAB = 0x700000
WS_W = 0x780000
WS_ACC = 0x800000
WS_SIZE = 0x2000000

LOG2E = 1.4426950408889634
def f32bits(x): return struct.unpack('<I', struct.pack('<f', x))[0]
NEG_LOG2E = f32bits(-LOG2E)
BIG = f32bits(2.0**100)

K1_HIST = 0
K1_OFFS = 1024
K1_STAGE = 2048
K1_LDS = 2048 + CH * 8

A_OFF = 0
CNT = 16384
GS = CNT + 768
GSA = GS + 512
HEADN = GSA + 768
FLAG = HEADN + 64
GAT = 18688
GFT = GAT + 4096
GKT = GFT + 4096
RECS = GKT + 4096
DUMMY = RECS + 31232
ROWS = DUMMY + 512
HEADS = ROWS + NB * 512
XST = HEADS + 16 * 512
K2_LDS = XST + 32768
XBS = RECS
assert GAT % 256 == 0 and XST % 128 == 0 and XBS % 128 == 0
GMAX = 960

import os
DBG = int(os.environ.get('DBG','0'))
WS_DBG = 0x1800000
X = set(os.environ.get('X','').split(','))
NST = [0]
vDBG = 38
def stamp(name=None):
    if not DBG: return
    i = NST[0]; NST[0] += 1
    e(f"    s_memtime s[96:97]")
    e(f"    s_waitcnt lgkmcnt(0)")
    e(f"    v_writelane_b32 v{vDBG}, s96, {i}")
NST1 = [0]
def stamp1():
    if not DBG: return
    i = NST1[0]; NST1[0] += 1
    e(f"    s_memtime s[32:33]")
    e(f"    s_waitcnt lgkmcnt(0)")
    e(f"    v_writelane_b32 v61, s32, {i}")
    if i == 0:
        e("    s_memrealtime s[34:35]\n    s_waitcnt lgkmcnt(0)\n    v_writelane_b32 v61, s34, 14")
def stamp_at(i):
    e(f"    s_memtime s[96:97]")
    e(f"    s_waitcnt lgkmcnt(0)")
    e(f"    v_writelane_b32 v{vDBG}, s96, {i}")
HS = [0]
def hstamp(word=None, invert=False):
    if 'hdbg' not in X: return
    i = HS[0]; HS[0] += 1
    e(f"    s_memrealtime s[96:97]\n    s_waitcnt lgkmcnt(0)\n    s_mov_b32 s{90+i}, s96")
def hflush():
    if 'hdbg' not in X: return
    e("""    s_cmp_lg_u32 s29, 0
    s_cbranch_scc1 HF_END
    s_mov_b32 s3, 1
    s_cmp_eq_u32 s2, 0
    s_cbranch_scc1 HF_GO
    s_mov_b32 s3, 6
    s_cmp_eq_u32 s2, 129
    s_cbranch_scc1 HF_GO
    s_mov_b32 s3, 11
    s_cmp_eq_u32 s2, 249
    s_cbranch_scc1 HF_GO
    s_branch HF_END
HF_GO:
    s_lshl_b32 s3, s3, 2
    s_mov_b64 exec, 1""")
    for i in range(5):
        e(f"    v_mov_b32 v38, s3\n    v_mov_b32 v39, s{90+i}\n    global_store_dword v38, v39, s[10:11] offset:{4*i}")
    e("HF_END:")
def stamp_flush(wave_sgpr, kid):
    if not DBG: return
    e(f"    s_lshl_b32 s3, s2, 4")
    e(f"    s_add_u32 s3, s3, {wave_sgpr}")
    e(f"    s_lshl_b32 s3, s3, 6")
    e(f"    s_add_u32 s3, s3, {WS_DBG + kid*0x100000}")
    e(f"    s_mov_b64 exec, 0xffff")
    e(f"    v_and_b32 v2, 63, v0")
    e(f"    v_lshlrev_b32 v2, 2, v2")
    e(f"    v_add_u32 v2, s3, v2")
    e(f"    global_store_dword v2, v{vDBG}, {'s[6:7]' if kid else 's[10:11]'}")
    NST[0] = 0
L = []
def e(s=""):
    for line in s.split("\n"):
        L.append(line)
def c(s): L.append("    ; " + s)

def dpp_scan(v):
    for sh in (1, 2, 4, 8):
        e(f"    s_nop 1")
        e(f"    v_add_u32_dpp {v}, {v}, {v} row_shr:{sh} row_mask:0xf bank_mask:0xf")
    e("    s_nop 1")
    e(f"    v_add_u32_dpp {v}, {v}, {v} row_bcast:15 row_mask:0xa bank_mask:0xf")
    e("    s_nop 1")
    e(f"    v_add_u32_dpp {v}, {v}, {v} row_bcast:31 row_mask:0xc bank_mask:0xf")

def gen_k1():
    STP = '' if 'plainst' in X else ('nt sc1' if 'ntsc1' in X else ('nt' if 'ntst' in X else ('sc1' if 'sc1only' in X else 'sc0 sc1')))
    NT = 400
    e(".globl k1_kernel\n.p2align 8\n.type k1_kernel,@function\nk1_kernel:")
    e(f"""    s_cmp_ge_u32 s2, {NCH+8}
    s_cbranch_scc1 K1_END
    s_load_dwordx4 s[4:7], s[0:1], 16
    s_load_dwordx4 s[12:15], s[0:1], 0
    s_load_dwordx2 s[10:11], s[0:1], 88
    s_cmp_ge_u32 s2, {NCH}
    s_cbranch_scc1 K1_PREP
    s_mul_i32 s16, s2, {CH*4}
    v_lshlrev_b32 v1, 4, v0
    v_add_u32 v2, s16, v1
    v_add_u32 v3, {NT*16}, v2
    s_lshr_b32 s17, s16, 1
    v_add_u32 v4, s17, v1
    v_lshlrev_b32 v5, 2, v0
    v_mov_b32 v6, 0
    v_lshrrev_b32 v28, 6, v0
    v_mov_b32 v29, 1
    v_readfirstlane_b32 s23, v28
    v_cmp_gt_u32 vcc, 256, v0
    s_and_saveexec_b64 s[18:19], vcc
    ds_write_b32 v5, v6 offset:{K1_HIST}
    s_mov_b64 exec, s[18:19]
    v_cmp_gt_u32 vcc, {NT}, v0
    s_and_b64 exec, exec, vcc
    s_mov_b64 s[20:21], exec
    s_mov_b32 s22, {-NB & 0xffffffff}
    s_waitcnt lgkmcnt(0)""")
    stamp1()
    LDP = 'nt' if 'ntld' in X else ''
    e(f"""    global_load_dwordx4 v[8:11], v2, s[6:7] {LDP}
    global_load_dwordx4 v[12:15], v3, s[6:7] {LDP}
    s_barrier
    global_load_dwordx4 v[80:83], v2, s[4:5] {LDP}
    global_load_dwordx4 v[84:87], v3, s[4:5] {LDP}
    v_lshrrev_b32 v4, 1, v2
    v_lshrrev_b32 v7, 1, v3
    global_load_dwordx2 v[88:89], v4, s[14:15] {LDP}
    global_load_dwordx2 v[90:91], v7, s[14:15] {LDP}""")
    PF1 = 0
    def prefetch():
        c("light prefetch: every row of x is touched once (brings it into the memory-side cache)")
        e(f"""    s_mul_i32 s17, s2, 100
    v_add_u32 v6, s17, v0
    v_lshlrev_b32 v7, 7, v6
    v_cmp_gt_u32 vcc, 100, v0
    s_and_b64 exec, exec, vcc
    global_load_dword v62, v7, s[12:13]
    s_mov_b64 exec, s[20:21]""")
        if 'nocodepf' not in X:
            c("bring the second kernel's code into the caches (read as data)")
            e(f"""    s_cmp_ge_u32 s2, 16
    s_cbranch_scc1 K1_NOCPF
    s_getpc_b64 s[26:27]
K1_CPF:
    s_add_u32 s26, s26, k2_kernel-K1_CPF
    s_addc_u32 s27, s27, 0
    v_lshlrev_b32 v60, 7, v0
    v_cmp_gt_u32 vcc, (K2_CODE_END-k2_kernel+127)/128, v0
    s_and_b64 exec, exec, vcc
    s_cbranch_execz K1_CPF_SKIP
    global_load_dword v63, v60, s[26:27]
K1_CPF_SKIP:
    s_mov_b64 exec, s[20:21]
K1_NOCPF:""")
    e("    s_waitcnt vmcnt(5)")
    stamp1()
    def binops(k):
        d = 8 + k
        e(f"""    v_mul_u32_u24 v{32+k}, 42800, v{d}
    v_lshrrev_b32 v{32+k}, 22, v{32+k}
    v_mad_i32_i24 v{40+k}, v{32+k}, s22, v{d}
    v_lshlrev_b32 v{32+k}, 2, v{32+k}""")
    for k in range(4): binops(k)
    for k in range(4): e(f"    ds_add_rtn_u32 v{48+k}, v{32+k}, v29 offset:{K1_HIST}")
    e(f"    s_waitcnt vmcnt({4+PF1})")
    for k in range(4, 8): binops(k)
    for k in range(4, 8): e(f"    ds_add_rtn_u32 v{48+k}, v{32+k}, v29 offset:{K1_HIST}")
    e("    s_waitcnt lgkmcnt(0)")
    stamp1()
    e("""    s_barrier
    s_mov_b64 exec, -1
    v_and_b32 v30, 63, v0
    v_lshlrev_b32 v31, 4, v30""")
    e(f"""    ds_read_b128 v[8:11], v31 offset:{K1_HIST}
    s_waitcnt lgkmcnt(0)
    v_add_u32 v12, v8, v9
    v_add_u32 v13, v12, v10
    v_add_u32 v14, v13, v11
    v_mov_b32 v15, v14""")
    dpp_scan("v15")
    e(f"""    v_sub_u32 v16, v15, v14
    v_add_u32 v17, v16, v8
    v_add_u32 v18, v16, v12
    v_add_u32 v19, v16, v13
    ds_write_b128 v31, v[16:19] offset:{K1_OFFS}
    v_lshl_or_b32 v20, v17, 16, v16
    v_lshl_or_b32 v21, v18, 16, v17
    v_lshl_or_b32 v22, v19, 16, v18
    v_lshl_or_b32 v23, v15, 16, v19
    s_lshl_b32 s24, s2, 10
    s_add_u32 s24, s24, {WS_TAB}
    v_add_u32 v24, s24, v31
    s_waitcnt lgkmcnt(0)""")
    stamp1()
    e("    s_mov_b64 exec, s[20:21]")
    for k in range(8):
        e(f"    ds_read_b32 v{8+k}, v{32+k} offset:{K1_OFFS}")
    e("    s_waitcnt vmcnt(0)")
    e(f"""    s_cmp_lg_u32 s23, 0
    s_cbranch_scc1 K1_NOTAB2
    s_mov_b64 exec, -1
    global_store_dwordx4 v24, v[20:23], s[10:11] {STP}
    s_mov_b64 exec, s[20:21]
K1_NOTAB2:""")
    if 'nopf1' not in X: prefetch()
    for k in range(8):
        e(f"""    v_lshlrev_b32 v{64+2*k}, 7, v{80+k}
    v_lshl_or_b32 v{64+2*k}, v{40+k}, 24, v{64+2*k}""")
    for k in range(8):
        src = 88 + k//2
        e(f"    v_and_b32 v{65+2*k}, 0xffff, v{src}" if k % 2 == 0 else f"    v_lshrrev_b32 v{65+2*k}, 16, v{src}")
    e("    s_waitcnt lgkmcnt(0)")
    for k in range(8):
        e(f"    v_add_lshl_u32 v{8+k}, v{8+k}, v{48+k}, 3")
    for k in range(8):
        e(f"    ds_write_b64 v{8+k}, v[{64+2*k}:{65+2*k}] offset:{K1_STAGE}")
    e("    s_waitcnt lgkmcnt(0)")
    stamp1()
    e("    s_barrier")
    for k in range(4):
        e(f"    ds_read_b128 v[{8+4*k}:{11+4*k}], v1 offset:{K1_STAGE+6400*k}")
    e(f"""    s_mul_i32 s24, s2, {CH*8}
    v_add_u32 v24, s24, v1""")
    for k in range(1, 4):
        e(f"    v_add_u32 v{24+k}, {6400*k}, v24")
    for k in range(4):
        e(f"    s_waitcnt lgkmcnt({3-k})\n    global_store_dwordx4 v{24+k}, v[{8+4*k}:{11+4*k}], s[10:11] {STP}")
    stamp1()
    if DBG:
        e("    s_waitcnt vmcnt(0)")
        stamp1()
        e("    s_memrealtime s[34:35]\n    s_waitcnt lgkmcnt(0)\n    v_writelane_b32 v61, s34, 15")
        e(f"""    s_lshl_b32 s3, s2, 4
    s_add_u32 s3, s3, s23
    s_lshl_b32 s3, s3, 6
    s_add_u32 s3, s3, {WS_DBG}
    s_mov_b64 exec, 0xffff
    v_and_b32 v2, 63, v0
    v_lshlrev_b32 v2, 2, v2
    v_add_u32 v2, s3, v2
    global_store_dword v2, v61, s[10:11]""")
    e("    s_endpgm")
    e(f"""K1_PREP:
    s_sub_u32 s16, s2, {NCH}
    s_and_b32 s30, s16, 1
    s_lshr_b32 s16, s16, 1
    s_mov_b32 s26, 1.0
    s_cmp_eq_u32 s16, 0
    s_cbranch_scc1 K1_P0
    s_cmp_eq_u32 s16, 1
    s_cbranch_scc1 K1_P1
    s_cmp_eq_u32 s16, 2
    s_cbranch_scc1 K1_P2
    s_load_dwordx2 s[24:25], s[0:1], 56
    s_branch K1_PJ
K1_P0:
    s_load_dwordx2 s[24:25], s[0:1], 40
    s_mov_b32 s26, {NEG_LOG2E:#x}
    s_branch K1_PJ
K1_P1:
    s_load_dwordx2 s[24:25], s[0:1], 64
    s_branch K1_PJ
K1_P2:
    s_load_dwordx2 s[24:25], s[0:1], 32
    s_mov_b32 s26, {NEG_LOG2E:#x}
K1_PJ:
    s_load_dwordx2 s[28:29], s[0:1], 48
    s_lshl_b32 s31, s30, 8
    v_add_u32 v9, s31, v0
    v_and_b32 v1, 63, v9
    v_lshrrev_b32 v2, 6, v9
    v_and_b32 v3, 31, v1
    v_lshrrev_b32 v4, 5, v1
    v_lshrrev_b32 v5, 1, v2
    v_and_b32 v6, 1, v2
    v_lshlrev_b32 v7, 11, v5
    v_lshl_add_u32 v7, v4, 10, v7
    v_lshl_add_u32 v7, v6, 6, v7
    v_lshl_add_u32 v7, v3, 1, v7
    s_lshl_b32 s17, s16, 13
    s_add_u32 s17, s17, {WS_W}
    v_lshlrev_b32 v8, 4, v9
    v_add_u32 v8, s17, v8
    s_waitcnt lgkmcnt(0)
    v_cmp_gt_u32 vcc, 256, v0
    s_and_saveexec_b64 s[18:19], vcc
    s_cbranch_execz K1_PWC""")
    for j in range(8):
        e(f"    global_load_ushort v{10+j}, v7, s[24:25] offset:{128*j}")
    e("    s_waitcnt vmcnt(0)")
    for j in range(8):
        e(f"""    v_lshlrev_b32 v{10+j}, 16, v{10+j}
    v_mul_f32 v{10+j}, s26, v{10+j}""")
    for j in range(4):
        e(f"    v_cvt_pk_bf16_f32 v{20+j}, v{10+2*j}, v{11+2*j}")
    e(f"""    global_store_dwordx4 v8, v[20:23], s[10:11]
K1_PWC:
    s_mov_b64 exec, s[18:19]
    s_or_b32 s17, s16, s30
    s_cmp_lg_u32 s17, 0
    s_cbranch_scc1 K1_END
    v_subrev_u32 v9, 256, v0
    v_and_b32 v3, 31, v9
    v_bfe_u32 v4, v9, 5, 1
    v_cmp_gt_u32 vcc, 128, v9
    s_and_saveexec_b64 s[18:19], vcc
    s_cbranch_execz K1_END
    v_lshrrev_b32 v6, 6, v9
    v_lshlrev_b32 v7, 6, v6
    v_lshl_add_u32 v7, v3, 1, v7
    global_load_ushort v10, v7, s[28:29]
    v_lshlrev_b32 v8, 2, v9
    v_add_u32 v8, {WS_W+32768}, v8
    v_mov_b32 v12, {BIG:#x}
    s_waitcnt vmcnt(0)
    v_lshlrev_b32 v10, 16, v10
    v_mul_f32 v10, {NEG_LOG2E:#x}, v10
    v_cvt_pk_bf16_f32 v11, v10, v12
    v_cmp_eq_u32 vcc, 0, v4
    s_nop 1
    v_cndmask_b32 v11, 0, v11, vcc
    global_store_dword v8, v11, s[10:11]
K1_END:
    s_endpgm""")

S_X, S_WS, S_OUT = "s[4:5]", "s[6:7]", "s[8:9]"
SRD_X, SRD_XB, SRD_OUT, SRD_WS = "s[12:15]", "s[16:19]", "s[20:23]", "s[24:27]"
sB, sWV, sT, sCNT, sN0, sNL = "s28", "s29", "s30", "s31", "s33", "s34"
s4T, sG, sRND, sMORE, sKM = "s35", "s36", "s37", "s38", "s39"
sMSK22, sMSKA, sM0B = "s45", "s46", "s47"
sLA, sLB, sDD, sCAP = "s40", "s41", "s42", "s43"
sRHO, sFB = "s50", "s51"
sMASK = 56

GA, HA, GB, HB = 64, 80, 96, 112
ACC = {'A': 56, 'B': 58}
vXR = [2, 3, 4, 5]
vSRC_RD, vEW_RD, vGA_RD, vGF_RD = 6, 7, 8, 9
vCHA, vCHB, vAFC, vN4 = 10, 11, 12, 13
vN, vH = 14, 15
vGF = [16, 20]
vSRC = 24
vGA, vAFA = 28, 29
vLEN, vBASE = (30, 31), (32, 33)
vXP = 34
vGK = [40, 44]
vUT = 48
aWB, aWV, aAFA, aAFB, aO, aU = 0, 32, 80, 84, 88, 96
aX = [64, 112]

INLOOP = [False]
def mfma(d, a, b, cc):
    if 'nomfma' in X and INLOOP[0]: return "    s_nop 0"
    return f"    v_mfma_f32_32x32x16_bf16 {d}, {a}, {b}, {cc}"
def vr(b, n): return f"v[{b}:{b+n-1}]"
def ar(b, n): return f"a[{b}:{b+n-1}]"

def mfma_group(fb, xb):
    G, H = (GA, HA) if fb == 'A' else (GB, HB)
    f = 0 if fb == 'A' else 1
    af = aAFA if fb == 'A' else aAFB
    out = [mfma(vr(G, 16), ar(aO, 4), ar(af, 4), "0")]
    gs_ = [mfma(vr(G, 16), ar(aX[xb] + 4*s, 4), ar(aWB + (s*2+f)*4, 4), vr(G, 16)) for s in range(4)]
    hs_ = [mfma(vr(H, 16), ar(aX[xb] + 4*s, 4), ar(aWV + (s*2+f)*4, 4), "0" if s == 0 else vr(H, 16)) for s in range(4)]
    if 'swapop' in X:
        gs_ = gs_
    if 'share' in X:
        for s in range(4): out += [gs_[s], hs_[s]]
    else:
        out += gs_ + hs_
    return out

def dma_issue():
    grp = []
    for k in range(4):
        ch = vCHA if k % 2 == 0 else vCHB
        g = [f"    v_and_or_b32 v{vSRC+k}, v{vSRC+k}, {sMSK22}, v{ch}"]
        g.append(f"    s_mov_b32 m0, {sM0B}" if k == 0 else "    s_add_u32 m0, m0, 1024")
        g.append("    s_nop 0")
        if 'nodma' not in X: g.append(f"    buffer_load_dwordx4 v{vSRC+k}, {SRD_X}, 0 offen lds")
        grp.append(g)
    return grp

def src_reads(o1):
    return [f"    ds_read2_b32 v[{vSRC}:{vSRC+1}], v{vSRC_RD} offset0:{32*o1} offset1:{32*o1+8}",
            f"    ds_read2_b32 v[{vSRC+2}:{vSRC+3}], v{vSRC_RD} offset0:{32*o1+16} offset1:{32*o1+24}"]

def reads_next(xb, o1=0):
    o = []
    for s in range(4):
        o.append(f"    ds_read_b128 {ar(aX[xb]+4*s,4)}, v{vXR[s]}")
    o.append(f"    ds_read_b32 v{vGA}, v{vGA_RD} offset:{16*o1}")
    o += src_reads(o1)
    o.append(f"    ds_read_b32 a{aO+2}, v{vEW_RD} offset:{128*o1}")
    return o

def after_reads(npar, o1=0):
    return [f"    v_bitop3_b32 v{vAFA}, v{vGA}, {sMSKA}, v{vAFC} bitop3:0x6a",
            f"    ds_read_b64_tr_b16 {ar(aAFA,2)}, v{vAFA}",
            f"    ds_read_b64_tr_b16 {ar(aAFB,2)}, v{vAFA} offset:64",
            f"    ds_read_b128 {vr(vGF[npar],4)}, v{vGF_RD} offset:{16*o1}",
            f"    ds_read_b128 {vr(vGK[npar],4)}, v{vGF_RD} offset:{GKT-GFT+16*o1}"]
def gf_fix(npar):
    return [f"    v_add_u32 v{vGF[npar]+i}, v{vGF[npar]+i}, v{vN4}" for i in range(4)]

def advance_addrs(m):
    return [f"    v_add_u32 v{vEW_RD}, {128*m}, v{vEW_RD}", f"    v_add_u32 v{vSRC_RD}, {128*m}, v{vSRC_RD}",
            f"    v_add_u32 v{vGA_RD}, {16*m}, v{vGA_RD}", f"    v_add_u32 v{vGF_RD}, {16*m}, v{vGF_RD}"]

def phase(fb, par, mf, ex1, ex2):
    G, H = (GA, HA) if fb == 'A' else (GB, HB)
    d = ACC[fb]
    nov = 'novalu' in X
    def run(op, mfs, mpos, ex):
        k = 0
        for j in range(17):
            while k < len(mfs) and mpos[k] == j:
                e(mfs[k]); k += 1
            for x in ex.get(j, []): e(x)
            if j < 16: e(f"    {op} v{G+j}, v{G+j}" if not nov else "    s_nop 0")
        assert k == len(mfs)
    run("v_exp_f32", mf[0:5], [0, 3, 6, 9, 12], ex1)
    for j in range(0, 16, 2):
        e(f"    v_pk_add_f32 v[{G+j}:{G+j+1}], v[{G+j}:{G+j+1}], 1.0 op_sel_hi:[1,0]" if not nov else "    s_nop 0")
    run("v_rcp_f32", mf[5:9], [0, 3, 6, 9], ex2)
    f = 0 if fb == 'A' else 1
    clump = 'noclump' not in X
    xs = [34, 36, 60, 62]
    prev = d
    wr = []
    for i in range(4):
        g = G + 4*i; h = H + 4*i; k = vGK[par] + i
        u = vUT + 4*(i & 1); t = u + 2
        x = xs[i] if clump else vXP + 2*(i & 1)
        dst = (x if i < 3 else d) if clump else d
        if not nov:
            e(f"    v_pk_mul_f32 v[{t}:{t+1}], v[{g}:{g+1}], v[{h}:{h+1}]")
            e(f"    v_pk_add_f32 v[{u}:{u+1}], v[{g}:{g+1}], v[{g+2}:{g+3}]")
            e(f"    v_pk_fma_f32 v[{t}:{t+1}], v[{g+2}:{g+3}], v[{h+2}:{h+3}], v[{t}:{t+1}]")
            e(f"    v_add_f32 v{x}, v{u}, v{u+1}")
            e(f"    v_add_f32 v{x+1}, v{t}, v{t+1}")
            e(f"    v_pk_fma_f32 v[{dst}:{dst+1}], v[{prev}:{prev+1}], v[{k & ~1}:{(k & ~1)+1}], v[{x}:{x+1}] op_sel:[0,{k&1},0] op_sel_hi:[1,{k&1},1]")
            w = f"    ds_write2_b32 v{vGF[par]+i}, v{dst}, v{dst+1} offset0:{f*32} offset1:{64+f*32}"
            if 'nowr' not in X:
                if clump: wr.append(w)
                else: e(w)
            prev = dst
    for w in wr: e(w)

def tile_body(par):
    npar = 1 - par
    dm = dma_issue()
    ex1 = {1: ["    s_waitcnt vmcnt(0)"] + reads_next(npar, par)}
    ex2 = {1: ["    s_waitcnt lgkmcnt(0)"] + after_reads(npar, par), 4: dm[0], 7: dm[1], 10: dm[2], 12: dm[3]}
    if 'nodmaclump' not in X:
        ex2 = {1: ["    s_waitcnt lgkmcnt(0)"] + after_reads(npar, par), 4: dm[0] + dm[1] + dm[2] + dm[3]}
    if par == 1: ex2[14] = advance_addrs(2)
    exB1 = {2: gf_fix(npar)}
    pa, pb = 3 - 2*par, 2 - 2*par
    if 'prioAB' in X: pa, pb = 1, 0
    if 'prioBA' in X: pa, pb = 0, 1
    if 'prio2' in X: pa, pb = (1, 1) if par == 0 else (0, 0)
    if 'noprio' not in X: e(f"    s_setprio {pa}")
    phase('A', par, mfma_group('B', par), ex1, ex2)
    if 'noprio' not in X: e(f"    s_setprio {pb}")
    mA = mfma_group('A', npar)
    mA[0] = ("    s_waitcnt lgkmcnt(4)\n" if 'nowr' not in X and 'novalu' not in X else "    s_waitcnt lgkmcnt(0)\n") + mA[0]
    phase('B', par, mA, exB1, {})

vLANE = 1
vTAB = (16, 17)
vLR, vREM = (18, 19), (20, 21)
vREC = 64
vA = 96
vRK = 112
def slot_list(ks):
    for k in ks:
        for r in range(2):
            for p in range(2):
                yield k, r, p, (2*k+r)*2 + p
def msk(q): return f"s[{sMASK+2*q}:{sMASK+2*q+1}]"

def slot_pass(name, fns):
    for fn in fns:
        for sl in slot_list([0, 1]):
            e(fn(*sl))
    for k in (2, 3):
        e(f"    s_cmp_le_u32 {sKM}, {k}\n    s_cbranch_scc1 {name}_DONE")
        for fn in fns:
            for sl in slot_list([k]):
                e(fn(*sl))
    e(f"{name}_DONE:")

def seg_masks():
    c("per-round segment limits and slot masks")
    for r in range(2):
        e(f"    v_sub_u32 v{vREM[r]}, v{vLR[r]}, v22")
    for k, r, p, q in slot_list(range(4)):
        e(f"    v_cmp_lt_i32 {msk(q)}, {8*k+p}, v{vREM[r]}")
    q20, q21, q30, q31 = 8, 10, 12, 14
    e(f"""    s_mov_b32 {sKM}, 2
    s_or_b64 s[52:53], {msk(q20)}, {msk(q21)}
    s_cmp_lg_u64 s[52:53], 0
    s_cselect_b32 {sKM}, 3, {sKM}
    s_or_b64 s[52:53], {msk(q30)}, {msk(q31)}
    s_cmp_lg_u64 s[52:53], 0
    s_cselect_b32 {sKM}, 4, {sKM}""")

PFN = 2 if 'pf2' in X else 0
P1_HIST, P1_OFFS = 16384, 17408
P1_STAGE = RECS
S_DBG = "s[10:11]"
KNAME = "gather_scatter__edge_featured_mpnn_gatedgcn__graph_kernel"
def gen_k2():
    STP = 'sc0 sc1'
    NT = 400
    e(f".globl {KNAME}\n.p2align 8\n.type {KNAME},@function\n{KNAME}:")
    e(f"""    s_cmp_ge_u32 s2, {NBINS}
    s_cbranch_scc1 K2_END
    s_load_dwordx4 s[56:59], s[0:1], 16
    s_load_dwordx4 s[60:63], s[0:1], 0
    s_load_dwordx4 s[64:67], s[0:1], 32
    s_load_dwordx4 s[68:71], s[0:1], 48
    s_load_dwordx4 s[72:75], s[0:1], 64
    s_load_dwordx4 s[76:79], s[0:1], 80
    s_and_b32 {sB}, s2, 7
    s_lshl_b32 {sB}, {sB}, 5
    s_lshr_b32 s3, s2, 3
    s_add_u32 {sB}, {sB}, s3
    s_mul_i32 {sN0}, {sB}, {NB}
    s_sub_u32 {sNL}, {N}, {sN0}
    s_min_u32 {sNL}, {sNL}, {NB}
    v_lshrrev_b32 v2, 6, v0
    v_and_b32 v{vLANE}, 63, v0
    v_readfirstlane_b32 {sWV}, v2
    s_mov_b32 {sMSK22}, 0x3fffff
    s_mov_b32 {sMSKA}, 0x3fb8
    s_mov_b32 {sRND}, 0""")
    c("phase-1 addresses")
    e(f"""    s_mul_i32 s48, s2, {CH*4}
    v_lshlrev_b32 v40, 4, v0
    v_add_u32 v41, s48, v40
    v_add_u32 v42, {NT*16}, v41
    v_lshrrev_b32 v43, 1, v41
    v_lshrrev_b32 v44, 1, v42
    v_lshlrev_b32 v45, 2, v0
    v_mov_b32 v46, 0
    v_cmp_gt_u32 vcc, 256, v0
    s_and_saveexec_b64 s[52:53], vcc
    ds_write_b32 v45, v46 offset:{P1_HIST}
    s_mov_b64 exec, s[52:53]
    v_mov_b32 v46, 1
    v_cmp_gt_u32 vcc, {NT}, v0
    s_and_b64 s[54:55], exec, vcc
    s_lshl_b32 s3, {sN0}, 7
    s_lshl_b32 s49, {sNL}, 7
    s_waitcnt lgkmcnt(0)""")
    if DBG:
        e(f"    s_memrealtime s[98:99]\n    s_waitcnt lgkmcnt(0)\n    v_writelane_b32 v{vDBG}, s98, 13")
    e(f"""    s_cmp_ge_u32 s2, {NCH}
    s_cbranch_scc1 K2_P1A
    s_mov_b64 exec, s[54:55]
    global_load_dwordx4 v[64:67], v41, s[58:59]
    global_load_dwordx4 v[68:71], v42, s[58:59]
    s_mov_b64 exec, -1
K2_P1A:
    s_mov_b32 s4, s60
    s_mov_b32 s5, s61
    s_mov_b32 s6, s78
    s_mov_b32 s7, s79
    s_mov_b32 s10, s76
    s_mov_b32 s11, s77
    s_mov_b32 s24, s78
    s_mov_b32 s25, s79
    s_mov_b32 s26, {WS_SIZE}
    s_mov_b32 s27, 0x00020000
    s_mov_b32 s12, s60
    s_mov_b32 s13, s61
    s_mov_b32 s14, {N*128}
    s_mov_b32 s15, 0x00020000
    s_add_u32 s16, s60, s3
    s_addc_u32 s17, s61, 0
    s_mov_b32 s18, s49
    s_mov_b32 s19, 0x00020000
    s_add_u32 s20, s74, s3
    s_addc_u32 s21, s75, 0
    s_mov_b32 s22, s49
    s_mov_b32 s23, 0x00020000""")
    hstamp()
    c("lane constants")
    e(f"""    s_lshr_b32 {sRHO}, {sWV}, 1
    s_and_b32 {sFB}, {sWV}, 1
    v_and_b32 v{vN}, 31, v{vLANE}
    v_lshrrev_b32 v{vH}, 5, v{vLANE}
    v_lshrrev_b32 v22, 4, v{vLANE}
    v_and_b32 v{vCHB}, 7, v{vLANE}
    v_xor_b32 v{vCHA}, v22, v{vCHB}
    v_lshlrev_b32 v{vCHA}, 4, v{vCHA}
    v_xor_b32 v{vCHB}, 64, v{vCHA}
    s_lshl_b32 s3, {sWV}, 12
    s_add_u32 {sM0B}, s3, {XST}
    s_barrier""")
    e(f"""    s_cmp_ge_u32 s2, {NCH}
    s_cbranch_scc1 K2_P1B
    s_mov_b64 exec, s[54:55]
    global_load_dwordx4 v[96:99], v41, s[56:57]
    global_load_dwordx4 v[100:103], v42, s[56:57]
    global_load_dwordx2 v[104:105], v43, s[62:63]
    global_load_dwordx2 v[106:107], v44, s[62:63]
    s_mov_b64 exec, -1
K2_P1B:""")
    def w_dma():
        c("raw weights -> LDS (ROWS area): [w_b | w_v | w_a | w_u], wave w loads half (w&1) of matrix w>>1")
        e(f"""    s_cmp_eq_u32 {sRHO}, 1
    s_cselect_b32 s80, s72, s66
    s_cselect_b32 s81, s73, s67
    s_cmp_eq_u32 {sRHO}, 2
    s_cselect_b32 s80, s64, s80
    s_cselect_b32 s81, s65, s81
    s_cmp_eq_u32 {sRHO}, 3
    s_cselect_b32 s80, s70, s80
    s_cselect_b32 s81, s71, s81
    s_lshl_b32 s3, {sWV}, 12
    s_add_u32 s48, s3, {ROWS}
    s_mov_b32 m0, s48
    s_lshl_b32 s3, {sFB}, 12
    v_lshlrev_b32 v36, 4, v{vLANE}
    v_add_u32 v36, s3, v36""")
        for k in range(4):
            e(f"    global_load_lds_dwordx4 v36, s[80:81] offset:{1024*k}")
    def x_dma():
        c("x_bin rows 16w..16w+15 -> LDS (XST area, swizzled)")
        e(f"""    s_lshl_b32 s3, {sWV}, 11
    s_add_u32 s48, s3, {XST}
    s_mov_b32 m0, s48
    v_lshrrev_b32 v22, 3, v{vLANE}
    v_lshlrev_b32 v22, 7, v22
    v_add_u32 v22, s3, v22
    v_add_u32 v36, v22, v{vCHA}
    v_add_u32 v37, v22, v{vCHB}
    v_add_u32 v37, 1024, v37
    buffer_load_dwordx4 v36, {SRD_XB}, 0 offen lds
    s_add_u32 m0, m0, 1024
    v_lshlrev_b32 v39, 1, v{vN}
    buffer_load_dwordx4 v37, {SRD_XB}, 0 offen lds
    global_load_ushort v34, v39, s[68:69]
    global_load_ushort v35, v39, s[68:69] offset:64""")
    WL = 'wlate' in X; XL = 'xlate' in X
    if not WL: w_dma()
    if not XL: x_dma()
    NY = (0 if WL else 4) + (0 if XL else 4)
    e(f"""    v_bfe_u32 v22, v{vN}, 1, 3
    v_xor_b32 v22, v22, v{vH}
    v_lshlrev_b32 v22, 4, v22
    v_lshl_add_u32 v22, v{vN}, 7, v22
    v_add_u32 v{vXR[0]}, {sM0B}, v22""")
    for s_ in range(1, 4):
        e(f"    v_xor_b32 v{vXR[s_]}, {32*s_}, v{vXR[0]}")
    e(f"""    v_bfe_u32 v22, v{vLANE}, 4, 1
    v_and_b32 v{vAFC}, 3, v{vLANE}
    v_lshlrev_b32 v{vAFC}, 3, v{vAFC}
    v_lshl_add_u32 v{vAFC}, v22, 5, v{vAFC}
    v_lshlrev_b32 v{vN4}, 2, v{vN}""")
    e(f"""    v_lshrrev_b32 v48, 3, v{vN}
    v_bfe_u32 v49, v{vN}, 2, 1
    v_cmp_eq_u32 vcc, v49, v{vH}
    v_mov_b32 v50, 0x3f80
    v_and_b32 v51, 1, v48
    v_cndmask_b32 v50, 0, v50, vcc
    v_lshlrev_b32 v51, 4, v51
    v_lshlrev_b32 v50, v51, v50
    v_cmp_gt_u32 vcc, 2, v48
    v_mov_b32 v53, 0
    s_nop 0
    v_cndmask_b32 v51, 0, v50, vcc
    v_cndmask_b32 v52, v50, 0, vcc
    v_accvgpr_write_b32 a{aO}, v51
    v_accvgpr_write_b32 a{aO+1}, v52
    v_accvgpr_write_b32 a{aO+3}, v53
    v_accvgpr_write_b32 a{aAFA+3}, v53
    v_accvgpr_write_b32 a{aAFB+3}, v53""")
    DST, BIN4, NU, RK, SRC, EE, REC = 64, 72, 80, 88, 96, 104, 108
    e(f"""    s_cmp_ge_u32 s2, {NCH}
    s_cbranch_scc1 K2_P1LATE
    s_mov_b64 exec, s[54:55]
    s_mov_b32 s48, {-NB & 0xffffffff}
    s_waitcnt vmcnt({5+NY})""")
    def binops(k):
        e(f"""    v_mul_u32_u24 v{BIN4+k}, 42800, v{DST+k}
    v_lshrrev_b32 v{BIN4+k}, 22, v{BIN4+k}
    v_mad_i32_i24 v{NU+k}, v{BIN4+k}, s48, v{DST+k}
    v_lshlrev_b32 v{BIN4+k}, 2, v{BIN4+k}""")
    hstamp()
    for k in range(4): binops(k)
    for k in range(4): e(f"    ds_add_rtn_u32 v{RK+k}, v{BIN4+k}, v46 offset:{P1_HIST}")
    e(f"    s_waitcnt vmcnt({4+NY})")
    for k in range(4, 8): binops(k)
    for k in range(4, 8): e(f"    ds_add_rtn_u32 v{RK+k}, v{BIN4+k}, v46 offset:{P1_HIST}")
    e(f"""    s_waitcnt lgkmcnt(0)
    s_barrier
    s_mov_b64 exec, -1
    v_lshlrev_b32 v47, 4, v{vLANE}
    ds_read_b128 v[48:51], v47 offset:{P1_HIST}
    s_waitcnt lgkmcnt(0)
    v_add_u32 v52, v48, v49
    v_add_u32 v53, v52, v50
    v_add_u32 v54, v53, v51
    v_mov_b32 v55, v54""")
    dpp_scan("v55")
    e(f"""    v_sub_u32 v56, v55, v54
    v_add_u32 v57, v56, v48
    v_add_u32 v58, v56, v52
    v_add_u32 v59, v56, v53
    ds_write_b128 v47, v[56:59] offset:{P1_OFFS}
    v_lshl_or_b32 v60, v57, 16, v56
    v_lshl_or_b32 v61, v58, 16, v57
    v_lshl_or_b32 v62, v59, 16, v58
    v_lshl_or_b32 v63, v55, 16, v59
    s_lshl_b32 s3, s2, 10
    s_add_u32 s3, s3, {WS_TAB}
    v_add_u32 v47, s3, v47
    s_waitcnt lgkmcnt(0)
    s_mov_b64 exec, s[54:55]""")
    for k in range(8):
        e(f"    ds_read_b32 v{48+k}, v{BIN4+k} offset:{P1_OFFS}")
    e(f"""    s_waitcnt vmcnt({NY})
    s_cmp_lg_u32 {sWV}, 0
    s_cbranch_scc1 K2_NOTAB
    s_mov_b64 exec, -1
    global_store_dwordx4 v47, v[60:63], s[6:7] {STP}
    s_mov_b64 exec, s[54:55]
K2_NOTAB:""")
    for k in range(8):
        e(f"""    v_lshlrev_b32 v{REC+2*k}, 7, v{SRC+k}
    v_lshl_or_b32 v{REC+2*k}, v{NU+k}, 24, v{REC+2*k}""")
    for k in range(8):
        src = EE + k//2
        e(f"    v_and_b32 v{REC+1+2*k}, 0xffff, v{src}" if k % 2 == 0 else f"    v_lshrrev_b32 v{REC+1+2*k}, 16, v{src}")
    e("    s_waitcnt lgkmcnt(0)")
    for k in range(8):
        e(f"    v_add_lshl_u32 v{48+k}, v{48+k}, v{RK+k}, 3")
    for k in range(8):
        e(f"    ds_write_b64 v{48+k}, v[{REC+2*k}:{REC+1+2*k}] offset:{P1_STAGE}")
    e("    s_waitcnt lgkmcnt(0)\n    s_barrier")
    for k in range(4):
        e(f"    ds_read_b128 v[{64+4*k}:{67+4*k}], v40 offset:{P1_STAGE+6400*k}")
    e("K2_P1LATE:")
    e("    s_mov_b64 exec, -1")
    if WL: w_dma()
    if XL: x_dma()
    e(f"    s_cmp_ge_u32 s2, {NCH}\n    s_cbranch_scc1 K2_P1END\n    s_mov_b64 exec, s[54:55]")
    e(f"""    s_mul_i32 s3, s2, {CH*8}
    v_add_u32 v48, s3, v40""")
    for k in range(1, 4):
        e(f"    v_add_u32 v{48+k}, {6400*k}, v48")
    for k in range(4):
        e(f"    s_waitcnt lgkmcnt({3-k})\n    global_store_dwordx4 v{48+k}, v[{64+4*k}:{67+4*k}], s[6:7] {STP}")
    e(f"""    s_mov_b64 exec, -1
K2_P1END:
    s_waitcnt vmcnt(0)
    s_barrier""")
    c("signal: this workgroup's records and table row are out")
    e(f"""    s_cmp_ge_u32 s2, {NCH}
    s_cbranch_scc1 K2_NOSIG
    s_cmp_lg_u32 {sWV}, 0
    s_cbranch_scc1 K2_NOSIG
    s_and_b32 s3, s2, 3
    s_lshl_b32 s3, s3, 6
    v_mov_b32 v48, s3
    v_mov_b32 v49, 1
    s_mov_b64 exec, 1
    global_atomic_add v48, v49, s[10:11]
    s_mov_b64 exec, -1
K2_NOSIG:""")
    hstamp()
    if DBG:
        e(f"    s_memrealtime s[98:99]\n    s_waitcnt lgkmcnt(0)\n    v_writelane_b32 v{vDBG}, s98, 12")
    c("weight fragments from the raw row-major copies (transposing reads); w_b and w_a are scaled by -log2(e)")
    e(f"""    v_bfe_u32 v22, v{vLANE}, 2, 2
    v_lshl_add_u32 v22, v{vH}, 3, v22
    v_lshlrev_b32 v22, 7, v22
    v_add_u32 v22, v22, v{vAFC}
    v_add_u32 v22, {ROWS}, v22
    s_lshl_b32 s3, {sFB}, 6
    v_add_u32 v23, s3, v22
    s_mov_b32 s48, {NEG_LOG2E:#x}
    s_mov_b32 s49, {NEG_LOG2E:#x}""")
    def trd(dst, reg, off):
        return [f"    ds_read_b64_tr_b16 {dst(0)}, v{reg} offset:{off}", f"    ds_read_b64_tr_b16 {dst(2)}, v{reg} offset:{off+512}"]
    for s_ in range(4):
        for f in range(2):
            base = aWV + (s_*2+f)*4
            for x in trd(lambda o: ar(base+o, 2), 22, 8192 + s_*2048 + f*64): e(x)
    for s_ in range(4):
        base = 64 + 4*s_
        for x in trd(lambda o: ar(base+o, 2), 23, 24576 + s_*2048): e(x)
    for s_ in range(4):
        for f in range(2):
            base = 64 + (s_*2+f)*4
            for x in trd(lambda o: vr(base+o, 2), 22, s_*2048 + f*64): e(x)
    for s_ in range(4):
        base = 96 + 4*s_
        for x in trd(lambda o: vr(base+o, 2), 23, 16384 + s_*2048): e(x)
    c("x_bin A fragments")
    e(f"""    s_lshl_b32 s3, {sRHO}, 12
    s_add_u32 s3, s3, {XST}
    s_sub_u32 s3, s3, {sM0B}""")
    for s_ in range(4):
        e(f"    v_add_u32 v{60+s_}, s3, v{vXR[s_]}")
    for s_ in range(4):
        e(f"    ds_read_b128 {vr(40+4*s_,4)}, v{60+s_}")
    e("    s_waitcnt lgkmcnt(0)")
    def scale(r, toacc):
        e(f"""    v_lshlrev_b32 v112, 16, v{r}
    v_and_b32 v113, 0xffff0000, v{r}
    v_pk_mul_f32 v[112:113], v[112:113], s[48:49]
    v_cvt_pk_bf16_f32 v{r}, v112, v113""")
        if toacc is not None: e(f"    v_accvgpr_write_b32 a{toacc}, v{r}")
    for r in range(16): scale(96 + r, None)
    c("A'^T = Wa'^T x^T (lane = node), U = x Wu")
    e(f"""    s_lshl_b32 s3, {sRHO}, 12
    s_lshl_b32 s80, {sFB}, 6
    s_add_u32 s3, s3, s80
    v_and_b32 v22, 7, v{vN}
    v_xor_b32 v22, v22, v{vH}
    v_lshlrev_b32 v22, 3, v22
    v_lshl_add_u32 v22, v{vN}, 7, v22
    v_add_u32 v60, s3, v22
    v_xor_b32 v61, 16, v60
    v_xor_b32 v62, 32, v60
    v_xor_b32 v63, 48, v60""")
    for s_ in range(4):
        e(mfma(vr(112,16), vr(96+4*s_,4), vr(40+4*s_,4), "0" if s_ == 0 else vr(112,16)))
    for s_ in range(4):
        e(mfma(ar(aU,16), vr(40+4*s_,4), ar(64+4*s_,4), "0" if s_ == 0 else ar(aU,16)))
    e("    s_nop 7")
    for r in range(0, 16, 2):
        e(f"    v_cvt_pk_bf16_f32 v{48+r//2}, v{112+r}, v{113+r}")
    for i in range(4):
        e(f"    ds_write_b64 v{60+i}, v[{48+2*i}:{49+2*i}] offset:{A_OFF}")
    for r in range(32): scale(64 + r, aWB + r)
    c("w_c words: (bf16(-log2e*w_c) | BIG<<16) for the lower half-wave, 0 for the upper")
    e(f"""    v_lshlrev_b32 v34, 16, v34
    v_lshlrev_b32 v35, 16, v35
    v_mul_f32 v34, s48, v34
    v_mul_f32 v35, s48, v35
    v_mov_b32 v36, {BIG:#x}
    v_cmp_eq_u32 vcc, 0, v{vH}
    v_cvt_pk_bf16_f32 v34, v34, v36
    v_cvt_pk_bf16_f32 v35, v35, v36
    v_cndmask_b32 v34, 0, v34, vcc
    v_cndmask_b32 v35, 0, v35, vcc
    v_accvgpr_write_b32 a{aAFA+2}, v34
    v_accvgpr_write_b32 a{aAFB+2}, v35""")
    c("wait until every chunk has been published")
    e(f"""    s_cmp_lg_u32 {sWV}, 0
    s_cbranch_scc1 K2_POLLED
    v_lshlrev_b32 v48, 6, v{vLANE}
    s_mov_b32 s80, 0
    s_mov_b64 exec, 15
K2_POLL:
    global_load_dword v49, v48, s[10:11] sc1
    s_waitcnt vmcnt(0)
    v_readlane_b32 s81, v49, 0
    v_readlane_b32 s82, v49, 1
    v_readlane_b32 s83, v49, 2
    v_readlane_b32 s84, v49, 3
    s_add_u32 s81, s81, s82
    s_add_u32 s83, s83, s84
    s_add_u32 s81, s81, s83
    s_cmp_ge_u32 s81, {NCH}
    s_cbranch_scc1 K2_POLL_DONE
    s_sleep 2
    s_add_u32 s80, s80, 1
    s_cmp_lt_u32 s80, 40000
    s_cbranch_scc1 K2_POLL
K2_POLL_DONE:
    s_mov_b64 exec, -1
K2_POLLED:
    s_waitcnt lgkmcnt(0)
    s_barrier""")
    stamp()
    if DBG: e(f"    s_memrealtime s[98:99]\n    s_waitcnt lgkmcnt(0)\n    v_writelane_b32 v{vDBG}, s98, 14")
    hstamp()
    c("table words")
    e(f"""    v_lshrrev_b32 v42, 2, v0
    v_lshlrev_b32 v40, 10, v42
    s_lshl_b32 s48, {sB}, 2
    s_add_u32 s48, s48, {WS_TAB}
    v_add_u32 v40, s48, v40
    v_add_u32 v41, {128*1024}, v40
    buffer_load_dword v{vTAB[0]}, v40, {SRD_WS}, 0 offen sc1
    buffer_load_dword v{vTAB[1]}, v41, {SRD_WS}, 0 offen sc1""")
    e("K2_ROUND_INIT:")
    c("LDS init: cnt = 0, headn = -1, flag = 0")
    e(f"""    v_lshlrev_b32 v40, 2, v0
    v_mov_b32 v41, 0
    v_cmp_gt_u32 vcc, 192, v0
    s_and_saveexec_b64 s[52:53], vcc
    ds_write_b32 v40, v41 offset:{CNT}
    v_cmp_gt_u32 vcc, 18, v0
    s_and_b64 exec, exec, vcc
    v_cmp_gt_u32 vcc, 16, v0
    v_mov_b32 v42, -1
    s_nop 0
    v_cndmask_b32 v42, 0, v42, vcc
    ds_write_b32 v40, v42 offset:{HEADN}
    s_mov_b64 exec, s[52:53]
    v_and_b32 v22, 3, v0
    v_lshlrev_b32 v22, 1, v22""")
    assert FLAG == HEADN + 64
    e(f"""    s_cmp_lg_u32 {sRND}, 0
    s_cbranch_scc1 K2_ROUND_N""")
    c("segment descriptors: segment r of this thread = (tid>>2) + 128 r ; c = tid&3")
    e(f"""    v_lshrrev_b32 v40, 2, v0
    v_add_u32 v41, 128, v40
    v_cmp_gt_u32 vcc, {NCH}, v41
    v_mul_u32_u24 v40, {CH}, v40
    v_mul_u32_u24 v41, {CH}, v41
    v_add_u32 v40, v40, v22
    v_add_u32 v41, v41, v22
    s_waitcnt vmcnt(0)
    v_and_b32 v42, 0xffff, v{vTAB[0]}
    v_lshrrev_b32 v43, 16, v{vTAB[0]}
    v_and_b32 v44, 0xffff, v{vTAB[1]}
    v_lshrrev_b32 v45, 16, v{vTAB[1]}
    v_sub_u32 v{vLEN[0]}, v43, v42
    v_sub_u32 v{vLEN[1]}, v45, v44
    v_add_lshl_u32 v{vBASE[0]}, v40, v42, 3
    v_add_lshl_u32 v{vBASE[1]}, v41, v44, 3
    v_cndmask_b32 v{vLEN[1]}, 0, v{vLEN[1]}, vcc
K2_ROUND_N:
    v_min_u32 v{vLR[0]}, 32, v{vLEN[0]}
    v_min_u32 v{vLR[1]}, 32, v{vLEN[1]}""")
    seg_masks()
    stamp()
    def rec_loads():
        c("record loads")
        for k in range(4):
            for r in range(2):
                q = (2*k+r)*2
                e(f"    s_mov_b64 exec, {msk(q)}")
                e(f"    buffer_load_dwordx4 {vr(vREC+(2*k+r)*4,4)}, v{vBASE[r]}, {SRD_WS}, 0 offen offset:{64*k} sc1")
        e("    s_mov_b64 exec, -1")
    rec_loads()
    c("cnt / headn / flags initialised above must be visible before counting")
    e("    s_waitcnt lgkmcnt(0)\n    s_barrier")
    stamp()
    stamp()
    e("K2_COUNT:")
    c("counting pass (records arrive in k order)")
    e("    v_mov_b32 v40, 1")
    cfn = [lambda k, r, p, q: f"    v_lshrrev_b32 v{vA+q}, 22, v{vREC+(2*k+r)*4+2*p}",
           lambda k, r, p, q: f"    s_mov_b64 exec, {msk(q)}\n    ds_add_rtn_u32 v{vRK+q}, v{vA+q}, v40 offset:{CNT}",
           lambda k, r, p, q: "    s_mov_b64 exec, -1" if q % 4 == 3 else ""]
    for k in range(4):
        if k >= 2: e(f"    s_cmp_le_u32 {sKM}, {k}\n    s_cbranch_scc1 K2_CNT_DONE")
        e(f"    s_waitcnt vmcnt({PFN + 6 - 2*k})")
        if 'fine2' in X and k < 2: stamp_at(13 + k)
        for fn in cfn:
            for sl in slot_list([k]): e(fn(*sl))
    e("K2_CNT_DONE:")
    e("    s_mov_b64 exec, -1\n    s_waitcnt lgkmcnt(0)\n    s_barrier")
    stamp()
    c("scan over nodes (every wave redundantly)")
    e(f"""    v_lshlrev_b32 v40, 3, v{vLANE}
    ds_read_b64 v[42:43], v40 offset:{CNT}
    s_waitcnt lgkmcnt(0)
    v_add_u32 v44, 3, v42
    v_add_u32 v45, 3, v43
    v_lshrrev_b32 v44, 2, v44
    v_lshrrev_b32 v45, 2, v45
    v_add_u32 v46, v44, v45
    v_mov_b32 v47, v46""")
    dpp_scan("v47")
    e(f"""    v_sub_u32 v48, v47, v46
    v_add_u32 v49, v48, v44
    v_readlane_b32 {sG}, v47, 63
    v_lshlrev_b32 v50, 5, v48
    v_lshlrev_b32 v51, 5, v49
    v_add_u32 v50, {RECS}, v50
    v_add_u32 v51, {RECS}, v51
    s_cmp_le_u32 {sG}, {GMAX}
    s_cbranch_scc1 K2_FITS""")
    c("overflow: redo this round with 12 records per segment")
    e(f"""    s_barrier
    v_lshlrev_b32 v40, 2, v0
    v_mov_b32 v41, 0
    v_cmp_gt_u32 vcc, 192, v0
    s_and_saveexec_b64 s[52:53], vcc
    ds_write_b32 v40, v41 offset:{CNT}
    s_mov_b64 exec, s[52:53]
    v_min_u32 v{vLR[0]}, 12, v{vLEN[0]}
    v_min_u32 v{vLR[1]}, 12, v{vLEN[1]}
    v_and_b32 v22, 3, v0
    v_lshlrev_b32 v22, 1, v22""")
    seg_masks()
    e(f"""    s_waitcnt lgkmcnt(0)
    s_barrier
    s_branch K2_COUNT
K2_FITS:
    ds_write_b64 v40, v[48:49] offset:{GS}
    ds_write_b64 v40, v[50:51] offset:{GSA}
    s_add_u32 s3, {sG}, 31
    s_lshr_b32 s3, s3, 5
    s_max_u32 s3, s3, 2
    s_add_u32 {sLA}, s3, 1
    s_lshr_b32 {sLA}, {sLA}, 1
    s_lshr_b32 {sLB}, s3, 1
    s_cmp_lt_u32 {sWV}, 4
    s_cselect_b32 {sT}, {sLA}, {sLB}
    s_lshl_b32 {sLA}, {sLA}, 2
    s_lshl_b32 {sLB}, {sLB}, 2
    s_sub_u32 {sDD}, {sLA}, {sLB}
    s_lshl_b32 {sDD}, {sDD}, 3
    s_lshl_b32 {sCAP}, s3, 5
    v_cvt_f32_u32 v52, {sLA}
    v_cvt_f32_u32 v34, {sLB}
    v_rcp_f32 v52, v52
    v_rcp_f32 v34, v34
    s_lshl_b32 s3, {sLA}, 3
    v_cvt_f32_u32 v35, s3
    v_sub_f32 v35, 0.5, v35
    v_mov_b32 v36, 0x41000000
    v_fma_f32 v35, v35, v34, v36
    v_lshrrev_b32 v54, 2, v0
    v_lshlrev_b32 v40, 2, v54
    v_mul_f32 v53, 0.5, v52
    s_waitcnt lgkmcnt(0)""")
    if 'fine' in X: stamp()
    c("node data + scatter lookups")
    e(f"""    ds_read_b32 v42, v40 offset:{GS}
    ds_read_b32 v43, v40 offset:{GS+4}
    ds_read_b32 v44, v40 offset:{CNT}""")
    slot_pass("K2_S1", [lambda k, r, p, q: f"    s_mov_b64 exec, {msk(q)}\n    ds_read_b32 v{vA+q}, v{vA+q} offset:{GSA}"])
    e("    s_mov_b64 exec, -1")
    c("more-records flag")
    e(f"""    v_cmp_gt_u32 vcc, v{vLEN[0]}, v{vLR[0]}
    v_cmp_gt_u32 s[52:53], v{vLEN[1]}, v{vLR[1]}
    v_and_b32 v45, 3, v0
    s_nop 0
    s_or_b64 vcc, vcc, s[52:53]
    s_and_saveexec_b64 s[52:53], vcc
    v_mov_b32 v46, 1
    v_mov_b32 v47, {FLAG}
    ds_write_b32 v47, v46
    s_mov_b64 exec, s[52:53]""")
    if 'fine' in X: stamp()
    c("node jobs: thread (nu = tid>>2, q = tid&3)")
    e(f"""    v_cmp_gt_u32 vcc, {NB}, v54
    s_and_b64 exec, exec, vcc
    s_cbranch_execz K2_NODE_DONE
    v_lshlrev_b32 v46, 7, v54
    v_and_b32 v47, 7, v54
    v_lshl_or_b32 v46, v47, 3, v46
    v_lshlrev_b32 v47, 9, v54
    v_add_u32 v47, {ROWS}, v47
    s_mov_b64 s[54:55], exec
    s_waitcnt lgkmcnt(0)
    v_sub_u32 v43, v43, v42""")
    c("empty nodes: raise a flag, their rows are zeroed after the W fragments have been read")
    e(f"""    v_cmp_eq_u32 vcc, 0, v44
    s_and_b64 exec, exec, vcc
    v_mov_b32 v48, 1
    v_mov_b32 v49, {FLAG+4}
    ds_write_b32 v49, v48
    s_mov_b64 exec, s[54:55]""")
    c("pad slots in the last group")
    e(f"""    v_add_u32 v48, v44, v45
    v_lshlrev_b32 v49, 2, v43
    v_cmp_lt_u32 vcc, v48, v49
    v_lshlrev_b32 v49, 5, v42
    v_lshl_add_u32 v49, v48, 3, v49
    v_mov_b32 v50, 0
    v_mov_b32 v51, 0x3f800000
    s_and_b64 exec, exec, vcc
    ds_write_b64 v49, v[50:51] offset:{RECS}
    s_mov_b64 exec, s[54:55]""")
    c("stream of first / last group")
    e(f"""    v_add_u32 v48, v42, v43
    v_max_u32 v49, 1, v43
    v_add_u32 v49, v42, v49
    v_subrev_u32 v49, 1, v49
    s_lshl_b32 s3, {sLA}, 3
    v_cvt_f32_u32 v50, v42
    v_cvt_f32_u32 v51, v49
    v_fma_f32 v55, v50, v34, v35
    v_fma_f32 v56, v51, v34, v35
    v_fma_f32 v50, v50, v52, v53
    v_fma_f32 v51, v51, v52, v53
    v_cmp_gt_u32 vcc, s3, v42
    v_cmp_gt_u32 s[52:53], s3, v49
    v_cvt_u32_f32 v55, v55
    v_cvt_u32_f32 v56, v56
    v_cvt_u32_f32 v50, v50
    v_cvt_u32_f32 v51, v51
    v_cndmask_b32 v50, v55, v50, vcc
    v_cndmask_b32 v51, v56, v51, s[52:53]
    v_add_u32 v55, 1, v50
    v_mul_u32_u24 v56, {sLA}, v55
    v_mul_u32_u24 v57, {sLB}, v55
    v_add_u32 v57, {sDD}, v57
    v_min_u32 v56, v56, v57
    v_lshlrev_b32 v57, 9, v55
    v_add_u32 v57, {HEADS}, v57
    v_cmp_lt_u32 vcc, v50, v51
    v_lshlrev_b32 v58, 2, v55
    s_and_b64 exec, exec, vcc
    ds_write_b32 v58, v54 offset:{HEADN}
    s_mov_b64 exec, s[54:55]""")
    c("groups q, q+4, q+8, q+12 (fast path)")
    e(f"""    v_add_u32 v59, v42, v45
    v_mov_b32 v60, 1.0
    v_mov_b32 v61, 0""")
    for m in range(4):
        e(f"""    v_cmp_lt_u32 vcc, v59, v48
    s_and_b64 exec, exec, vcc
    v_cmp_ge_u32 vcc, v59, v56
    v_cmp_eq_u32 s[52:53], v59, v56
    v_cmp_eq_u32 s[88:89], v59, v42
    v_lshlrev_b32 v62, 2, v59
    v_cndmask_b32 v63, v47, v57, vcc
    s_or_b64 s[52:53], s[52:53], s[88:89]
    ds_write2st64_b32 v62, v46, v63 offset0:{GAT//256} offset1:{GFT//256}
    v_cndmask_b32 v63, v60, v61, s[52:53]
    v_add_u32 v59, 4, v59
    ds_write_b32 v62, v63 offset:{GKT}""")
    c("rare: more than 16 groups, or a node spanning more than two streams")
    e(f"""    s_mov_b64 exec, s[54:55]
    v_cmp_lt_u32 vcc, 16, v43
    v_add_u32 v59, 1, v50
    v_cmp_lt_u32 s[52:53], v59, v51
    s_nop 1
    s_or_b64 vcc, vcc, s[52:53]
    s_cbranch_vccz K2_NODE_DONE
    v_add_lshl_u32 v58, v42, v45, 2
    v_cmp_eq_u32 vcc, 0, v45
    v_mov_b32 v49, v45
    v_mov_b32 v55, 1.0
    v_mov_b32 v59, 0
    v_cndmask_b32 v56, 1.0, v59, vcc
K2_BULK:
    v_cmp_lt_u32 vcc, v49, v43
    s_and_b64 exec, exec, vcc
    s_cbranch_execz K2_BULK_DONE
    ds_write2st64_b32 v58, v46, v47 offset0:{GAT//256} offset1:{GFT//256}
    ds_write_b32 v58, v56 offset:{GKT}
    v_mov_b32 v56, v55
    v_add_u32 v58, 16, v58
    v_add_u32 v49, 4, v49
    s_branch K2_BULK
K2_BULK_DONE:
    s_mov_b64 exec, s[54:55]
    v_cmp_lt_u32 vcc, 0, v43
    s_and_b64 exec, exec, vcc
    s_cbranch_execz K2_NODE_DONE
K2_BND:
    v_cmp_lt_u32 vcc, v50, v51
    s_and_b64 exec, exec, vcc
    s_cbranch_execz K2_NODE_DONE
    v_add_u32 v50, 1, v50
    v_mul_u32_u24 v55, {sLA}, v50
    v_mul_u32_u24 v56, {sLB}, v50
    v_add_u32 v56, {sDD}, v56
    v_min_u32 v55, v55, v56
    v_add_u32 v61, 1, v50
    v_mul_u32_u24 v60, {sLA}, v61
    v_mul_u32_u24 v61, {sLB}, v61
    v_add_u32 v61, {sDD}, v61
    v_min_u32 v60, v60, v61
    v_lshlrev_b32 v56, 9, v50
    v_add_u32 v56, {HEADS}, v56
    v_lshlrev_b32 v57, 2, v50
    v_lshlrev_b32 v58, 2, v55
    v_mov_b32 v59, 0
    ds_write_b32 v57, v54 offset:{HEADN}
    ds_write_b32 v58, v59 offset:{GKT}
    v_min_u32 v60, v60, v48
    v_add_u32 v55, v55, v45
    s_mov_b64 s[52:53], exec
K2_BND2:
    v_cmp_lt_u32 vcc, v55, v60
    s_and_b64 exec, exec, vcc
    s_cbranch_execz K2_BND2_DONE
    v_lshlrev_b32 v58, 2, v55
    ds_write_b32 v58, v56 offset:{GFT}
    v_add_u32 v55, 4, v55
    s_branch K2_BND2
K2_BND2_DONE:
    s_mov_b64 exec, s[52:53]
    s_branch K2_BND
K2_NODE_DONE:
    s_mov_b64 exec, -1""")
    c("pad groups [G, 64T)")
    e(f"""    s_sub_u32 s3, {sCAP}, {sG}
    s_lshl_b32 s49, s3, 2
    v_cmp_gt_u32 vcc, s49, v0
    s_and_saveexec_b64 s[52:53], vcc
    s_cbranch_execz K2_PADG_DONE
    s_lshl_b32 s48, {sG}, 5
    v_lshlrev_b32 v48, 3, v0
    v_add_u32 v48, s48, v48
    v_mov_b32 v50, 0
    v_mov_b32 v51, 0x3f800000
    ds_write_b64 v48, v[50:51] offset:{RECS}
    v_cmp_gt_u32 vcc, s3, v0
    s_lshl_b32 s48, {sG}, 2
    v_lshlrev_b32 v48, 2, v0
    v_add_u32 v48, s48, v48
    v_mov_b32 v51, {HEADS}
    s_and_b64 exec, exec, vcc
    ds_write2st64_b32 v48, v50, v51 offset0:{GAT//256} offset1:{GFT//256}
    ds_write_b32 v48, v50 offset:{GKT}
K2_PADG_DONE:
    s_mov_b64 exec, s[52:53]
    v_lshlrev_b32 v41, 3, v{vLANE}
    v_add_u32 v41, {DUMMY}, v41
    s_waitcnt lgkmcnt(0)""")
    if 'fine' in X: stamp()
    c("scatter")
    slot_pass("K2_S3", [
        lambda k, r, p, q: f"    v_lshl_add_u32 v{vA+q}, v{vRK+q}, 3, v{vA+q}",
        lambda k, r, p, q: f"    s_mov_b64 exec, {msk(q)}\n    ds_write_b64 v{vA+q}, v[{vREC+(2*k+r)*4+2*p}:{vREC+(2*k+r)*4+2*p+1}]",
        lambda k, r, p, q: "    s_mov_b64 exec, -1" if q % 4 == 3 else ""])
    e("    s_mov_b64 exec, -1")
    if 'fine' in X: stamp()
    c("advance segment pointers for a possible next round; T-dependent addresses")
    for r in range(2):
        e(f"""    v_sub_u32 v{vLEN[r]}, v{vLEN[r]}, v{vLR[r]}
    v_lshl_add_u32 v{vBASE[r]}, v{vLR[r]}, 3, v{vBASE[r]}""")
    e(f"""    s_lshl_b32 s3, {sWV}, 1
    s_mul_i32 s48, s3, {sLA}
    s_mul_i32 s49, s3, {sLB}
    s_add_u32 s49, s49, {sDD}
    s_min_u32 s3, s48, s49
    s_lshl_b32 s48, s3, 5
    s_add_u32 s48, s48, {RECS}
    s_lshl_b32 s49, {sT}, 7
    v_mul_u32_u24 v41, s49, v{vH}
    v_add_u32 v41, s48, v41
    v_bfe_u32 v42, v{vLANE}, 3, 2
    v_lshl_add_u32 v{vSRC_RD}, v42, 3, v41
    v_bfe_u32 v42, v{vN}, 2, 1
    v_mul_u32_u24 v42, s49, v42
    v_add_u32 v42, s48, v42
    v_lshrrev_b32 v43, 3, v{vN}
    v_lshl_add_u32 v42, v43, 5, v42
    v_and_b32 v43, 3, v{vN}
    v_lshl_add_u32 v42, v43, 3, v42
    v_add_u32 v{vEW_RD}, 4, v42
    s_lshl_b32 s48, s3, 2
    s_lshl_b32 s49, {sT}, 4
    v_mul_u32_u24 v41, s49, v{vH}
    v_add_u32 v41, s48, v41
    v_add_u32 v{vGF_RD}, {GFT}, v41
    v_bfe_u32 v42, v{vLANE}, 2, 2
    v_lshl_add_u32 v41, v42, 2, v41
    v_add_u32 v{vGA_RD}, {GAT}, v41
    v_mov_b64 v[56:57], 0
    v_mov_b64 v[58:59], 0
    s_waitcnt lgkmcnt(0)
    s_barrier""")
    stamp()
    c("pipeline prologue")
    for x in src_reads(0): e(x)
    e(f"""    v_mov_b32 v40, {FLAG+4}
    ds_read_b32 v41, v40
    s_waitcnt lgkmcnt(0)""")
    for g in dma_issue():
        for x in g: e(x)
    e(f"    v_add_u32 v{vSRC_RD}, 128, v{vSRC_RD}")
    e(f"    v_readfirstlane_b32 s48, v41")
    rn = reads_next(0, 0)
    for x in rn[4:]: e(x)
    e("    s_waitcnt lgkmcnt(0)")
    for x in after_reads(0, 0): e(x)
    e("    s_barrier")
    c("rare: zero the rows of nodes without edges")
    e(f"""    s_cmp_eq_u32 s48, 0
    s_cbranch_scc1 K2_NOEMPTY
    v_lshrrev_b32 v60, 2, v0
    v_lshlrev_b32 v61, 2, v60
    ds_read_b32 v62, v61 offset:{CNT}
    v_and_b32 v63, 3, v0
    v_lshlrev_b32 v52, 9, v60
    v_lshl_add_u32 v52, v63, 7, v52
    v_add_u32 v52, {ROWS}, v52
    v_mov_b64 v[48:49], 0
    v_mov_b64 v[50:51], 0
    s_waitcnt lgkmcnt(0)
    v_cmp_gt_u32 vcc, {NB}, v60
    v_cmp_eq_u32 s[52:53], 0, v62
    s_nop 1
    s_and_b64 vcc, vcc, s[52:53]
    s_and_saveexec_b64 s[52:53], vcc
    s_cbranch_execz K2_EMPTY2""")
    for k in range(8):
        e(f"    ds_write_b128 v52, v[48:51] offset:{16*k}")
    e(f"""K2_EMPTY2:
    s_mov_b64 exec, s[52:53]
    s_waitcnt lgkmcnt(0)
    s_barrier
K2_NOEMPTY:""")
    e("    s_waitcnt vmcnt(0)")
    for x in rn[:4]: e(x)
    e("    s_waitcnt lgkmcnt(0)")
    for g in dma_issue():
        for x in g: e(x)
    for x in advance_addrs(1): e(x)
    for x in gf_fix(0): e(x)
    for x in mfma_group('A', 0): e(x)
    stamp()
    if 'solo' in X:
        e(f"    s_cmp_ge_u32 {sWV}, 4\n    s_cbranch_scc1 K2_LOOP_END")
    e(f"""    s_nop 15
    s_mov_b32 {sCNT}, {sT}
.p2align 6
K2_LOOP:""")
    INLOOP[0] = True
    tile_body(0)
    e(f"""    s_sub_u32 {sCNT}, {sCNT}, 1
    s_cmp_eq_u32 {sCNT}, 0
    s_cbranch_scc1 K2_LOOP_END""")
    tile_body(1)
    INLOOP[0] = False
    e(f"""    s_sub_u32 {sCNT}, {sCNT}, 1
    s_cmp_lg_u32 {sCNT}, 0
    s_cbranch_scc1 K2_LOOP
K2_LOOP_END:
    s_setprio 0
    s_waitcnt vmcnt(0)
    s_lshl_b32 s3, {sWV}, 11
    v_lshlrev_b32 v40, 4, v{vLANE}
    v_add_u32 v40, s3, v40
    s_mov_b32 m0, {sM0B}
    s_nop 0
    buffer_load_dwordx4 v40, {SRD_XB}, 0 offen lds
    buffer_load_dwordx4 v40, {SRD_XB}, 0 offen offset:1024 lds
    s_waitcnt lgkmcnt(0)""")
    stamp()
    e("    s_barrier")
    stamp()
    c("head fix-up")
    e(f"""    v_lshlrev_b32 v40, 2, v{vLANE}
    ds_read_b32 v41, v40 offset:{HEADN}
    ds_read_b32 v42, v40 offset:{HEADN+4}
    v_mov_b32 v43, {FLAG}
    ds_read_b32 v44, v43
    s_lshl_b32 s3, {sWV}, 1
    v_add_u32 v45, s3, v{vH}
    v_lshlrev_b32 v46, 2, v45
    ds_read_b32 v47, v46 offset:{HEADN}
    v_lshlrev_b32 v45, 9, v45
    v_add_u32 v45, {HEADS}, v45
    v_add_u32 v45, v45, v{vN4}
    s_waitcnt lgkmcnt(0)
    v_readfirstlane_b32 {sMORE}, v44
    v_cmp_eq_u32 vcc, v41, v42
    v_cmp_le_i32 s[52:53], 0, v41
    s_nop 1
    s_and_b64 vcc, vcc, s[52:53]
    s_and_b32 s52, vcc_lo, 0x7fff
    s_cmp_lg_u32 s52, 0
    s_cbranch_scc1 K2_FIX_SLOW
    v_cmp_le_i32 vcc, 0, v47
    s_and_saveexec_b64 s[52:53], vcc
    s_cbranch_execz K2_FIX_DONE
    v_lshlrev_b32 v47, 9, v47
    v_add_u32 v47, {ROWS}, v47
    v_add_u32 v47, v47, v{vN4}""")
    for q in range(4):
        e(f"""    ds_read_b32 v{16+q}, v45 offset:{128*q}
    ds_read_b32 v{20+q}, v47 offset:{128*q}""")
    e("    s_waitcnt lgkmcnt(0)")
    for q in range(4):
        e(f"""    v_add_f32 v{16+q}, v{16+q}, v{20+q}
    ds_write_b32 v47, v{16+q} offset:{128*q}""")
    e(f"""    s_branch K2_FIX_DONE
K2_FIX_SLOW:
    s_mov_b64 s[52:53], exec
    s_cmp_lg_u32 {sWV}, 0
    s_cbranch_scc1 K2_FIX_DONE
    s_mov_b32 s3, 0
K2_FIX_SL:
    v_readlane_b32 s49, v41, s3
    s_nop 3
    s_cmp_lt_i32 s49, 0
    s_cbranch_scc1 K2_FIX_SN
    s_lshl_b32 s49, s49, 9
    s_add_u32 s49, s49, {ROWS}
    s_lshl_b32 s54, s3, 9
    s_add_u32 s54, s54, {HEADS}
    v_lshlrev_b32 v45, 3, v{vLANE}
    v_add_u32 v46, s54, v45
    v_add_u32 v47, s49, v45
    ds_read_b64 v[16:17], v46
    ds_read_b64 v[18:19], v47
    s_waitcnt lgkmcnt(0)
    v_add_f32 v16, v16, v18
    v_add_f32 v17, v17, v19
    ds_write_b64 v47, v[16:17]
    s_waitcnt lgkmcnt(0)
K2_FIX_SN:
    s_add_u32 s3, s3, 1
    s_cmp_lt_u32 s3, 16
    s_cbranch_scc1 K2_FIX_SL
K2_FIX_DONE:
    s_mov_b64 exec, s[52:53]
    s_waitcnt vmcnt(0) lgkmcnt(0)
    s_barrier""")
    e(f"""    s_or_b32 s3, {sRND}, {sMORE}
    s_cmp_eq_u32 s3, 0
    s_cbranch_scc1 K2_EPI""")
    c("rare: several rounds. rows += saved (round>0); if more: save rows and restart")
    e(f"""    s_mul_i32 s3, {sB}, {NB*512}
    s_add_u32 s3, s3, {WS_ACC}
    v_lshlrev_b32 v40, 4, v0
    v_add_u32 v41, {ROWS}, v40
    v_add_u32 v42, s3, v40
    s_mov_b32 s49, 0
K2_MR:
    v_cmp_gt_u32 vcc, {NB*512}, v40
    s_and_saveexec_b64 s[52:53], vcc
    s_cbranch_execz K2_MR_N
    ds_read_b128 v[16:19], v41
    s_cmp_eq_u32 {sRND}, 0
    s_cbranch_scc1 K2_MR_A
    buffer_load_dwordx4 v[20:23], v42, {SRD_WS}, 0 offen
    s_waitcnt vmcnt(0) lgkmcnt(0)
    v_add_f32 v16, v16, v20
    v_add_f32 v17, v17, v21
    v_add_f32 v18, v18, v22
    v_add_f32 v19, v19, v23
    ds_write_b128 v41, v[16:19]
K2_MR_A:
    s_waitcnt lgkmcnt(0)
    s_cmp_eq_u32 {sMORE}, 0
    s_cbranch_scc1 K2_MR_N
    buffer_store_dwordx4 v[16:19], v42, {SRD_WS}, 0 offen
    s_waitcnt vmcnt(0)
K2_MR_N:
    s_mov_b64 exec, s[52:53]
    v_add_u32 v40, 8192, v40
    v_add_u32 v41, 8192, v41
    v_add_u32 v42, 8192, v42
    s_add_u32 s49, s49, 1
    s_cmp_lt_u32 s49, 7
    s_cbranch_scc1 K2_MR
    s_waitcnt vmcnt(0) lgkmcnt(0)
    s_barrier
    s_cmp_eq_u32 {sMORE}, 0
    s_cbranch_scc1 K2_EPI
    s_mov_b32 {sRND}, 1
    s_branch K2_ROUND_INIT""")
    e("K2_EPI:")
    stamp()
    c("wave (rho, fb): node = 32rho+8i+4h+j, feature = 32fb+n")
    DEN, NUM, XP, UU = 64, 80, 96, 112
    e(f"""    s_lshl_b32 s3, {sRHO}, 14
    s_lshl_b32 s49, {sFB}, 7
    s_add_u32 s3, s3, s49
    s_add_u32 s3, s3, {ROWS}
    v_lshlrev_b32 v3, 11, v{vH}
    v_add_u32 v3, v3, v{vN4}
    v_add_u32 v3, s3, v3""")
    for r in range(0, 16, 2):
        i, j = r >> 2, r & 3
        e(f"    ds_read2st64_b32 v[{DEN+r}:{DEN+r+1}], v3 offset0:{(8*i+j)*2} offset1:{(8*i+j+1)*2}")
    for r in range(0, 16, 2):
        i, j = r >> 2, r & 3
        e(f"    ds_read2st64_b32 v[{NUM+r}:{NUM+r+1}], v3 offset0:{(8*i+j)*2+1} offset1:{(8*i+j+1)*2+1}")
    c("x (residual) through transposing reads of the staged rows")
    e(f"""    s_lshl_b32 s3, {sRHO}, 13
    s_lshl_b32 s49, {sFB}, 6
    s_add_u32 s3, s3, s49
    s_add_u32 s3, s3, {XST}
    v_bfe_u32 v4, v{vLANE}, 2, 2
    v_lshl_add_u32 v4, v{vH}, 2, v4
    v_lshlrev_b32 v4, 7, v4
    v_add_u32 v4, v4, v{vAFC}
    v_add_u32 v4, s3, v4""")
    for i in range(4):
        e(f"    ds_read_b64_tr_b16 v[{XP+2*i}:{XP+2*i+1}], v4 offset:{(i>>1)*4096 + (i&1)*1024}")
    e(f"""    s_lshl_b32 s3, {sRHO}, 12
    s_lshl_b32 s49, {sFB}, 6
    s_add_u32 s3, s3, s49
    v_lshlrev_b32 v2, 9, v{vH}
    v_lshl_add_u32 v2, v{vN}, 1, v2
    v_add_u32 v2, s3, v2
    s_mov_b32 s48, {f32bits(1e-6):#x}
    s_mov_b32 s49, {f32bits(1e-6):#x}""")
    for r in range(16):
        e(f"    v_accvgpr_read_b32 v{UU+r}, a{aU+r}")
    if 'fine3' in X: stamp_at(11)
    e("    s_waitcnt lgkmcnt(12)")
    for r in range(0, 16, 2):
        e(f"    v_pk_add_f32 v[{DEN+r}:{DEN+r+1}], v[{DEN+r}:{DEN+r+1}], s[48:49]")
    for r in range(16):
        e(f"    v_rcp_f32 v{DEN+r}, v{DEN+r}")
    e("    s_waitcnt lgkmcnt(0)")
    for r in range(0, 16, 2):
        e(f"    v_pk_fma_f32 v[{UU+r}:{UU+r+1}], v[{NUM+r}:{NUM+r+1}], v[{DEN+r}:{DEN+r+1}], v[{UU+r}:{UU+r+1}]")
    for r in range(16):
        e(f"    v_max_f32 v{UU+r}, 0, v{UU+r}")
    for r in range(0, 16, 2):
        e(f"""    v_lshlrev_b32 v{DEN+r}, 16, v{XP+r//2}
    v_and_b32 v{DEN+r+1}, 0xffff0000, v{XP+r//2}""")
    for r in range(0, 16, 2):
        e(f"    v_pk_add_f32 v[{UU+r}:{UU+r+1}], v[{UU+r}:{UU+r+1}], v[{DEN+r}:{DEN+r+1}]")
    for r in range(0, 16, 2):
        e(f"    v_cvt_pk_bf16_f32 v{NUM+r//2}, v{UU+r}, v{UU+r+1}")
    if 'fine3' in X: stamp_at(12)
    for r in range(0, 16, 2):
        i, j = r >> 2, r & 3
        e(f"""    ds_write_b16 v2, v{NUM+r//2} offset:{A_OFF + (8*i+j)*128}
    ds_write_b16_d16_hi v2, v{NUM+r//2} offset:{A_OFF + (8*i+j+1)*128}""")
    OSP = '' if 'plainout' in X else 'sc1'
    e(f"""    v_lshlrev_b32 v5, 4, v0
    v_add_u32 v6, 8192, v5
    s_waitcnt lgkmcnt(0)""")
    if 'fine3' in X: stamp_at(13)
    e(f"""    s_barrier""")
    if 'fine3' in X: stamp_at(14)
    e(f"""    ds_read_b128 v[64:67], v5 offset:{A_OFF}
    ds_read_b128 v[68:71], v5 offset:{A_OFF+8192}
    s_waitcnt lgkmcnt(1)
    buffer_store_dwordx4 v[64:67], v5, {SRD_OUT}, 0 offen {OSP}
    s_waitcnt lgkmcnt(0)
    buffer_store_dwordx4 v[68:71], v6, {SRD_OUT}, 0 offen {OSP}""")
    stamp()
    if DBG and 'fine' not in X: e(f"    s_waitcnt vmcnt(0)\n    s_memrealtime s[98:99]\n    s_waitcnt lgkmcnt(0)\n    v_writelane_b32 v{vDBG}, s98, 15")
    if 'hdbg' in X: e("    s_waitcnt vmcnt(0)")
    hstamp()
    hflush()
    stamp_flush(sWV, 1)
    e("K2_END:\n    s_endpgm\nK2_CODE_END:")

def desc(name, nv, acc, ns):
    return f""".amdhsa_kernel {name}
  .amdhsa_next_free_vgpr {nv}
  .amdhsa_next_free_sgpr {ns}
  .amdhsa_accum_offset {acc}
  .amdhsa_group_segment_fixed_size 0
  .amdhsa_kernarg_size 96
  .amdhsa_user_sgpr_count 2
  .amdhsa_user_sgpr_kernarg_segment_ptr 1
  .amdhsa_system_sgpr_workgroup_id_x 1
  .amdhsa_float_denorm_mode_32 3
.end_amdhsa_kernel"""

def main(out):
    hdr = open('gather_scatter__edge_featured_mpnn_gatedgcn__graph.s.ref').read().split('\n')
    head = [x for x in hdr if x.startswith(';') and '@launch' not in x and 'Override launch' not in x and 'grid=ceil' not in x]
    for x in head: e(x)
    e(f"; @launch grid=({NBINS},1,1) block=(512,1,1) lds={K2_LDS}")
    e('.amdgcn_target "amdgcn-amd-amdhsa--gfx950"')
    e(".text")
    gen_k2()
    e('.section .rodata,"a"\n.p2align 6')
    e(desc(KNAME, 256, 128, 100))
    open(out, 'w').write("\n".join(L) + "\n")

if __name__ == "__main__":
    main(sys.argv[1] if len(sys.argv) > 1 else "gather_scatter__edge_featured_mpnn_gatedgcn__graph.s")
```

```python
import sys, struct

N = 25000
E = 800000
NB = 98
NBINS = 256
NCH = 250
CH = 3200

WS_REC = 0
WS_TAB = 0x700000
WS_W = 0x780000
WS_ACC = 0x800000
WS_SIZE = 0x2000000

LOG2E = 1.4426950408889634
def f32bits(x): return struct.unpack('<I', struct.pack('<f', x))[0]
NEG_LOG2E = f32bits(-LOG2E)
BIG = f32bits(2.0**100)

K1_HIST = 0
K1_OFFS = 1024
K1_STAGE = 2048
K1_LDS = 2048 + CH * 8

A_OFF = 0
CNT = 16384
GS = CNT + 768
GSA = GS + 512
HEADN = GSA + 768
FLAG = HEADN + 64
GAT = 18688
GFT = GAT + 4096
GKT = GFT + 4096
RECS = GKT + 4096
DUMMY = RECS + 31232
ROWS = DUMMY + 512
HEADS = ROWS + NB * 512
XST = HEADS + 16 * 512
K2_LDS = XST + 32768
XBS = RECS
assert GAT % 256 == 0 and XST % 128 == 0 and XBS % 128 == 0
GMAX = 960

import os
DBG = int(os.environ.get('DBG','0'))
WS_DBG = 0x1800000
X = set(os.environ.get('X','').split(','))
NST = [0]
vDBG = 38
def stamp(name=None):
    if not DBG: return
    i = NST[0]; NST[0] += 1
    e(f"    s_memtime s[96:97]")
    e(f"    s_waitcnt lgkmcnt(0)")
    e(f"    v_writelane_b32 v{vDBG}, s96, {i}")
NST1 = [0]
def stamp1():
    if not DBG: return
    i = NST1[0]; NST1[0] += 1
    e(f"    s_memtime s[32:33]")
    e(f"    s_waitcnt lgkmcnt(0)")
    e(f"    v_writelane_b32 v61, s32, {i}")
    if i == 0:
        e("    s_memrealtime s[34:35]\n    s_waitcnt lgkmcnt(0)\n    v_writelane_b32 v61, s34, 14")
def stamp_at(i):
    e(f"    s_memtime s[96:97]")
    e(f"    s_waitcnt lgkmcnt(0)")
    e(f"    v_writelane_b32 v{vDBG}, s96, {i}")
HS = [0]
def hstamp(word=None, invert=False):
    if 'hdbg' not in X: return
    i = HS[0]; HS[0] += 1
    e(f"    s_memrealtime s[96:97]\n    s_waitcnt lgkmcnt(0)\n    s_mov_b32 s{90+i}, s96")
def hflush():
    if 'hdbg' not in X: return
    e("""    s_cmp_lg_u32 s29, 0
    s_cbranch_scc1 HF_END
    s_mov_b32 s3, 1
    s_cmp_eq_u32 s2, 0
    s_cbranch_scc1 HF_GO
    s_mov_b32 s3, 6
    s_cmp_eq_u32 s2, 129
    s_cbranch_scc1 HF_GO
    s_mov_b32 s3, 11
    s_cmp_eq_u32 s2, 249
    s_cbranch_scc1 HF_GO
    s_branch HF_END
HF_GO:
    s_lshl_b32 s3, s3, 2
    s_mov_b64 exec, 1""")
    for i in range(5):
        e(f"    v_mov_b32 v38, s3\n    v_mov_b32 v39, s{90+i}\n    global_store_dword v38, v39, s[10:11] offset:{4*i}")
    e("HF_END:")
def stamp_flush(wave_sgpr, kid):
    if not DBG: return
    e(f"    s_lshl_b32 s3, s2, 4")
    e(f"    s_add_u32 s3, s3, {wave_sgpr}")
    e(f"    s_lshl_b32 s3, s3, 6")
    e(f"    s_add_u32 s3, s3, {WS_DBG + kid*0x100000}")
    e(f"    s_mov_b64 exec, 0xffff")
    e(f"    v_and_b32 v2, 63, v0")
    e(f"    v_lshlrev_b32 v2, 2, v2")
    e(f"    v_add_u32 v2, s3, v2")
    e(f"    global_store_dword v2, v{vDBG}, {'s[6:7]' if kid else 's[10:11]'}")
    NST[0] = 0
L = []
def e(s=""):
    for line in s.split("\n"):
        L.append(line)
def c(s): L.append("    ; " + s)

def dpp_scan(v):
    for sh in (1, 2, 4, 8):
        e(f"    s_nop 1")
        e(f"    v_add_u32_dpp {v}, {v}, {v} row_shr:{sh} row_mask:0xf bank_mask:0xf")
    e("    s_nop 1")
    e(f"    v_add_u32_dpp {v}, {v}, {v} row_bcast:15 row_mask:0xa bank_mask:0xf")
    e("    s_nop 1")
    e(f"    v_add_u32_dpp {v}, {v}, {v} row_bcast:31 row_mask:0xc bank_mask:0xf")

def gen_k1():
    STP = '' if 'plainst' in X else ('nt sc1' if 'ntsc1' in X else ('nt' if 'ntst' in X else ('sc1' if 'sc1only' in X else 'sc0 sc1')))
    NT = 400
    e(".globl k1_kernel\n.p2align 8\n.type k1_kernel,@function\nk1_kernel:")
    e(f"""    s_cmp_ge_u32 s2, {NCH+8}
    s_cbranch_scc1 K1_END
    s_load_dwordx4 s[4:7], s[0:1], 16
    s_load_dwordx4 s[12:15], s[0:1], 0
    s_load_dwordx2 s[10:11], s[0:1], 88
    s_cmp_ge_u32 s2, {NCH}
    s_cbranch_scc1 K1_PREP
    s_mul_i32 s16, s2, {CH*4}
    v_lshlrev_b32 v1, 4, v0
    v_add_u32 v2, s16, v1
    v_add_u32 v3, {NT*16}, v2
    s_lshr_b32 s17, s16, 1
    v_add_u32 v4, s17, v1
    v_lshlrev_b32 v5, 2, v0
    v_mov_b32 v6, 0
    v_lshrrev_b32 v28, 6, v0
    v_mov_b32 v29, 1
    v_readfirstlane_b32 s23, v28
    v_cmp_gt_u32 vcc, 256, v0
    s_and_saveexec_b64 s[18:19], vcc
    ds_write_b32 v5, v6 offset:{K1_HIST}
    s_mov_b64 exec, s[18:19]
    v_cmp_gt_u32 vcc, {NT}, v0
    s_and_b64 exec, exec, vcc
    s_mov_b64 s[20:21], exec
    s_mov_b32 s22, {-NB & 0xffffffff}
    s_waitcnt lgkmcnt(0)""")
    stamp1()
    LDP = 'nt' if 'ntld' in X else ''
    e(f"""    global_load_dwordx4 v[8:11], v2, s[6:7] {LDP}
    global_load_dwordx4 v[12:15], v3, s[6:7] {LDP}
    s_barrier
    global_load_dwordx4 v[80:83], v2, s[4:5] {LDP}
    global_load_dwordx4 v[84:87], v3, s[4:5] {LDP}
    v_lshrrev_b32 v4, 1, v2
    v_lshrrev_b32 v7, 1, v3
    global_load_dwordx2 v[88:89], v4, s[14:15] {LDP}
    global_load_dwordx2 v[90:91], v7, s[14:15] {LDP}""")
    PF1 = 0
    def prefetch():
        c("light prefetch: every row of x is touched once (brings it into the memory-side cache)")
        e(f"""    s_mul_i32 s17, s2, 100
    v_add_u32 v6, s17, v0
    v_lshlrev_b32 v7, 7, v6
    v_cmp_gt_u32 vcc, 100, v0
    s_and_b64 exec, exec, vcc
    global_load_dword v62, v7, s[12:13]
    s_mov_b64 exec, s[20:21]""")
        if 'nocodepf' not in X:
            c("bring the second kernel's code into the caches (read as data)")
            e(f"""    s_cmp_ge_u32 s2, 16
    s_cbranch_scc1 K1_NOCPF
    s_getpc_b64 s[26:27]
K1_CPF:
    s_add_u32 s26, s26, k2_kernel-K1_CPF
    s_addc_u32 s27, s27, 0
    v_lshlrev_b32 v60, 7, v0
    v_cmp_gt_u32 vcc, (K2_CODE_END-k2_kernel+127)/128, v0
    s_and_b64 exec, exec, vcc
    s_cbranch_execz K1_CPF_SKIP
    global_load_dword v63, v60, s[26:27]
K1_CPF_SKIP:
    s_mov_b64 exec, s[20:21]
K1_NOCPF:""")
    e("    s_waitcnt vmcnt(5)")
    stamp1()
    def binops(k):
        d = 8 + k
        e(f"""    v_mul_u32_u24 v{32+k}, 42800, v{d}
    v_lshrrev_b32 v{32+k}, 22, v{32+k}
    v_mad_i32_i24 v{40+k}, v{32+k}, s22, v{d}
    v_lshlrev_b32 v{32+k}, 2, v{32+k}""")
    for k in range(4): binops(k)
    for k in range(4): e(f"    ds_add_rtn_u32 v{48+k}, v{32+k}, v29 offset:{K1_HIST}")
    e(f"    s_waitcnt vmcnt({4+PF1})")
    for k in range(4, 8): binops(k)
    for k in range(4, 8): e(f"    ds_add_rtn_u32 v{48+k}, v{32+k}, v29 offset:{K1_HIST}")
    e("    s_waitcnt lgkmcnt(0)")
    stamp1()
    e("""    s_barrier
    s_mov_b64 exec, -1
    v_and_b32 v30, 63, v0
    v_lshlrev_b32 v31, 4, v30""")
    e(f"""    ds_read_b128 v[8:11], v31 offset:{K1_HIST}
    s_waitcnt lgkmcnt(0)
    v_add_u32 v12, v8, v9
    v_add_u32 v13, v12, v10
    v_add_u32 v14, v13, v11
    v_mov_b32 v15, v14""")
    dpp_scan("v15")
    e(f"""    v_sub_u32 v16, v15, v14
    v_add_u32 v17, v16, v8
    v_add_u32 v18, v16, v12
    v_add_u32 v19, v16, v13
    ds_write_b128 v31, v[16:19] offset:{K1_OFFS}
    v_lshl_or_b32 v20, v17, 16, v16
    v_lshl_or_b32 v21, v18, 16, v17
    v_lshl_or_b32 v22, v19, 16, v18
    v_lshl_or_b32 v23, v15, 16, v19
    s_lshl_b32 s24, s2, 10
    s_add_u32 s24, s24, {WS_TAB}
    v_add_u32 v24, s24, v31
    s_waitcnt lgkmcnt(0)""")
    stamp1()
    e("    s_mov_b64 exec, s[20:21]")
    for k in range(8):
        e(f"    ds_read_b32 v{8+k}, v{32+k} offset:{K1_OFFS}")
    e("    s_waitcnt vmcnt(0)")
    e(f"""    s_cmp_lg_u32 s23, 0
    s_cbranch_scc1 K1_NOTAB2
    s_mov_b64 exec, -1
    global_store_dwordx4 v24, v[20:23], s[10:11] {STP}
    s_mov_b64 exec, s[20:21]
K1_NOTAB2:""")
    if 'nopf1' not in X: prefetch()
    for k in range(8):
        e(f"""    v_lshlrev_b32 v{64+2*k}, 7, v{80+k}
    v_lshl_or_b32 v{64+2*k}, v{40+k}, 24, v{64+2*k}""")
    for k in range(8):
        src = 88 + k//2
        e(f"    v_and_b32 v{65+2*k}, 0xffff, v{src}" if k % 2 == 0 else f"    v_lshrrev_b32 v{65+2*k}, 16, v{src}")
    e("    s_waitcnt lgkmcnt(0)")
    for k in range(8):
        e(f"    v_add_lshl_u32 v{8+k}, v{8+k}, v{48+k}, 3")
    for k in range(8):
        e(f"    ds_write_b64 v{8+k}, v[{64+2*k}:{65+2*k}] offset:{K1_STAGE}")
    e("    s_waitcnt lgkmcnt(0)")
    stamp1()
    e("    s_barrier")
    for k in range(4):
        e(f"    ds_read_b128 v[{8+4*k}:{11+4*k}], v1 offset:{K1_STAGE+6400*k}")
    e(f"""    s_mul_i32 s24, s2, {CH*8}
    v_add_u32 v24, s24, v1""")
    for k in range(1, 4):
        e(f"    v_add_u32 v{24+k}, {6400*k}, v24")
    for k in range(4):
        e(f"    s_waitcnt lgkmcnt({3-k})\n    global_store_dwordx4 v{24+k}, v[{8+4*k}:{11+4*k}], s[10:11] {STP}")
    stamp1()
    if DBG:
        e("    s_waitcnt vmcnt(0)")
        stamp1()
        e("    s_memrealtime s[34:35]\n    s_waitcnt lgkmcnt(0)\n    v_writelane_b32 v61, s34, 15")
        e(f"""    s_lshl_b32 s3, s2, 4
    s_add_u32 s3, s3, s23
    s_lshl_b32 s3, s3, 6
    s_add_u32 s3, s3, {WS_DBG}
    s_mov_b64 exec, 0xffff
    v_and_b32 v2, 63, v0
    v_lshlrev_b32 v2, 2, v2
    v_add_u32 v2, s3, v2
    global_store_dword v2, v61, s[10:11]""")
    e("    s_endpgm")
    e(f"""K1_PREP:
    s_sub_u32 s16, s2, {NCH}
    s_and_b32 s30, s16, 1
    s_lshr_b32 s16, s16, 1
    s_mov_b32 s26, 1.0
    s_cmp_eq_u32 s16, 0
    s_cbranch_scc1 K1_P0
    s_cmp_eq_u32 s16, 1
    s_cbranch_scc1 K1_P1
    s_cmp_eq_u32 s16, 2
    s_cbranch_scc1 K1_P2
    s_load_dwordx2 s[24:25], s[0:1], 56
    s_branch K1_PJ
K1_P0:
    s_load_dwordx2 s[24:25], s[0:1], 40
    s_mov_b32 s26, {NEG_LOG2E:#x}
    s_branch K1_PJ
K1_P1:
    s_load_dwordx2 s[24:25], s[0:1], 64
    s_branch K1_PJ
K1_P2:
    s_load_dwordx2 s[24:25], s[0:1], 32
    s_mov_b32 s26, {NEG_LOG2E:#x}
K1_PJ:
    s_load_dwordx2 s[28:29], s[0:1], 48
    s_lshl_b32 s31, s30, 8
    v_add_u32 v9, s31, v0
    v_and_b32 v1, 63, v9
    v_lshrrev_b32 v2, 6, v9
    v_and_b32 v3, 31, v1
    v_lshrrev_b32 v4, 5, v1
    v_lshrrev_b32 v5, 1, v2
    v_and_b32 v6, 1, v2
    v_lshlrev_b32 v7, 11, v5
    v_lshl_add_u32 v7, v4, 10, v7
    v_lshl_add_u32 v7, v6, 6, v7
    v_lshl_add_u32 v7, v3, 1, v7
    s_lshl_b32 s17, s16, 13
    s_add_u32 s17, s17, {WS_W}
    v_lshlrev_b32 v8, 4, v9
    v_add_u32 v8, s17, v8
    s_waitcnt lgkmcnt(0)
    v_cmp_gt_u32 vcc, 256, v0
    s_and_saveexec_b64 s[18:19], vcc
    s_cbranch_execz K1_PWC""")
    for j in range(8):
        e(f"    global_load_ushort v{10+j}, v7, s[24:25] offset:{128*j}")
    e("    s_waitcnt vmcnt(0)")
    for j in range(8):
        e(f"""    v_lshlrev_b32 v{10+j}, 16, v{10+j}
    v_mul_f32 v{10+j}, s26, v{10+j}""")
    for j in range(4):
        e(f"    v_cvt_pk_bf16_f32 v{20+j}, v{10+2*j}, v{11+2*j}")
    e(f"""    global_store_dwordx4 v8, v[20:23], s[10:11]
K1_PWC:
    s_mov_b64 exec, s[18:19]
    s_or_b32 s17, s16, s30
    s_cmp_lg_u32 s17, 0
    s_cbranch_scc1 K1_END
    v_subrev_u32 v9, 256, v0
    v_and_b32 v3, 31, v9
    v_bfe_u32 v4, v9, 5, 1
    v_cmp_gt_u32 vcc, 128, v9
    s_and_saveexec_b64 s[18:19], vcc
    s_cbranch_execz K1_END
    v_lshrrev_b32 v6, 6, v9
    v_lshlrev_b32 v7, 6, v6
    v_lshl_add_u32 v7, v3, 1, v7
    global_load_ushort v10, v7, s[28:29]
    v_lshlrev_b32 v8, 2, v9
    v_add_u32 v8, {WS_W+32768}, v8
    v_mov_b32 v12, {BIG:#x}
    s_waitcnt vmcnt(0)
    v_lshlrev_b32 v10, 16, v10
    v_mul_f32 v10, {NEG_LOG2E:#x}, v10
    v_cvt_pk_bf16_f32 v11, v10, v12
    v_cmp_eq_u32 vcc, 0, v4
    s_nop 1
    v_cndmask_b32 v11, 0, v11, vcc
    global_store_dword v8, v11, s[10:11]
K1_END:
    s_endpgm""")

S_X, S_WS, S_OUT = "s[4:5]", "s[6:7]", "s[8:9]"
SRD_X, SRD_XB, SRD_OUT, SRD_WS = "s[12:15]", "s[16:19]", "s[20:23]", "s[24:27]"
sB, sWV, sT, sCNT, sN0, sNL = "s28", "s29", "s30", "s31", "s33", "s34"
s4T, sG, sRND, sMORE, sKM = "s35", "s36", "s37", "s38", "s39"
sMSK22, sMSKA, sM0B = "s45", "s46", "s47"
sLA, sLB, sDD, sCAP = "s40", "s41", "s42", "s43"
sRHO, sFB = "s50", "s51"
sMASK = 56

GA, HA, GB, HB = 64, 80, 96, 112
ACC = {'A': 56, 'B': 58}
vXR = [2, 3, 4, 5]
vSRC_RD, vEW_RD, vGA_RD, vGF_RD = 6, 7, 8, 9
vCHA, vCHB, vAFC, vN4 = 10, 11, 12, 13
vN, vH = 14, 15
vGF = [16, 20]
vSRC = 24
vGA, vAFA = 28, 29
vLEN, vBASE = (30, 31), (32, 33)
vXP = 34
vGK = [40, 44]
vUT = 48
aWB, aWV, aAFA, aAFB, aO, aU = 0, 32, 80, 84, 88, 96
aX = [64, 112]

INLOOP = [False]
def mfma(d, a, b, cc):
    if 'nomfma' in X and INLOOP[0]: return "    s_nop 0"
    return f"    v_mfma_f32_32x32x16_bf16 {d}, {a}, {b}, {cc}"
def vr(b, n): return f"v[{b}:{b+n-1}]"
def ar(b, n): return f"a[{b}:{b+n-1}]"

def mfma_group(fb, xb):
    G, H = (GA, HA) if fb == 'A' else (GB, HB)
    f = 0 if fb == 'A' else 1
    af = aAFA if fb == 'A' else aAFB
    out = [mfma(vr(G, 16), ar(aO, 4), ar(af, 4), "0")]
    gs_ = [mfma(vr(G, 16), ar(aX[xb] + 4*s, 4), ar(aWB + (s*2+f)*4, 4), vr(G, 16)) for s in range(4)]
    hs_ = [mfma(vr(H, 16), ar(aX[xb] + 4*s, 4), ar(aWV + (s*2+f)*4, 4), "0" if s == 0 else vr(H, 16)) for s in range(4)]
    if 'swapop' in X:
        gs_ = gs_
    if 'share' in X:
        for s in range(4): out += [gs_[s], hs_[s]]
    else:
        out += gs_ + hs_
    return out

def dma_issue():
    grp = []
    for k in range(4):
        ch = vCHA if k % 2 == 0 else vCHB
        g = [f"    v_and_or_b32 v{vSRC+k}, v{vSRC+k}, {sMSK22}, v{ch}"]
        g.append(f"    s_mov_b32 m0, {sM0B}" if k == 0 else "    s_add_u32 m0, m0, 1024")
        g.append("    s_nop 0")
        if 'nodma' not in X: g.append(f"    buffer_load_dwordx4 v{vSRC+k}, {SRD_X}, 0 offen lds")
        grp.append(g)
    return grp

def src_reads(o1):
    return [f"    ds_read2_b32 v[{vSRC}:{vSRC+1}], v{vSRC_RD} offset0:{32*o1} offset1:{32*o1+8}",
            f"    ds_read2_b32 v[{vSRC+2}:{vSRC+3}], v{vSRC_RD} offset0:{32*o1+16} offset1:{32*o1+24}"]

def reads_next(xb, o1=0):
    o = []
    for s in range(4):
        o.append(f"    ds_read_b128 {ar(aX[xb]+4*s,4)}, v{vXR[s]}")
    o.append(f"    ds_read_b32 v{vGA}, v{vGA_RD} offset:{16*o1}")
    o += src_reads(o1)
    o.append(f"    ds_read_b32 a{aO+2}, v{vEW_RD} offset:{128*o1}")
    return o

def after_reads(npar, o1=0):
    return [f"    v_bitop3_b32 v{vAFA}, v{vGA}, {sMSKA}, v{vAFC} bitop3:0x6a",
            f"    ds_read_b64_tr_b16 {ar(aAFA,2)}, v{vAFA}",
            f"    ds_read_b64_tr_b16 {ar(aAFB,2)}, v{vAFA} offset:64",
            f"    ds_read_b128 {vr(vGF[npar],4)}, v{vGF_RD} offset:{16*o1}",
            f"    ds_read_b128 {vr(vGK[npar],4)}, v{vGF_RD} offset:{GKT-GFT+16*o1}"]
def gf_fix(npar):
    return [f"    v_add_u32 v{vGF[npar]+i}, v{vGF[npar]+i}, v{vN4}" for i in range(4)]

def advance_addrs(m):
    return [f"    v_add_u32 v{vEW_RD}, {128*m}, v{vEW_RD}", f"    v_add_u32 v{vSRC_RD}, {128*m}, v{vSRC_RD}",
            f"    v_add_u32 v{vGA_RD}, {16*m}, v{vGA_RD}", f"    v_add_u32 v{vGF_RD}, {16*m}, v{vGF_RD}"]

def phase(fb, par, mf, ex1, ex2):
    G, H = (GA, HA) if fb == 'A' else (GB, HB)
    d = ACC[fb]
    nov = 'novalu' in X
    def run(op, mfs, mpos, ex):
        k = 0
        for j in range(17):
            while k < len(mfs) and mpos[k] == j:
                e(mfs[k]); k += 1
            for x in ex.get(j, []): e(x)
            if j < 16: e(f"    {op} v{G+j}, v{G+j}" if not nov else "    s_nop 0")
        assert k == len(mfs)
    run("v_exp_f32", mf[0:5], [0, 3, 6, 9, 12], ex1)
    for j in range(0, 16, 2):
        e(f"    v_pk_add_f32 v[{G+j}:{G+j+1}], v[{G+j}:{G+j+1}], 1.0 op_sel_hi:[1,0]" if not nov else "    s_nop 0")
    run("v_rcp_f32", mf[5:9], [0, 3, 6, 9], ex2)
    f = 0 if fb == 'A' else 1
    clump = 'noclump' not in X
    xs = [34, 36, 60, 62]
    prev = d
    wr = []
    for i in range(4):
        g = G + 4*i; h = H + 4*i; k = vGK[par] + i
        u = vUT + 4*(i & 1); t = u + 2
        x = xs[i] if clump else vXP + 2*(i & 1)
        dst = (x if i < 3 else d) if clump else d
        if not nov:
            e(f"    v_pk_mul_f32 v[{t}:{t+1}], v[{g}:{g+1}], v[{h}:{h+1}]")
            e(f"    v_pk_add_f32 v[{u}:{u+1}], v[{g}:{g+1}], v[{g+2}:{g+3}]")
            e(f"    v_pk_fma_f32 v[{t}:{t+1}], v[{g+2}:{g+3}], v[{h+2}:{h+3}], v[{t}:{t+1}]")
            e(f"    v_add_f32 v{x}, v{u}, v{u+1}")
            e(f"    v_add_f32 v{x+1}, v{t}, v{t+1}")
            e(f"    v_pk_fma_f32 v[{dst}:{dst+1}], v[{prev}:{prev+1}], v[{k & ~1}:{(k & ~1)+1}], v[{x}:{x+1}] op_sel:[0,{k&1},0] op_sel_hi:[1,{k&1},1]")
            w = f"    ds_write2_b32 v{vGF[par]+i}, v{dst}, v{dst+1} offset0:{f*32} offset1:{64+f*32}"
            if 'nowr' not in X:
                if clump: wr.append(w)
                else: e(w)
            prev = dst
    for w in wr: e(w)

def tile_body(par):
    npar = 1 - par
    dm = dma_issue()
    ex1 = {1: ["    s_waitcnt vmcnt(0)"] + reads_next(npar, par)}
    ex2 = {1: ["    s_waitcnt lgkmcnt(0)"] + after_reads(npar, par), 4: dm[0], 7: dm[1], 10: dm[2], 12: dm[3]}
    if 'nodmaclump' not in X:
        ex2 = {1: ["    s_waitcnt lgkmcnt(0)"] + after_reads(npar, par), 4: dm[0] + dm[1] + dm[2] + dm[3]}
    if par == 1: ex2[14] = advance_addrs(2)
    exB1 = {2: gf_fix(npar)}
    pa, pb = 3 - 2*par, 2 - 2*par
    if 'prioAB' in X: pa, pb = 1, 0
    if 'prioBA' in X: pa, pb = 0, 1
    if 'prio2' in X: pa, pb = (1, 1) if par == 0 else (0, 0)
    if 'noprio' not in X: e(f"    s_setprio {pa}")
    phase('A', par, mfma_group('B', par), ex1, ex2)
    if 'noprio' not in X: e(f"    s_setprio {pb}")
    mA = mfma_group('A', npar)
    mA[0] = ("    s_waitcnt lgkmcnt(4)\n" if 'nowr' not in X and 'novalu' not in X else "    s_waitcnt lgkmcnt(0)\n") + mA[0]
    phase('B', par, mA, exB1, {})

vLANE = 1
vTAB = (16, 17)
vLR, vREM = (18, 19), (20, 21)
vREC = 64
vA = 96
vRK = 112
def slot_list(ks):
    for k in ks:
        for r in range(2):
            for p in range(2):
                yield k, r, p, (2*k+r)*2 + p
def msk(q): return f"s[{sMASK+2*q}:{sMASK+2*q+1}]"

def slot_pass(name, fns):
    for fn in fns:
        for sl in slot_list([0, 1]):
            e(fn(*sl))
    for k in (2, 3):
        e(f"    s_cmp_le_u32 {sKM}, {k}\n    s_cbranch_scc1 {name}_DONE")
        for fn in fns:
            for sl in slot_list([k]):
                e(fn(*sl))
    e(f"{name}_DONE:")

def seg_masks():
    c("per-round segment limits and slot masks")
    for r in range(2):
        e(f"    v_sub_u32 v{vREM[r]}, v{vLR[r]}, v22")
    for k, r, p, q in slot_list(range(4)):
        e(f"    v_cmp_lt_i32 {msk(q)}, {8*k+p}, v{vREM[r]}")
    q20, q21, q30, q31 = 8, 10, 12, 14
    e(f"""    s_mov_b32 {sKM}, 2
    s_or_b64 s[52:53], {msk(q20)}, {msk(q21)}
    s_cmp_lg_u64 s[52:53], 0
    s_cselect_b32 {sKM}, 3, {sKM}
    s_or_b64 s[52:53], {msk(q30)}, {msk(q31)}
    s_cmp_lg_u64 s[52:53], 0
    s_cselect_b32 {sKM}, 4, {sKM}""")

PFN = 2 if 'pf2' in X else 0
P1_HIST, P1_OFFS = 16384, 17408
P1_STAGE = RECS
S_DBG = "s[10:11]"
KNAME = "gather_scatter__edge_featured_mpnn_gatedgcn__graph_kernel"
SLP = int(os.environ.get('SLP', '12'))
def gen_k2():
    STP = 'sc0 sc1'
    NT = 400
    e(f".globl {KNAME}\n.p2align 8\n.type {KNAME},@function\n{KNAME}:")
    e(f"""    s_cmp_ge_u32 s2, {NBINS}
    s_cbranch_scc1 K2_END
    s_load_dwordx4 s[56:59], s[0:1], 16
    s_load_dwordx4 s[60:63], s[0:1], 0
    s_load_dwordx4 s[64:67], s[0:1], 32
    s_load_dwordx4 s[68:71], s[0:1], 48
    s_load_dwordx4 s[72:75], s[0:1], 64
    s_load_dwordx4 s[76:79], s[0:1], 80
    s_and_b32 {sB}, s2, 7
    s_lshl_b32 {sB}, {sB}, 5
    s_lshr_b32 s3, s2, 3
    s_add_u32 {sB}, {sB}, s3
    s_mul_i32 {sN0}, {sB}, {NB}
    s_sub_u32 {sNL}, {N}, {sN0}
    s_min_u32 {sNL}, {sNL}, {NB}
    v_lshrrev_b32 v2, 6, v0
    v_and_b32 v{vLANE}, 63, v0
    v_readfirstlane_b32 {sWV}, v2
    s_mov_b32 {sMSK22}, 0x3fffff
    s_mov_b32 {sMSKA}, 0x3fb8
    s_mov_b32 {sRND}, 0""")
    c("phase-1 addresses")
    e(f"""    s_mul_i32 s48, s2, {CH*4}
    v_lshlrev_b32 v40, 4, v0
    v_add_u32 v41, s48, v40
    v_add_u32 v42, {NT*16}, v41
    v_lshrrev_b32 v43, 1, v41
    v_lshrrev_b32 v44, 1, v42
    v_lshlrev_b32 v45, 2, v0
    v_mov_b32 v46, 0
    v_cmp_gt_u32 vcc, 256, v0
    s_and_saveexec_b64 s[52:53], vcc
    ds_write_b32 v45, v46 offset:{P1_HIST}
    s_mov_b64 exec, s[52:53]
    v_mov_b32 v46, 1
    v_cmp_gt_u32 vcc, {NT}, v0
    s_and_b64 s[54:55], exec, vcc
    s_lshl_b32 s3, {sN0}, 7
    s_lshl_b32 s49, {sNL}, 7
    s_waitcnt lgkmcnt(0)""")
    if DBG:
        e(f"    s_memrealtime s[98:99]\n    s_waitcnt lgkmcnt(0)\n    v_writelane_b32 v{vDBG}, s98, 13")
    e(f"""    s_cmp_ge_u32 s2, {NCH}
    s_cbranch_scc1 K2_P1A
    s_mov_b64 exec, s[54:55]
    global_load_dwordx4 v[64:67], v41, s[58:59]
    global_load_dwordx4 v[68:71], v42, s[58:59]
    s_mov_b64 exec, -1
K2_P1A:
    s_mov_b32 s4, s60
    s_mov_b32 s5, s61
    s_mov_b32 s6, s78
    s_mov_b32 s7, s79
    s_mov_b32 s10, s76
    s_mov_b32 s11, s77
    s_mov_b32 s24, s78
    s_mov_b32 s25, s79
    s_mov_b32 s26, {WS_SIZE}
    s_mov_b32 s27, 0x00020000
    s_mov_b32 s12, s60
    s_mov_b32 s13, s61
    s_mov_b32 s14, {N*128}
    s_mov_b32 s15, 0x00020000
    s_add_u32 s16, s60, s3
    s_addc_u32 s17, s61, 0
    s_mov_b32 s18, s49
    s_mov_b32 s19, 0x00020000
    s_add_u32 s20, s74, s3
    s_addc_u32 s21, s75, 0
    s_mov_b32 s22, s49
    s_mov_b32 s23, 0x00020000""")
    hstamp()
    c("lane constants")
    e(f"""    s_lshr_b32 {sRHO}, {sWV}, 1
    s_and_b32 {sFB}, {sWV}, 1
    v_and_b32 v{vN}, 31, v{vLANE}
    v_lshrrev_b32 v{vH}, 5, v{vLANE}
    v_lshrrev_b32 v22, 4, v{vLANE}
    v_and_b32 v{vCHB}, 7, v{vLANE}
    v_xor_b32 v{vCHA}, v22, v{vCHB}
    v_lshlrev_b32 v{vCHA}, 4, v{vCHA}
    v_xor_b32 v{vCHB}, 64, v{vCHA}
    s_lshl_b32 s3, {sWV}, 12
    s_add_u32 {sM0B}, s3, {XST}
    s_barrier""")
    e(f"""    s_cmp_ge_u32 s2, {NCH}
    s_cbranch_scc1 K2_P1B
    s_mov_b64 exec, s[54:55]
    global_load_dwordx4 v[96:99], v41, s[56:57]
    global_load_dwordx4 v[100:103], v42, s[56:57]
    global_load_dwordx2 v[104:105], v43, s[62:63]
    global_load_dwordx2 v[106:107], v44, s[62:63]
    s_mov_b64 exec, -1
K2_P1B:""")
    def w_dma():
        c("raw weights -> LDS (ROWS area): [w_b | w_v | w_a | w_u], wave w loads half (w&1) of matrix w>>1")
        e(f"""    s_cmp_eq_u32 {sRHO}, 1
    s_cselect_b32 s80, s72, s66
    s_cselect_b32 s81, s73, s67
    s_cmp_eq_u32 {sRHO}, 2
    s_cselect_b32 s80, s64, s80
    s_cselect_b32 s81, s65, s81
    s_cmp_eq_u32 {sRHO}, 3
    s_cselect_b32 s80, s70, s80
    s_cselect_b32 s81, s71, s81
    s_lshl_b32 s3, {sWV}, 12
    s_add_u32 s48, s3, {ROWS}
    s_mov_b32 m0, s48
    s_lshl_b32 s3, {sFB}, 12
    v_lshlrev_b32 v36, 4, v{vLANE}
    v_add_u32 v36, s3, v36""")
        for k in range(4):
            e(f"    global_load_lds_dwordx4 v36, s[80:81] offset:{1024*k}")
    def x_dma():
        c("x_bin rows 16w..16w+15 -> LDS (XST area, swizzled)")
        e(f"""    s_lshl_b32 s3, {sWV}, 11
    s_add_u32 s48, s3, {XST}
    s_mov_b32 m0, s48
    v_lshrrev_b32 v22, 3, v{vLANE}
    v_lshlrev_b32 v22, 7, v22
    v_add_u32 v22, s3, v22
    v_add_u32 v36, v22, v{vCHA}
    v_add_u32 v37, v22, v{vCHB}
    v_add_u32 v37, 1024, v37
    buffer_load_dwordx4 v36, {SRD_XB}, 0 offen lds
    s_add_u32 m0, m0, 1024
    v_lshlrev_b32 v39, 1, v{vN}
    buffer_load_dwordx4 v37, {SRD_XB}, 0 offen lds
    global_load_ushort v34, v39, s[68:69]
    global_load_ushort v35, v39, s[68:69] offset:64""")
    WL = 'wlate' in X; XL = 'xlate' in X
    if not WL: w_dma()
    if not XL: x_dma()
    NY = (0 if WL else 4) + (0 if XL else 4)
    e(f"""    v_bfe_u32 v22, v{vN}, 1, 3
    v_xor_b32 v22, v22, v{vH}
    v_lshlrev_b32 v22, 4, v22
    v_lshl_add_u32 v22, v{vN}, 7, v22
    v_add_u32 v{vXR[0]}, {sM0B}, v22""")
    for s_ in range(1, 4):
        e(f"    v_xor_b32 v{vXR[s_]}, {32*s_}, v{vXR[0]}")
    e(f"""    v_bfe_u32 v22, v{vLANE}, 4, 1
    v_and_b32 v{vAFC}, 3, v{vLANE}
    v_lshlrev_b32 v{vAFC}, 3, v{vAFC}
    v_lshl_add_u32 v{vAFC}, v22, 5, v{vAFC}
    v_lshlrev_b32 v{vN4}, 2, v{vN}""")
    e(f"""    v_lshrrev_b32 v48, 3, v{vN}
    v_bfe_u32 v49, v{vN}, 2, 1
    v_cmp_eq_u32 vcc, v49, v{vH}
    v_mov_b32 v50, 0x3f80
    v_and_b32 v51, 1, v48
    v_cndmask_b32 v50, 0, v50, vcc
    v_lshlrev_b32 v51, 4, v51
    v_lshlrev_b32 v50, v51, v50
    v_cmp_gt_u32 vcc, 2, v48
    v_mov_b32 v53, 0
    s_nop 0
    v_cndmask_b32 v51, 0, v50, vcc
    v_cndmask_b32 v52, v50, 0, vcc
    v_accvgpr_write_b32 a{aO}, v51
    v_accvgpr_write_b32 a{aO+1}, v52
    v_accvgpr_write_b32 a{aO+3}, v53
    v_accvgpr_write_b32 a{aAFA+3}, v53
    v_accvgpr_write_b32 a{aAFB+3}, v53""")
    DST, BIN4, NU, RK, SRC, EE, REC = 64, 72, 80, 88, 96, 104, 108
    e(f"""    s_cmp_ge_u32 s2, {NCH}
    s_cbranch_scc1 K2_P1LATE
    s_mov_b64 exec, s[54:55]
    s_mov_b32 s48, {-NB & 0xffffffff}
    s_waitcnt vmcnt({5+NY})""")
    def binops(k):
        e(f"""    v_mul_u32_u24 v{BIN4+k}, 42800, v{DST+k}
    v_lshrrev_b32 v{BIN4+k}, 22, v{BIN4+k}
    v_mad_i32_i24 v{NU+k}, v{BIN4+k}, s48, v{DST+k}
    v_lshlrev_b32 v{BIN4+k}, 2, v{BIN4+k}""")
    hstamp()
    for k in range(4): binops(k)
    for k in range(4): e(f"    ds_add_rtn_u32 v{RK+k}, v{BIN4+k}, v46 offset:{P1_HIST}")
    e(f"    s_waitcnt vmcnt({4+NY})")
    for k in range(4, 8): binops(k)
    for k in range(4, 8): e(f"    ds_add_rtn_u32 v{RK+k}, v{BIN4+k}, v46 offset:{P1_HIST}")
    e(f"""    s_waitcnt lgkmcnt(0)
    s_barrier
    s_mov_b64 exec, -1
    v_lshlrev_b32 v47, 4, v{vLANE}
    ds_read_b128 v[48:51], v47 offset:{P1_HIST}
    s_waitcnt lgkmcnt(0)
    v_add_u32 v52, v48, v49
    v_add_u32 v53, v52, v50
    v_add_u32 v54, v53, v51
    v_mov_b32 v55, v54""")
    dpp_scan("v55")
    e(f"""    v_sub_u32 v56, v55, v54
    v_add_u32 v57, v56, v48
    v_add_u32 v58, v56, v52
    v_add_u32 v59, v56, v53
    ds_write_b128 v47, v[56:59] offset:{P1_OFFS}
    v_lshl_or_b32 v60, v57, 16, v56
    v_lshl_or_b32 v61, v58, 16, v57
    v_lshl_or_b32 v62, v59, 16, v58
    v_lshl_or_b32 v63, v55, 16, v59
    s_lshl_b32 s3, s2, 10
    s_add_u32 s3, s3, {WS_TAB}
    v_add_u32 v47, s3, v47
    s_waitcnt lgkmcnt(0)
    s_mov_b64 exec, s[54:55]""")
    for k in range(8):
        e(f"    ds_read_b32 v{48+k}, v{BIN4+k} offset:{P1_OFFS}")
    e(f"""    s_waitcnt vmcnt({NY})
    s_cmp_lg_u32 {sWV}, 0
    s_cbranch_scc1 K2_NOTAB
    s_mov_b64 exec, -1
    global_store_dwordx4 v47, v[60:63], s[6:7] {STP}
    s_mov_b64 exec, s[54:55]
K2_NOTAB:""")
    for k in range(8):
        e(f"""    v_lshlrev_b32 v{REC+2*k}, 7, v{SRC+k}
    v_lshl_or_b32 v{REC+2*k}, v{NU+k}, 24, v{REC+2*k}""")
    for k in range(8):
        src = EE + k//2
        e(f"    v_and_b32 v{REC+1+2*k}, 0xffff, v{src}" if k % 2 == 0 else f"    v_lshrrev_b32 v{REC+1+2*k}, 16, v{src}")
    e("    s_waitcnt lgkmcnt(0)")
    for k in range(8):
        e(f"    v_add_lshl_u32 v{48+k}, v{48+k}, v{RK+k}, 3")
    for k in range(8):
        e(f"    ds_write_b64 v{48+k}, v[{REC+2*k}:{REC+1+2*k}] offset:{P1_STAGE}")
    e("    s_waitcnt lgkmcnt(0)\n    s_barrier")
    for k in range(4):
        e(f"    ds_read_b128 v[{64+4*k}:{67+4*k}], v40 offset:{P1_STAGE+6400*k}")
    e("K2_P1LATE:")
    e("    s_mov_b64 exec, -1")
    if WL: w_dma()
    if XL: x_dma()
    e(f"    s_cmp_ge_u32 s2, {NCH}\n    s_cbranch_scc1 K2_P1END\n    s_mov_b64 exec, s[54:55]")
    e(f"""    s_mul_i32 s3, s2, {CH*8}
    v_add_u32 v48, s3, v40""")
    for k in range(1, 4):
        e(f"    v_add_u32 v{48+k}, {6400*k}, v48")
    for k in range(4):
        e(f"    s_waitcnt lgkmcnt({3-k})\n    global_store_dwordx4 v{48+k}, v[{64+4*k}:{67+4*k}], s[6:7] {STP}")
    e(f"""    s_mov_b64 exec, -1
K2_P1END:
    s_waitcnt vmcnt(0)
    s_barrier""")
    c("signal: this workgroup's records and table row are out")
    e(f"""    s_cmp_ge_u32 s2, {NCH}
    s_cbranch_scc1 K2_NOSIG
    s_cmp_lg_u32 {sWV}, 0
    s_cbranch_scc1 K2_NOSIG
    s_and_b32 s3, s2, 3
    s_lshl_b32 s3, s3, 6
    v_mov_b32 v48, s3
    v_mov_b32 v49, 1
    s_mov_b64 exec, 1
    global_atomic_add v48, v49, s[10:11]
    s_mov_b64 exec, -1
K2_NOSIG:""")
    hstamp()
    if DBG:
        e(f"    s_memrealtime s[98:99]\n    s_waitcnt lgkmcnt(0)\n    v_writelane_b32 v{vDBG}, s98, 12")
    c("weight fragments from the raw row-major copies (transposing reads); w_b and w_a are scaled by -log2(e)")
    e(f"""    v_bfe_u32 v22, v{vLANE}, 2, 2
    v_lshl_add_u32 v22, v{vH}, 3, v22
    v_lshlrev_b32 v22, 7, v22
    v_add_u32 v22, v22, v{vAFC}
    v_add_u32 v22, {ROWS}, v22
    s_lshl_b32 s3, {sFB}, 6
    v_add_u32 v23, s3, v22
    s_mov_b32 s48, {NEG_LOG2E:#x}
    s_mov_b32 s49, {NEG_LOG2E:#x}""")
    def trd(dst, reg, off):
        return [f"    ds_read_b64_tr_b16 {dst(0)}, v{reg} offset:{off}", f"    ds_read_b64_tr_b16 {dst(2)}, v{reg} offset:{off+512}"]
    for s_ in range(4):
        for f in range(2):
            base = aWV + (s_*2+f)*4
            for x in trd(lambda o: ar(base+o, 2), 22, 8192 + s_*2048 + f*64): e(x)
    for s_ in range(4):
        base = 64 + 4*s_
        for x in trd(lambda o: ar(base+o, 2), 23, 24576 + s_*2048): e(x)
    for s_ in range(4):
        for f in range(2):
            base = 64 + (s_*2+f)*4
            for x in trd(lambda o: vr(base+o, 2), 22, s_*2048 + f*64): e(x)
    for s_ in range(4):
        base = 96 + 4*s_
        for x in trd(lambda o: vr(base+o, 2), 23, 16384 + s_*2048): e(x)
    c("x_bin A fragments")
    e(f"""    s_lshl_b32 s3, {sRHO}, 12
    s_add_u32 s3, s3, {XST}
    s_sub_u32 s3, s3, {sM0B}""")
    for s_ in range(4):
        e(f"    v_add_u32 v{60+s_}, s3, v{vXR[s_]}")
    for s_ in range(4):
        e(f"    ds_read_b128 {vr(40+4*s_,4)}, v{60+s_}")
    e("    s_waitcnt lgkmcnt(0)")
    def scale(r, toacc):
        e(f"""    v_lshlrev_b32 v112, 16, v{r}
    v_and_b32 v113, 0xffff0000, v{r}
    v_pk_mul_f32 v[112:113], v[112:113], s[48:49]
    v_cvt_pk_bf16_f32 v{r}, v112, v113""")
        if toacc is not None: e(f"    v_accvgpr_write_b32 a{toacc}, v{r}")
    for r in range(16): scale(96 + r, None)
    c("A'^T = Wa'^T x^T (lane = node), U = x Wu")
    e(f"""    s_lshl_b32 s3, {sRHO}, 12
    s_lshl_b32 s80, {sFB}, 6
    s_add_u32 s3, s3, s80
    v_and_b32 v22, 7, v{vN}
    v_xor_b32 v22, v22, v{vH}
    v_lshlrev_b32 v22, 3, v22
    v_lshl_add_u32 v22, v{vN}, 7, v22
    v_add_u32 v60, s3, v22
    v_xor_b32 v61, 16, v60
    v_xor_b32 v62, 32, v60
    v_xor_b32 v63, 48, v60""")
    for s_ in range(4):
        e(mfma(vr(112,16), vr(96+4*s_,4), vr(40+4*s_,4), "0" if s_ == 0 else vr(112,16)))
    for s_ in range(4):
        e(mfma(ar(aU,16), vr(40+4*s_,4), ar(64+4*s_,4), "0" if s_ == 0 else ar(aU,16)))
    e("    s_nop 7")
    for r in range(0, 16, 2):
        e(f"    v_cvt_pk_bf16_f32 v{48+r//2}, v{112+r}, v{113+r}")
    for i in range(4):
        e(f"    ds_write_b64 v{60+i}, v[{48+2*i}:{49+2*i}] offset:{A_OFF}")
    for r in range(32): scale(64 + r, aWB + r)
    c("w_c words: (bf16(-log2e*w_c) | BIG<<16) for the lower half-wave, 0 for the upper")
    e(f"""    v_lshlrev_b32 v34, 16, v34
    v_lshlrev_b32 v35, 16, v35
    v_mul_f32 v34, s48, v34
    v_mul_f32 v35, s48, v35
    v_mov_b32 v36, {BIG:#x}
    v_cmp_eq_u32 vcc, 0, v{vH}
    v_cvt_pk_bf16_f32 v34, v34, v36
    v_cvt_pk_bf16_f32 v35, v35, v36
    v_cndmask_b32 v34, 0, v34, vcc
    v_cndmask_b32 v35, 0, v35, vcc
    v_accvgpr_write_b32 a{aAFA+2}, v34
    v_accvgpr_write_b32 a{aAFB+2}, v35""")
    c("wait until every chunk has been published")
    e(f"""    s_cmp_lg_u32 {sWV}, 0
    s_cbranch_scc1 K2_POLLED
    v_lshlrev_b32 v48, 6, v{vLANE}
    s_mov_b32 s80, 0
    s_mov_b64 exec, 15
""")
    if 'poll3' not in X:
        e(f"""K2_POLL:
    global_load_dword v49, v48, s[10:11] sc1
    s_waitcnt vmcnt(0)
    v_readlane_b32 s81, v49, 0
    v_readlane_b32 s82, v49, 1
    v_readlane_b32 s83, v49, 2
    v_readlane_b32 s84, v49, 3
    s_add_u32 s81, s81, s82
    s_add_u32 s83, s83, s84
    s_add_u32 s81, s81, s83
    s_cmp_ge_u32 s81, {NCH}
    s_cbranch_scc1 K2_POLL_DONE
    s_sleep {SLP}
    s_add_u32 s80, s80, 1
    s_cmp_lt_u32 s80, 40000
    s_cbranch_scc1 K2_POLL
""")
    else:
        e(f"""    global_load_dword v49, v48, s[10:11] sc1
    s_sleep 6
    global_load_dword v50, v48, s[10:11] sc1
    s_sleep 6
    global_load_dword v51, v48, s[10:11] sc1
K2_POLL:
    s_waitcnt vmcnt(2)
    v_readlane_b32 s81, v49, 0
    v_readlane_b32 s82, v49, 1
    v_readlane_b32 s83, v49, 2
    v_readlane_b32 s84, v49, 3
    s_add_u32 s81, s81, s82
    s_add_u32 s83, s83, s84
    s_add_u32 s81, s81, s83
    s_cmp_ge_u32 s81, {NCH}
    s_cbranch_scc1 K2_POLL_DONE
    global_load_dword v49, v48, s[10:11] sc1
    s_waitcnt vmcnt(2)
    v_readlane_b32 s81, v50, 0
    v_readlane_b32 s82, v50, 1
    v_readlane_b32 s83, v50, 2
    v_readlane_b32 s84, v50, 3
    s_add_u32 s81, s81, s82
    s_add_u32 s83, s83, s84
    s_add_u32 s81, s81, s83
    s_cmp_ge_u32 s81, {NCH}
    s_cbranch_scc1 K2_POLL_DONE
    global_load_dword v50, v48, s[10:11] sc1
    s_waitcnt vmcnt(2)
    v_readlane_b32 s81, v51, 0
    v_readlane_b32 s82, v51, 1
    v_readlane_b32 s83, v51, 2
    v_readlane_b32 s84, v51, 3
    s_add_u32 s81, s81, s82
    s_add_u32 s83, s83, s84
    s_add_u32 s81, s81, s83
    s_cmp_ge_u32 s81, {NCH}
    s_cbranch_scc1 K2_POLL_DONE
    global_load_dword v51, v48, s[10:11] sc1
    s_add_u32 s80, s80, 1
    s_cmp_lt_u32 s80, 20000
    s_cbranch_scc1 K2_POLL
""")
    e(f"""K2_POLL_DONE:
    s_mov_b64 exec, -1
K2_POLLED:
    s_waitcnt lgkmcnt(0)
    s_barrier""")
    stamp()
    if DBG: e(f"    s_memrealtime s[98:99]\n    s_waitcnt lgkmcnt(0)\n    v_writelane_b32 v{vDBG}, s98, 14")
    hstamp()
    c("table words")
    e(f"""    v_lshrrev_b32 v42, 2, v0
    v_lshlrev_b32 v40, 10, v42
    s_lshl_b32 s48, {sB}, 2
    s_add_u32 s48, s48, {WS_TAB}
    v_add_u32 v40, s48, v40
    v_add_u32 v41, {128*1024}, v40
    buffer_load_dword v{vTAB[0]}, v40, {SRD_WS}, 0 offen sc1
    buffer_load_dword v{vTAB[1]}, v41, {SRD_WS}, 0 offen sc1""")
    e("K2_ROUND_INIT:")
    c("LDS init: cnt = 0, headn = -1, flag = 0")
    e(f"""    v_lshlrev_b32 v40, 2, v0
    v_mov_b32 v41, 0
    v_cmp_gt_u32 vcc, 192, v0
    s_and_saveexec_b64 s[52:53], vcc
    ds_write_b32 v40, v41 offset:{CNT}
    v_cmp_gt_u32 vcc, 18, v0
    s_and_b64 exec, exec, vcc
    v_cmp_gt_u32 vcc, 16, v0
    v_mov_b32 v42, -1
    s_nop 0
    v_cndmask_b32 v42, 0, v42, vcc
    ds_write_b32 v40, v42 offset:{HEADN}
    s_mov_b64 exec, s[52:53]
    v_and_b32 v22, 3, v0
    v_lshlrev_b32 v22, 1, v22""")
    assert FLAG == HEADN + 64
    e(f"""    s_cmp_lg_u32 {sRND}, 0
    s_cbranch_scc1 K2_ROUND_N""")
    c("segment descriptors: segment r of this thread = (tid>>2) + 128 r ; c = tid&3")
    e(f"""    v_lshrrev_b32 v40, 2, v0
    v_add_u32 v41, 128, v40
    v_cmp_gt_u32 vcc, {NCH}, v41
    v_mul_u32_u24 v40, {CH}, v40
    v_mul_u32_u24 v41, {CH}, v41
    v_add_u32 v40, v40, v22
    v_add_u32 v41, v41, v22
    s_waitcnt vmcnt(0)
    v_and_b32 v42, 0xffff, v{vTAB[0]}
    v_lshrrev_b32 v43, 16, v{vTAB[0]}
    v_and_b32 v44, 0xffff, v{vTAB[1]}
    v_lshrrev_b32 v45, 16, v{vTAB[1]}
    v_sub_u32 v{vLEN[0]}, v43, v42
    v_sub_u32 v{vLEN[1]}, v45, v44
    v_add_lshl_u32 v{vBASE[0]}, v40, v42, 3
    v_add_lshl_u32 v{vBASE[1]}, v41, v44, 3
    v_cndmask_b32 v{vLEN[1]}, 0, v{vLEN[1]}, vcc
K2_ROUND_N:
    v_min_u32 v{vLR[0]}, 32, v{vLEN[0]}
    v_min_u32 v{vLR[1]}, 32, v{vLEN[1]}""")
    seg_masks()
    stamp()
    def rec_loads():
        c("record loads")
        for k in range(4):
            for r in range(2):
                q = (2*k+r)*2
                e(f"    s_mov_b64 exec, {msk(q)}")
                e(f"    buffer_load_dwordx4 {vr(vREC+(2*k+r)*4,4)}, v{vBASE[r]}, {SRD_WS}, 0 offen offset:{64*k} sc1")
        e("    s_mov_b64 exec, -1")
    rec_loads()
    c("cnt / headn / flags initialised above must be visible before counting")
    e("    s_waitcnt lgkmcnt(0)\n    s_barrier")
    stamp()
    stamp()
    e("K2_COUNT:")
    c("counting pass (records arrive in k order)")
    e("    v_mov_b32 v40, 1")
    cfn = [lambda k, r, p, q: f"    v_lshrrev_b32 v{vA+q}, 22, v{vREC+(2*k+r)*4+2*p}",
           lambda k, r, p, q: f"    s_mov_b64 exec, {msk(q)}\n    ds_add_rtn_u32 v{vRK+q}, v{vA+q}, v40 offset:{CNT}",
           lambda k, r, p, q: "    s_mov_b64 exec, -1" if q % 4 == 3 else ""]
    for k in range(4):
        if k >= 2: e(f"    s_cmp_le_u32 {sKM}, {k}\n    s_cbranch_scc1 K2_CNT_DONE")
        e(f"    s_waitcnt vmcnt({PFN + 6 - 2*k})")
        if 'fine2' in X and k < 2: stamp_at(13 + k)
        for fn in cfn:
            for sl in slot_list([k]): e(fn(*sl))
    e("K2_CNT_DONE:")
    e("    s_mov_b64 exec, -1\n    s_waitcnt lgkmcnt(0)\n    s_barrier")
    stamp()
    c("scan over nodes (every wave redundantly)")
    e(f"""    v_lshlrev_b32 v40, 3, v{vLANE}
    ds_read_b64 v[42:43], v40 offset:{CNT}
    s_waitcnt lgkmcnt(0)
    v_add_u32 v44, 3, v42
    v_add_u32 v45, 3, v43
    v_lshrrev_b32 v44, 2, v44
    v_lshrrev_b32 v45, 2, v45
    v_add_u32 v46, v44, v45
    v_mov_b32 v47, v46""")
    dpp_scan("v47")
    e(f"""    v_sub_u32 v48, v47, v46
    v_add_u32 v49, v48, v44
    v_readlane_b32 {sG}, v47, 63
    v_lshlrev_b32 v50, 5, v48
    v_lshlrev_b32 v51, 5, v49
    v_add_u32 v50, {RECS}, v50
    v_add_u32 v51, {RECS}, v51
    s_cmp_le_u32 {sG}, {GMAX}
    s_cbranch_scc1 K2_FITS""")
    c("overflow: redo this round with 12 records per segment")
    e(f"""    s_barrier
    v_lshlrev_b32 v40, 2, v0
    v_mov_b32 v41, 0
    v_cmp_gt_u32 vcc, 192, v0
    s_and_saveexec_b64 s[52:53], vcc
    ds_write_b32 v40, v41 offset:{CNT}
    s_mov_b64 exec, s[52:53]
    v_min_u32 v{vLR[0]}, 12, v{vLEN[0]}
    v_min_u32 v{vLR[1]}, 12, v{vLEN[1]}
    v_and_b32 v22, 3, v0
    v_lshlrev_b32 v22, 1, v22""")
    seg_masks()
    e(f"""    s_waitcnt lgkmcnt(0)
    s_barrier
    s_branch K2_COUNT
K2_FITS:
    ds_write_b64 v40, v[48:49] offset:{GS}
    ds_write_b64 v40, v[50:51] offset:{GSA}
    s_add_u32 s3, {sG}, 31
    s_lshr_b32 s3, s3, 5
    s_max_u32 s3, s3, 2
    s_add_u32 {sLA}, s3, 1
    s_lshr_b32 {sLA}, {sLA}, 1
    s_lshr_b32 {sLB}, s3, 1
    s_cmp_lt_u32 {sWV}, 4
    s_cselect_b32 {sT}, {sLA}, {sLB}
    s_lshl_b32 {sLA}, {sLA}, 2
    s_lshl_b32 {sLB}, {sLB}, 2
    s_sub_u32 {sDD}, {sLA}, {sLB}
    s_lshl_b32 {sDD}, {sDD}, 3
    s_lshl_b32 {sCAP}, s3, 5
    v_cvt_f32_u32 v52, {sLA}
    v_cvt_f32_u32 v34, {sLB}
    v_rcp_f32 v52, v52
    v_rcp_f32 v34, v34
    s_lshl_b32 s3, {sLA}, 3
    v_cvt_f32_u32 v35, s3
    v_sub_f32 v35, 0.5, v35
    v_mov_b32 v36, 0x41000000
    v_fma_f32 v35, v35, v34, v36
    v_lshrrev_b32 v54, 2, v0
    v_lshlrev_b32 v40, 2, v54
    v_mul_f32 v53, 0.5, v52
    s_waitcnt lgkmcnt(0)""")
    if 'fine' in X: stamp()
    c("node data + scatter lookups")
    e(f"""    ds_read_b32 v42, v40 offset:{GS}
    ds_read_b32 v43, v40 offset:{GS+4}
    ds_read_b32 v44, v40 offset:{CNT}""")
    slot_pass("K2_S1", [lambda k, r, p, q: f"    s_mov_b64 exec, {msk(q)}\n    ds_read_b32 v{vA+q}, v{vA+q} offset:{GSA}"])
    e("    s_mov_b64 exec, -1")
    c("more-records flag")
    e(f"""    v_cmp_gt_u32 vcc, v{vLEN[0]}, v{vLR[0]}
    v_cmp_gt_u32 s[52:53], v{vLEN[1]}, v{vLR[1]}
    v_and_b32 v45, 3, v0
    s_nop 0
    s_or_b64 vcc, vcc, s[52:53]
    s_and_saveexec_b64 s[52:53], vcc
    v_mov_b32 v46, 1
    v_mov_b32 v47, {FLAG}
    ds_write_b32 v47, v46
    s_mov_b64 exec, s[52:53]""")
    if 'fine' in X: stamp()
    c("node jobs: thread (nu = tid>>2, q = tid&3)")
    e(f"""    v_cmp_gt_u32 vcc, {NB}, v54
    s_and_b64 exec, exec, vcc
    s_cbranch_execz K2_NODE_DONE
    v_lshlrev_b32 v46, 7, v54
    v_and_b32 v47, 7, v54
    v_lshl_or_b32 v46, v47, 3, v46
    v_lshlrev_b32 v47, 9, v54
    v_add_u32 v47, {ROWS}, v47
    s_mov_b64 s[54:55], exec
    s_waitcnt lgkmcnt(0)
    v_sub_u32 v43, v43, v42""")
    c("empty nodes: raise a flag, their rows are zeroed after the W fragments have been read")
    e(f"""    v_cmp_eq_u32 vcc, 0, v44
    s_and_b64 exec, exec, vcc
    v_mov_b32 v48, 1
    v_mov_b32 v49, {FLAG+4}
    ds_write_b32 v49, v48
    s_mov_b64 exec, s[54:55]""")
    c("pad slots in the last group")
    e(f"""    v_add_u32 v48, v44, v45
    v_lshlrev_b32 v49, 2, v43
    v_cmp_lt_u32 vcc, v48, v49
    v_lshlrev_b32 v49, 5, v42
    v_lshl_add_u32 v49, v48, 3, v49
    v_mov_b32 v50, 0
    v_mov_b32 v51, 0x3f800000
    s_and_b64 exec, exec, vcc
    ds_write_b64 v49, v[50:51] offset:{RECS}
    s_mov_b64 exec, s[54:55]""")
    c("stream of first / last group")
    e(f"""    v_add_u32 v48, v42, v43
    v_max_u32 v49, 1, v43
    v_add_u32 v49, v42, v49
    v_subrev_u32 v49, 1, v49
    s_lshl_b32 s3, {sLA}, 3
    v_cvt_f32_u32 v50, v42
    v_cvt_f32_u32 v51, v49
    v_fma_f32 v55, v50, v34, v35
    v_fma_f32 v56, v51, v34, v35
    v_fma_f32 v50, v50, v52, v53
    v_fma_f32 v51, v51, v52, v53
    v_cmp_gt_u32 vcc, s3, v42
    v_cmp_gt_u32 s[52:53], s3, v49
    v_cvt_u32_f32 v55, v55
    v_cvt_u32_f32 v56, v56
    v_cvt_u32_f32 v50, v50
    v_cvt_u32_f32 v51, v51
    v_cndmask_b32 v50, v55, v50, vcc
    v_cndmask_b32 v51, v56, v51, s[52:53]
    v_add_u32 v55, 1, v50
    v_mul_u32_u24 v56, {sLA}, v55
    v_mul_u32_u24 v57, {sLB}, v55
    v_add_u32 v57, {sDD}, v57
    v_min_u32 v56, v56, v57
    v_lshlrev_b32 v57, 9, v55
    v_add_u32 v57, {HEADS}, v57
    v_cmp_lt_u32 vcc, v50, v51
    v_lshlrev_b32 v58, 2, v55
    s_and_b64 exec, exec, vcc
    ds_write_b32 v58, v54 offset:{HEADN}
    s_mov_b64 exec, s[54:55]""")
    c("groups q, q+4, q+8, q+12 (fast path)")
    e(f"""    v_add_u32 v59, v42, v45
    v_mov_b32 v60, 1.0
    v_mov_b32 v61, 0""")
    for m in range(4):
        e(f"""    v_cmp_lt_u32 vcc, v59, v48
    s_and_b64 exec, exec, vcc
    v_cmp_ge_u32 vcc, v59, v56
    v_cmp_eq_u32 s[52:53], v59, v56
    v_cmp_eq_u32 s[88:89], v59, v42
    v_lshlrev_b32 v62, 2, v59
    v_cndmask_b32 v63, v47, v57, vcc
    s_or_b64 s[52:53], s[52:53], s[88:89]
    ds_write2st64_b32 v62, v46, v63 offset0:{GAT//256} offset1:{GFT//256}
    v_cndmask_b32 v63, v60, v61, s[52:53]
    v_add_u32 v59, 4, v59
    ds_write_b32 v62, v63 offset:{GKT}""")
    c("rare: more than 16 groups, or a node spanning more than two streams")
    e(f"""    s_mov_b64 exec, s[54:55]
    v_cmp_lt_u32 vcc, 16, v43
    v_add_u32 v59, 1, v50
    v_cmp_lt_u32 s[52:53], v59, v51
    s_nop 1
    s_or_b64 vcc, vcc, s[52:53]
    s_cbranch_vccz K2_NODE_DONE
    v_add_lshl_u32 v58, v42, v45, 2
    v_cmp_eq_u32 vcc, 0, v45
    v_mov_b32 v49, v45
    v_mov_b32 v55, 1.0
    v_mov_b32 v59, 0
    v_cndmask_b32 v56, 1.0, v59, vcc
K2_BULK:
    v_cmp_lt_u32 vcc, v49, v43
    s_and_b64 exec, exec, vcc
    s_cbranch_execz K2_BULK_DONE
    ds_write2st64_b32 v58, v46, v47 offset0:{GAT//256} offset1:{GFT//256}
    ds_write_b32 v58, v56 offset:{GKT}
    v_mov_b32 v56, v55
    v_add_u32 v58, 16, v58
    v_add_u32 v49, 4, v49
    s_branch K2_BULK
K2_BULK_DONE:
    s_mov_b64 exec, s[54:55]
    v_cmp_lt_u32 vcc, 0, v43
    s_and_b64 exec, exec, vcc
    s_cbranch_execz K2_NODE_DONE
K2_BND:
    v_cmp_lt_u32 vcc, v50, v51
    s_and_b64 exec, exec, vcc
    s_cbranch_execz K2_NODE_DONE
    v_add_u32 v50, 1, v50
    v_mul_u32_u24 v55, {sLA}, v50
    v_mul_u32_u24 v56, {sLB}, v50
    v_add_u32 v56, {sDD}, v56
    v_min_u32 v55, v55, v56
    v_add_u32 v61, 1, v50
    v_mul_u32_u24 v60, {sLA}, v61
    v_mul_u32_u24 v61, {sLB}, v61
    v_add_u32 v61, {sDD}, v61
    v_min_u32 v60, v60, v61
    v_lshlrev_b32 v56, 9, v50
    v_add_u32 v56, {HEADS}, v56
    v_lshlrev_b32 v57, 2, v50
    v_lshlrev_b32 v58, 2, v55
    v_mov_b32 v59, 0
    ds_write_b32 v57, v54 offset:{HEADN}
    ds_write_b32 v58, v59 offset:{GKT}
    v_min_u32 v60, v60, v48
    v_add_u32 v55, v55, v45
    s_mov_b64 s[52:53], exec
K2_BND2:
    v_cmp_lt_u32 vcc, v55, v60
    s_and_b64 exec, exec, vcc
    s_cbranch_execz K2_BND2_DONE
    v_lshlrev_b32 v58, 2, v55
    ds_write_b32 v58, v56 offset:{GFT}
    v_add_u32 v55, 4, v55
    s_branch K2_BND2
K2_BND2_DONE:
    s_mov_b64 exec, s[52:53]
    s_branch K2_BND
K2_NODE_DONE:
    s_mov_b64 exec, -1""")
    c("pad groups [G, 64T)")
    e(f"""    s_sub_u32 s3, {sCAP}, {sG}
    s_lshl_b32 s49, s3, 2
    v_cmp_gt_u32 vcc, s49, v0
    s_and_saveexec_b64 s[52:53], vcc
    s_cbranch_execz K2_PADG_DONE
    s_lshl_b32 s48, {sG}, 5
    v_lshlrev_b32 v48, 3, v0
    v_add_u32 v48, s48, v48
    v_mov_b32 v50, 0
    v_mov_b32 v51, 0x3f800000
    ds_write_b64 v48, v[50:51] offset:{RECS}
    v_cmp_gt_u32 vcc, s3, v0
    s_lshl_b32 s48, {sG}, 2
    v_lshlrev_b32 v48, 2, v0
    v_add_u32 v48, s48, v48
    v_mov_b32 v51, {HEADS}
    s_and_b64 exec, exec, vcc
    ds_write2st64_b32 v48, v50, v51 offset0:{GAT//256} offset1:{GFT//256}
    ds_write_b32 v48, v50 offset:{GKT}
K2_PADG_DONE:
    s_mov_b64 exec, s[52:53]
    v_lshlrev_b32 v41, 3, v{vLANE}
    v_add_u32 v41, {DUMMY}, v41
    s_waitcnt lgkmcnt(0)""")
    if 'fine' in X: stamp()
    c("scatter")
    slot_pass("K2_S3", [
        lambda k, r, p, q: f"    v_lshl_add_u32 v{vA+q}, v{vRK+q}, 3, v{vA+q}",
        lambda k, r, p, q: f"    s_mov_b64 exec, {msk(q)}\n    ds_write_b64 v{vA+q}, v[{vREC+(2*k+r)*4+2*p}:{vREC+(2*k+r)*4+2*p+1}]",
        lambda k, r, p, q: "    s_mov_b64 exec, -1" if q % 4 == 3 else ""])
    e("    s_mov_b64 exec, -1")
    if 'fine' in X: stamp()
    c("advance segment pointers for a possible next round; T-dependent addresses")
    for r in range(2):
        e(f"""    v_sub_u32 v{vLEN[r]}, v{vLEN[r]}, v{vLR[r]}
    v_lshl_add_u32 v{vBASE[r]}, v{vLR[r]}, 3, v{vBASE[r]}""")
    e(f"""    s_lshl_b32 s3, {sWV}, 1
    s_mul_i32 s48, s3, {sLA}
    s_mul_i32 s49, s3, {sLB}
    s_add_u32 s49, s49, {sDD}
    s_min_u32 s3, s48, s49
    s_lshl_b32 s48, s3, 5
    s_add_u32 s48, s48, {RECS}
    s_lshl_b32 s49, {sT}, 7
    v_mul_u32_u24 v41, s49, v{vH}
    v_add_u32 v41, s48, v41
    v_bfe_u32 v42, v{vLANE}, 3, 2
    v_lshl_add_u32 v{vSRC_RD}, v42, 3, v41
    v_bfe_u32 v42, v{vN}, 2, 1
    v_mul_u32_u24 v42, s49, v42
    v_add_u32 v42, s48, v42
    v_lshrrev_b32 v43, 3, v{vN}
    v_lshl_add_u32 v42, v43, 5, v42
    v_and_b32 v43, 3, v{vN}
    v_lshl_add_u32 v42, v43, 3, v42
    v_add_u32 v{vEW_RD}, 4, v42
    s_lshl_b32 s48, s3, 2
    s_lshl_b32 s49, {sT}, 4
    v_mul_u32_u24 v41, s49, v{vH}
    v_add_u32 v41, s48, v41
    v_add_u32 v{vGF_RD}, {GFT}, v41
    v_bfe_u32 v42, v{vLANE}, 2, 2
    v_lshl_add_u32 v41, v42, 2, v41
    v_add_u32 v{vGA_RD}, {GAT}, v41
    v_mov_b64 v[56:57], 0
    v_mov_b64 v[58:59], 0
    s_waitcnt lgkmcnt(0)
    s_barrier""")
    stamp()
    c("pipeline prologue")
    for x in src_reads(0): e(x)
    e(f"""    v_mov_b32 v40, {FLAG+4}
    ds_read_b32 v41, v40
    s_waitcnt lgkmcnt(0)""")
    for g in dma_issue():
        for x in g: e(x)
    e(f"    v_add_u32 v{vSRC_RD}, 128, v{vSRC_RD}")
    e(f"    v_readfirstlane_b32 s48, v41")
    rn = reads_next(0, 0)
    for x in rn[4:]: e(x)
    e("    s_waitcnt lgkmcnt(0)")
    for x in after_reads(0, 0): e(x)
    e("    s_barrier")
    c("rare: zero the rows of nodes without edges")
    e(f"""    s_cmp_eq_u32 s48, 0
    s_cbranch_scc1 K2_NOEMPTY
    v_lshrrev_b32 v60, 2, v0
    v_lshlrev_b32 v61, 2, v60
    ds_read_b32 v62, v61 offset:{CNT}
    v_and_b32 v63, 3, v0
    v_lshlrev_b32 v52, 9, v60
    v_lshl_add_u32 v52, v63, 7, v52
    v_add_u32 v52, {ROWS}, v52
    v_mov_b64 v[48:49], 0
    v_mov_b64 v[50:51], 0
    s_waitcnt lgkmcnt(0)
    v_cmp_gt_u32 vcc, {NB}, v60
    v_cmp_eq_u32 s[52:53], 0, v62
    s_nop 1
    s_and_b64 vcc, vcc, s[52:53]
    s_and_saveexec_b64 s[52:53], vcc
    s_cbranch_execz K2_EMPTY2""")
    for k in range(8):
        e(f"    ds_write_b128 v52, v[48:51] offset:{16*k}")
    e(f"""K2_EMPTY2:
    s_mov_b64 exec, s[52:53]
    s_waitcnt lgkmcnt(0)
    s_barrier
K2_NOEMPTY:""")
    e("    s_waitcnt vmcnt(0)")
    for x in rn[:4]: e(x)
    e("    s_waitcnt lgkmcnt(0)")
    for g in dma_issue():
        for x in g: e(x)
    for x in advance_addrs(1): e(x)
    for x in gf_fix(0): e(x)
    for x in mfma_group('A', 0): e(x)
    stamp()
    if 'solo' in X:
        e(f"    s_cmp_ge_u32 {sWV}, 4\n    s_cbranch_scc1 K2_LOOP_END")
    e(f"""    s_nop 15
    s_mov_b32 {sCNT}, {sT}
.p2align 6
K2_LOOP:""")
    INLOOP[0] = True
    tile_body(0)
    e(f"""    s_sub_u32 {sCNT}, {sCNT}, 1
    s_cmp_eq_u32 {sCNT}, 0
    s_cbranch_scc1 K2_LOOP_END""")
    tile_body(1)
    INLOOP[0] = False
    e(f"""    s_sub_u32 {sCNT}, {sCNT}, 1
    s_cmp_lg_u32 {sCNT}, 0
    s_cbranch_scc1 K2_LOOP
K2_LOOP_END:
    s_setprio 0
    s_waitcnt vmcnt(0)
    s_lshl_b32 s3, {sWV}, 11
    v_lshlrev_b32 v40, 4, v{vLANE}
    v_add_u32 v40, s3, v40
    s_mov_b32 m0, {sM0B}
    s_nop 0
    buffer_load_dwordx4 v40, {SRD_XB}, 0 offen lds
    buffer_load_dwordx4 v40, {SRD_XB}, 0 offen offset:1024 lds
    s_waitcnt lgkmcnt(0)""")
    stamp()
    e("    s_barrier")
    stamp()
    c("head fix-up")
    e(f"""    v_lshlrev_b32 v40, 2, v{vLANE}
    ds_read_b32 v41, v40 offset:{HEADN}
    ds_read_b32 v42, v40 offset:{HEADN+4}
    v_mov_b32 v43, {FLAG}
    ds_read_b32 v44, v43
    s_lshl_b32 s3, {sWV}, 1
    v_add_u32 v45, s3, v{vH}
    v_lshlrev_b32 v46, 2, v45
    ds_read_b32 v47, v46 offset:{HEADN}
    v_lshlrev_b32 v45, 9, v45
    v_add_u32 v45, {HEADS}, v45
    v_add_u32 v45, v45, v{vN4}
    s_waitcnt lgkmcnt(0)
    v_readfirstlane_b32 {sMORE}, v44
    v_cmp_eq_u32 vcc, v41, v42
    v_cmp_le_i32 s[52:53], 0, v41
    s_nop 1
    s_and_b64 vcc, vcc, s[52:53]
    s_and_b32 s52, vcc_lo, 0x7fff
    s_cmp_lg_u32 s52, 0
    s_cbranch_scc1 K2_FIX_SLOW
    v_cmp_le_i32 vcc, 0, v47
    s_and_saveexec_b64 s[52:53], vcc
    s_cbranch_execz K2_FIX_DONE
    v_lshlrev_b32 v47, 9, v47
    v_add_u32 v47, {ROWS}, v47
    v_add_u32 v47, v47, v{vN4}""")
    for q in range(4):
        e(f"""    ds_read_b32 v{16+q}, v45 offset:{128*q}
    ds_read_b32 v{20+q}, v47 offset:{128*q}""")
    e("    s_waitcnt lgkmcnt(0)")
    for q in range(4):
        e(f"""    v_add_f32 v{16+q}, v{16+q}, v{20+q}
    ds_write_b32 v47, v{16+q} offset:{128*q}""")
    e(f"""    s_branch K2_FIX_DONE
K2_FIX_SLOW:
    s_mov_b64 s[52:53], exec
    s_cmp_lg_u32 {sWV}, 0
    s_cbranch_scc1 K2_FIX_DONE
    s_mov_b32 s3, 0
K2_FIX_SL:
    v_readlane_b32 s49, v41, s3
    s_nop 3
    s_cmp_lt_i32 s49, 0
    s_cbranch_scc1 K2_FIX_SN
    s_lshl_b32 s49, s49, 9
    s_add_u32 s49, s49, {ROWS}
    s_lshl_b32 s54, s3, 9
    s_add_u32 s54, s54, {HEADS}
    v_lshlrev_b32 v45, 3, v{vLANE}
    v_add_u32 v46, s54, v45
    v_add_u32 v47, s49, v45
    ds_read_b64 v[16:17], v46
    ds_read_b64 v[18:19], v47
    s_waitcnt lgkmcnt(0)
    v_add_f32 v16, v16, v18
    v_add_f32 v17, v17, v19
    ds_write_b64 v47, v[16:17]
    s_waitcnt lgkmcnt(0)
K2_FIX_SN:
    s_add_u32 s3, s3, 1
    s_cmp_lt_u32 s3, 16
    s_cbranch_scc1 K2_FIX_SL
K2_FIX_DONE:
    s_mov_b64 exec, s[52:53]
    s_waitcnt vmcnt(0) lgkmcnt(0)
    s_barrier""")
    e(f"""    s_or_b32 s3, {sRND}, {sMORE}
    s_cmp_eq_u32 s3, 0
    s_cbranch_scc1 K2_EPI""")
    c("rare: several rounds. rows += saved (round>0); if more: save rows and restart")
    e(f"""    s_mul_i32 s3, {sB}, {NB*512}
    s_add_u32 s3, s3, {WS_ACC}
    v_lshlrev_b32 v40, 4, v0
    v_add_u32 v41, {ROWS}, v40
    v_add_u32 v42, s3, v40
    s_mov_b32 s49, 0
K2_MR:
    v_cmp_gt_u32 vcc, {NB*512}, v40
    s_and_saveexec_b64 s[52:53], vcc
    s_cbranch_execz K2_MR_N
    ds_read_b128 v[16:19], v41
    s_cmp_eq_u32 {sRND}, 0
    s_cbranch_scc1 K2_MR_A
    buffer_load_dwordx4 v[20:23], v42, {SRD_WS}, 0 offen
    s_waitcnt vmcnt(0) lgkmcnt(0)
    v_add_f32 v16, v16, v20
    v_add_f32 v17, v17, v21
    v_add_f32 v18, v18, v22
    v_add_f32 v19, v19, v23
    ds_write_b128 v41, v[16:19]
K2_MR_A:
    s_waitcnt lgkmcnt(0)
    s_cmp_eq_u32 {sMORE}, 0
    s_cbranch_scc1 K2_MR_N
    buffer_store_dwordx4 v[16:19], v42, {SRD_WS}, 0 offen
    s_waitcnt vmcnt(0)
K2_MR_N:
    s_mov_b64 exec, s[52:53]
    v_add_u32 v40, 8192, v40
    v_add_u32 v41, 8192, v41
    v_add_u32 v42, 8192, v42
    s_add_u32 s49, s49, 1
    s_cmp_lt_u32 s49, 7
    s_cbranch_scc1 K2_MR
    s_waitcnt vmcnt(0) lgkmcnt(0)
    s_barrier
    s_cmp_eq_u32 {sMORE}, 0
    s_cbranch_scc1 K2_EPI
    s_mov_b32 {sRND}, 1
    s_branch K2_ROUND_INIT""")
    e("K2_EPI:")
    stamp()
    c("wave (rho, fb): node = 32rho+8i+4h+j, feature = 32fb+n")
    DEN, NUM, XP, UU = 64, 80, 96, 112
    e(f"""    s_lshl_b32 s3, {sRHO}, 14
    s_lshl_b32 s49, {sFB}, 7
    s_add_u32 s3, s3, s49
    s_add_u32 s3, s3, {ROWS}
    v_lshlrev_b32 v3, 11, v{vH}
    v_add_u32 v3, v3, v{vN4}
    v_add_u32 v3, s3, v3""")
    for r in range(0, 16, 2):
        i, j = r >> 2, r & 3
        e(f"    ds_read2st64_b32 v[{DEN+r}:{DEN+r+1}], v3 offset0:{(8*i+j)*2} offset1:{(8*i+j+1)*2}")
    for r in range(0, 16, 2):
        i, j = r >> 2, r & 3
        e(f"    ds_read2st64_b32 v[{NUM+r}:{NUM+r+1}], v3 offset0:{(8*i+j)*2+1} offset1:{(8*i+j+1)*2+1}")
    c("x (residual) through transposing reads of the staged rows")
    e(f"""    s_lshl_b32 s3, {sRHO}, 13
    s_lshl_b32 s49, {sFB}, 6
    s_add_u32 s3, s3, s49
    s_add_u32 s3, s3, {XST}
    v_bfe_u32 v4, v{vLANE}, 2, 2
    v_lshl_add_u32 v4, v{vH}, 2, v4
    v_lshlrev_b32 v4, 7, v4
    v_add_u32 v4, v4, v{vAFC}
    v_add_u32 v4, s3, v4""")
    for i in range(4):
        e(f"    ds_read_b64_tr_b16 v[{XP+2*i}:{XP+2*i+1}], v4 offset:{(i>>1)*4096 + (i&1)*1024}")
    e(f"""    s_lshl_b32 s3, {sRHO}, 12
    s_lshl_b32 s49, {sFB}, 6
    s_add_u32 s3, s3, s49
    v_lshlrev_b32 v2, 9, v{vH}
    v_lshl_add_u32 v2, v{vN}, 1, v2
    v_add_u32 v2, s3, v2
    s_mov_b32 s48, {f32bits(1e-6):#x}
    s_mov_b32 s49, {f32bits(1e-6):#x}""")
    for r in range(16):
        e(f"    v_accvgpr_read_b32 v{UU+r}, a{aU+r}")
    if 'fine3' in X: stamp_at(11)
    e("    s_waitcnt lgkmcnt(12)")
    for r in range(0, 16, 2):
        e(f"    v_pk_add_f32 v[{DEN+r}:{DEN+r+1}], v[{DEN+r}:{DEN+r+1}], s[48:49]")
    for r in range(16):
        e(f"    v_rcp_f32 v{DEN+r}, v{DEN+r}")
    e("    s_waitcnt lgkmcnt(0)")
    for r in range(0, 16, 2):
        e(f"    v_pk_fma_f32 v[{UU+r}:{UU+r+1}], v[{NUM+r}:{NUM+r+1}], v[{DEN+r}:{DEN+r+1}], v[{UU+r}:{UU+r+1}]")
    for r in range(16):
        e(f"    v_max_f32 v{UU+r}, 0, v{UU+r}")
    for r in range(0, 16, 2):
        e(f"""    v_lshlrev_b32 v{DEN+r}, 16, v{XP+r//2}
    v_and_b32 v{DEN+r+1}, 0xffff0000, v{XP+r//2}""")
    for r in range(0, 16, 2):
        e(f"    v_pk_add_f32 v[{UU+r}:{UU+r+1}], v[{UU+r}:{UU+r+1}], v[{DEN+r}:{DEN+r+1}]")
    for r in range(0, 16, 2):
        e(f"    v_cvt_pk_bf16_f32 v{NUM+r//2}, v{UU+r}, v{UU+r+1}")
    if 'fine3' in X: stamp_at(12)
    for r in range(0, 16, 2):
        i, j = r >> 2, r & 3
        e(f"""    ds_write_b16 v2, v{NUM+r//2} offset:{A_OFF + (8*i+j)*128}
    ds_write_b16_d16_hi v2, v{NUM+r//2} offset:{A_OFF + (8*i+j+1)*128}""")
    OSP = '' if 'plainout' in X else 'sc1'
    e(f"""    v_lshlrev_b32 v5, 4, v0
    v_add_u32 v6, 8192, v5
    s_waitcnt lgkmcnt(0)""")
    if 'fine3' in X: stamp_at(13)
    e(f"""    s_barrier""")
    if 'fine3' in X: stamp_at(14)
    e(f"""    ds_read_b128 v[64:67], v5 offset:{A_OFF}
    ds_read_b128 v[68:71], v5 offset:{A_OFF+8192}
    s_waitcnt lgkmcnt(1)
    buffer_store_dwordx4 v[64:67], v5, {SRD_OUT}, 0 offen {OSP}
    s_waitcnt lgkmcnt(0)
    buffer_store_dwordx4 v[68:71], v6, {SRD_OUT}, 0 offen {OSP}""")
    stamp()
    if DBG and 'fine' not in X: e(f"    s_waitcnt vmcnt(0)\n    s_memrealtime s[98:99]\n    s_waitcnt lgkmcnt(0)\n    v_writelane_b32 v{vDBG}, s98, 15")
    if 'hdbg' in X: e("    s_waitcnt vmcnt(0)")
    hstamp()
    hflush()
    stamp_flush(sWV, 1)
    e("K2_END:\n    s_endpgm\nK2_CODE_END:")

def desc(name, nv, acc, ns):
    return f""".amdhsa_kernel {name}
  .amdhsa_next_free_vgpr {nv}
  .amdhsa_next_free_sgpr {ns}
  .amdhsa_accum_offset {acc}
  .amdhsa_group_segment_fixed_size 0
  .amdhsa_kernarg_size 96
  .amdhsa_user_sgpr_count 2
  .amdhsa_user_sgpr_kernarg_segment_ptr 1
  .amdhsa_system_sgpr_workgroup_id_x 1
  .amdhsa_float_denorm_mode_32 3
.end_amdhsa_kernel"""

def main(out):
    hdr = open('gather_scatter__edge_featured_mpnn_gatedgcn__graph.s.ref').read().split('\n')
    head = [x for x in hdr if x.startswith(';') and '@launch' not in x and 'Override launch' not in x and 'grid=ceil' not in x]
    for x in head: e(x)
    e(f"; @launch grid=({NBINS},1,1) block=(512,1,1) lds={K2_LDS}")
    e('.amdgcn_target "amdgcn-amd-amdhsa--gfx950"')
    e(".text")
    gen_k2()
    e('.section .rodata,"a"\n.p2align 6')
    e(desc(KNAME, 256, 128, 100))
    open(out, 'w').write("\n".join(L) + "\n")

if __name__ == "__main__":
    main(sys.argv[1] if len(sys.argv) > 1 else "gather_scatter__edge_featured_mpnn_gatedgcn__graph.s")
```

```python
import sys, struct

N = 25000
E = 800000
NB = 98
NBINS = 256
NCH = 250
CH = 3200

WS_REC = 0
WS_TAB = 0x700000
WS_W = 0x780000
WS_ACC = 0x800000
WS_SIZE = 0x2000000

LOG2E = 1.4426950408889634
def f32bits(x): return struct.unpack('<I', struct.pack('<f', x))[0]
NEG_LOG2E = f32bits(-LOG2E)
BIG = f32bits(2.0**100)

K1_HIST = 0
K1_OFFS = 1024
K1_STAGE = 2048
K1_LDS = 2048 + CH * 8

A_OFF = 0
CNT = 16384
GS = CNT + 768
GSA = GS + 512
HEADN = GSA + 768
FLAG = HEADN + 64
GAT = 18688
GFT = GAT + 4096
GKT = GFT + 4096
RECS = GKT + 4096
DUMMY = RECS + 31232
ROWS = DUMMY + 512
RS = 528
HEADS = ROWS + NB * RS
XST = (HEADS + 16 * RS + 127) // 128 * 128
K2_LDS = XST + 32768
XBS = RECS
assert GAT % 256 == 0 and XST % 128 == 0 and XBS % 128 == 0
GMAX = 960

import os
DBG = int(os.environ.get('DBG','0'))
WS_DBG = 0x1800000
X = set(os.environ.get('X','').split(','))
NST = [0]
vDBG = 38
def stamp(name=None):
    if not DBG: return
    i = NST[0]; NST[0] += 1
    e(f"    s_memtime s[96:97]")
    e(f"    s_waitcnt lgkmcnt(0)")
    e(f"    v_writelane_b32 v{vDBG}, s96, {i}")
NST1 = [0]
def stamp1():
    if not DBG: return
    i = NST1[0]; NST1[0] += 1
    e(f"    s_memtime s[32:33]")
    e(f"    s_waitcnt lgkmcnt(0)")
    e(f"    v_writelane_b32 v61, s32, {i}")
    if i == 0:
        e("    s_memrealtime s[34:35]\n    s_waitcnt lgkmcnt(0)\n    v_writelane_b32 v61, s34, 14")
def stamp_at(i):
    e(f"    s_memtime s[96:97]")
    e(f"    s_waitcnt lgkmcnt(0)")
    e(f"    v_writelane_b32 v{vDBG}, s96, {i}")
def stamp_flush(wave_sgpr, kid):
    if not DBG: return
    e(f"    s_lshl_b32 s3, s2, 4")
    e(f"    s_add_u32 s3, s3, {wave_sgpr}")
    e(f"    s_lshl_b32 s3, s3, 6")
    e(f"    s_add_u32 s3, s3, {WS_DBG + kid*0x100000}")
    e(f"    s_mov_b64 exec, 0xffff")
    e(f"    v_and_b32 v2, 63, v0")
    e(f"    v_lshlrev_b32 v2, 2, v2")
    e(f"    v_add_u32 v2, s3, v2")
    e(f"    global_store_dword v2, v{vDBG}, {'s[6:7]' if kid else 's[10:11]'}")
    NST[0] = 0
L = []
def e(s=""):
    for line in s.split("\n"):
        L.append(line)
def c(s): L.append("    ; " + s)

def dpp_scan(v):
    for sh in (1, 2, 4, 8):
        e(f"    s_nop 1")
        e(f"    v_add_u32_dpp {v}, {v}, {v} row_shr:{sh} row_mask:0xf bank_mask:0xf")
    e("    s_nop 1")
    e(f"    v_add_u32_dpp {v}, {v}, {v} row_bcast:15 row_mask:0xa bank_mask:0xf")
    e("    s_nop 1")
    e(f"    v_add_u32_dpp {v}, {v}, {v} row_bcast:31 row_mask:0xc bank_mask:0xf")

def gen_k1():
    STP = '' if 'plainst' in X else ('nt sc1' if 'ntsc1' in X else ('nt' if 'ntst' in X else ('sc1' if 'sc1only' in X else 'sc0 sc1')))
    NT = 400
    e(".globl k1_kernel\n.p2align 8\n.type k1_kernel,@function\nk1_kernel:")
    e(f"""    s_cmp_ge_u32 s2, {NCH+8}
    s_cbranch_scc1 K1_END
    s_load_dwordx4 s[4:7], s[0:1], 16
    s_load_dwordx4 s[12:15], s[0:1], 0
    s_load_dwordx2 s[10:11], s[0:1], 88
    s_cmp_ge_u32 s2, {NCH}
    s_cbranch_scc1 K1_PREP
    s_mul_i32 s16, s2, {CH*4}
    v_lshlrev_b32 v1, 4, v0
    v_add_u32 v2, s16, v1
    v_add_u32 v3, {NT*16}, v2
    s_lshr_b32 s17, s16, 1
    v_add_u32 v4, s17, v1
    v_lshlrev_b32 v5, 2, v0
    v_mov_b32 v6, 0
    v_lshrrev_b32 v28, 6, v0
    v_mov_b32 v29, 1
    v_readfirstlane_b32 s23, v28
    v_cmp_gt_u32 vcc, 256, v0
    s_and_saveexec_b64 s[18:19], vcc
    ds_write_b32 v5, v6 offset:{K1_HIST}
    s_mov_b64 exec, s[18:19]
    v_cmp_gt_u32 vcc, {NT}, v0
    s_and_b64 exec, exec, vcc
    s_mov_b64 s[20:21], exec
    s_mov_b32 s22, {-NB & 0xffffffff}
    s_waitcnt lgkmcnt(0)""")
    stamp1()
    LDP = 'nt' if 'ntld' in X else ''
    e(f"""    global_load_dwordx4 v[8:11], v2, s[6:7] {LDP}
    global_load_dwordx4 v[12:15], v3, s[6:7] {LDP}
    s_barrier
    global_load_dwordx4 v[80:83], v2, s[4:5] {LDP}
    global_load_dwordx4 v[84:87], v3, s[4:5] {LDP}
    v_lshrrev_b32 v4, 1, v2
    v_lshrrev_b32 v7, 1, v3
    global_load_dwordx2 v[88:89], v4, s[14:15] {LDP}
    global_load_dwordx2 v[90:91], v7, s[14:15] {LDP}""")
    PF1 = 0
    def prefetch():
        c("light prefetch: every row of x is touched once (brings it into the memory-side cache)")
        e(f"""    s_mul_i32 s17, s2, 100
    v_add_u32 v6, s17, v0
    v_lshlrev_b32 v7, 7, v6
    v_cmp_gt_u32 vcc, 100, v0
    s_and_b64 exec, exec, vcc
    global_load_dword v62, v7, s[12:13]
    s_mov_b64 exec, s[20:21]""")
        if 'nocodepf' not in X:
            c("bring the second kernel's code into the caches (read as data)")
            e(f"""    s_cmp_ge_u32 s2, 16
    s_cbranch_scc1 K1_NOCPF
    s_getpc_b64 s[26:27]
K1_CPF:
    s_add_u32 s26, s26, k2_kernel-K1_CPF
    s_addc_u32 s27, s27, 0
    v_lshlrev_b32 v60, 7, v0
    v_cmp_gt_u32 vcc, (K2_CODE_END-k2_kernel+127)/128, v0
    s_and_b64 exec, exec, vcc
    s_cbranch_execz K1_CPF_SKIP
    global_load_dword v63, v60, s[26:27]
K1_CPF_SKIP:
    s_mov_b64 exec, s[20:21]
K1_NOCPF:""")
    e("    s_waitcnt vmcnt(5)")
    stamp1()
    def binops(k):
        d = 8 + k
        e(f"""    v_mul_u32_u24 v{32+k}, 42800, v{d}
    v_lshrrev_b32 v{32+k}, 22, v{32+k}
    v_mad_i32_i24 v{40+k}, v{32+k}, s22, v{d}
    v_lshlrev_b32 v{32+k}, 2, v{32+k}""")
    for k in range(4): binops(k)
    for k in range(4): e(f"    ds_add_rtn_u32 v{48+k}, v{32+k}, v29 offset:{K1_HIST}")
    e(f"    s_waitcnt vmcnt({4+PF1})")
    for k in range(4, 8): binops(k)
    for k in range(4, 8): e(f"    ds_add_rtn_u32 v{48+k}, v{32+k}, v29 offset:{K1_HIST}")
    e("    s_waitcnt lgkmcnt(0)")
    stamp1()
    e("""    s_barrier
    s_mov_b64 exec, -1
    v_and_b32 v30, 63, v0
    v_lshlrev_b32 v31, 4, v30""")
    e(f"""    ds_read_b128 v[8:11], v31 offset:{K1_HIST}
    s_waitcnt lgkmcnt(0)
    v_add_u32 v12, v8, v9
    v_add_u32 v13, v12, v10
    v_add_u32 v14, v13, v11
    v_mov_b32 v15, v14""")
    dpp_scan("v15")
    e(f"""    v_sub_u32 v16, v15, v14
    v_add_u32 v17, v16, v8
    v_add_u32 v18, v16, v12
    v_add_u32 v19, v16, v13
    ds_write_b128 v31, v[16:19] offset:{K1_OFFS}
    v_lshl_or_b32 v20, v17, 16, v16
    v_lshl_or_b32 v21, v18, 16, v17
    v_lshl_or_b32 v22, v19, 16, v18
    v_lshl_or_b32 v23, v15, 16, v19
    s_lshl_b32 s24, s2, 10
    s_add_u32 s24, s24, {WS_TAB}
    v_add_u32 v24, s24, v31
    s_waitcnt lgkmcnt(0)""")
    stamp1()
    e("    s_mov_b64 exec, s[20:21]")
    for k in range(8):
        e(f"    ds_read_b32 v{8+k}, v{32+k} offset:{K1_OFFS}")
    e("    s_waitcnt vmcnt(0)")
    e(f"""    s_cmp_lg_u32 s23, 0
    s_cbranch_scc1 K1_NOTAB2
    s_mov_b64 exec, -1
    global_store_dwordx4 v24, v[20:23], s[10:11] {STP}
    s_mov_b64 exec, s[20:21]
K1_NOTAB2:""")
    if 'nopf1' not in X: prefetch()
    for k in range(8):
        e(f"""    v_lshlrev_b32 v{64+2*k}, 7, v{80+k}
    v_lshl_or_b32 v{64+2*k}, v{40+k}, 24, v{64+2*k}""")
    for k in range(8):
        src = 88 + k//2
        e(f"    v_and_b32 v{65+2*k}, 0xffff, v{src}" if k % 2 == 0 else f"    v_lshrrev_b32 v{65+2*k}, 16, v{src}")
    e("    s_waitcnt lgkmcnt(0)")
    for k in range(8):
        e(f"    v_add_lshl_u32 v{8+k}, v{8+k}, v{48+k}, 3")
    for k in range(8):
        e(f"    ds_write_b64 v{8+k}, v[{64+2*k}:{65+2*k}] offset:{K1_STAGE}")
    e("    s_waitcnt lgkmcnt(0)")
    stamp1()
    e("    s_barrier")
    for k in range(4):
        e(f"    ds_read_b128 v[{8+4*k}:{11+4*k}], v1 offset:{K1_STAGE+6400*k}")
    e(f"""    s_mul_i32 s24, s2, {CH*8}
    v_add_u32 v24, s24, v1""")
    for k in range(1, 4):
        e(f"    v_add_u32 v{24+k}, {6400*k}, v24")
    for k in range(4):
        e(f"    s_waitcnt lgkmcnt({3-k})\n    global_store_dwordx4 v{24+k}, v[{8+4*k}:{11+4*k}], s[10:11] {STP}")
    stamp1()
    if DBG:
        e("    s_waitcnt vmcnt(0)")
        stamp1()
        e("    s_memrealtime s[34:35]\n    s_waitcnt lgkmcnt(0)\n    v_writelane_b32 v61, s34, 15")
        e(f"""    s_lshl_b32 s3, s2, 4
    s_add_u32 s3, s3, s23
    s_lshl_b32 s3, s3, 6
    s_add_u32 s3, s3, {WS_DBG}
    s_mov_b64 exec, 0xffff
    v_and_b32 v2, 63, v0
    v_lshlrev_b32 v2, 2, v2
    v_add_u32 v2, s3, v2
    global_store_dword v2, v61, s[10:11]""")
    e("    s_endpgm")
    e(f"""K1_PREP:
    s_sub_u32 s16, s2, {NCH}
    s_and_b32 s30, s16, 1
    s_lshr_b32 s16, s16, 1
    s_mov_b32 s26, 1.0
    s_cmp_eq_u32 s16, 0
    s_cbranch_scc1 K1_P0
    s_cmp_eq_u32 s16, 1
    s_cbranch_scc1 K1_P1
    s_cmp_eq_u32 s16, 2
    s_cbranch_scc1 K1_P2
    s_load_dwordx2 s[24:25], s[0:1], 56
    s_branch K1_PJ
K1_P0:
    s_load_dwordx2 s[24:25], s[0:1], 40
    s_mov_b32 s26, {NEG_LOG2E:#x}
    s_branch K1_PJ
K1_P1:
    s_load_dwordx2 s[24:25], s[0:1], 64
    s_branch K1_PJ
K1_P2:
    s_load_dwordx2 s[24:25], s[0:1], 32
    s_mov_b32 s26, {NEG_LOG2E:#x}
K1_PJ:
    s_load_dwordx2 s[28:29], s[0:1], 48
    s_lshl_b32 s31, s30, 8
    v_add_u32 v9, s31, v0
    v_and_b32 v1, 63, v9
    v_lshrrev_b32 v2, 6, v9
    v_and_b32 v3, 31, v1
    v_lshrrev_b32 v4, 5, v1
    v_lshrrev_b32 v5, 1, v2
    v_and_b32 v6, 1, v2
    v_lshlrev_b32 v7, 11, v5
    v_lshl_add_u32 v7, v4, 10, v7
    v_lshl_add_u32 v7, v6, 6, v7
    v_lshl_add_u32 v7, v3, 1, v7
    s_lshl_b32 s17, s16, 13
    s_add_u32 s17, s17, {WS_W}
    v_lshlrev_b32 v8, 4, v9
    v_add_u32 v8, s17, v8
    s_waitcnt lgkmcnt(0)
    v_cmp_gt_u32 vcc, 256, v0
    s_and_saveexec_b64 s[18:19], vcc
    s_cbranch_execz K1_PWC""")
    for j in range(8):
        e(f"    global_load_ushort v{10+j}, v7, s[24:25] offset:{128*j}")
    e("    s_waitcnt vmcnt(0)")
    for j in range(8):
        e(f"""    v_lshlrev_b32 v{10+j}, 16, v{10+j}
    v_mul_f32 v{10+j}, s26, v{10+j}""")
    for j in range(4):
        e(f"    v_cvt_pk_bf16_f32 v{20+j}, v{10+2*j}, v{11+2*j}")
    e(f"""    global_store_dwordx4 v8, v[20:23], s[10:11]
K1_PWC:
    s_mov_b64 exec, s[18:19]
    s_or_b32 s17, s16, s30
    s_cmp_lg_u32 s17, 0
    s_cbranch_scc1 K1_END
    v_subrev_u32 v9, 256, v0
    v_and_b32 v3, 31, v9
    v_bfe_u32 v4, v9, 5, 1
    v_cmp_gt_u32 vcc, 128, v9
    s_and_saveexec_b64 s[18:19], vcc
    s_cbranch_execz K1_END
    v_lshrrev_b32 v6, 6, v9
    v_lshlrev_b32 v7, 6, v6
    v_lshl_add_u32 v7, v3, 1, v7
    global_load_ushort v10, v7, s[28:29]
    v_lshlrev_b32 v8, 2, v9
    v_add_u32 v8, {WS_W+32768}, v8
    v_mov_b32 v12, {BIG:#x}
    s_waitcnt vmcnt(0)
    v_lshlrev_b32 v10, 16, v10
    v_mul_f32 v10, {NEG_LOG2E:#x}, v10
    v_cvt_pk_bf16_f32 v11, v10, v12
    v_cmp_eq_u32 vcc, 0, v4
    s_nop 1
    v_cndmask_b32 v11, 0, v11, vcc
    global_store_dword v8, v11, s[10:11]
K1_END:
    s_endpgm""")

S_X, S_WS, S_OUT = "s[4:5]", "s[6:7]", "s[8:9]"
SRD_X, SRD_XB, SRD_OUT, SRD_WS = "s[12:15]", "s[16:19]", "s[20:23]", "s[24:27]"
sB, sWV, sT, sCNT, sN0, sNL = "s28", "s29", "s30", "s31", "s33", "s34"
s4T, sG, sRND, sMORE, sKM = "s35", "s36", "s37", "s38", "s39"
sMSK22, sMSKA, sM0B = "s45", "s46", "s47"
sLA, sLB, sDD, sCAP = "s40", "s41", "s42", "s43"
sRHO, sFB = "s50", "s51"
sMASK = 56

GA, HA, GB, HB = 64, 80, 96, 112
ACC = {'A': 56, 'B': 58}
vXR = [2, 3, 4, 5]
vSRC_RD, vEW_RD, vGA_RD, vGF_RD = 6, 7, 8, 9
vCHA, vCHB, vAFC, vN4 = 10, 11, 12, 13
vN, vH = 14, 15
vGF = [16, 20]
vSRC = 24
vGA, vAFA = 28, 29
vLEN, vBASE = (30, 31), (32, 33)
vXP = 34
vGK = [40, 44]
vUT = 48
aWB, aWV, aAFA, aAFB, aO, aU = 0, 32, 80, 84, 88, 96
aX = [64, 112]

INLOOP = [False]
def mfma(d, a, b, cc):
    if 'nomfma' in X and INLOOP[0]: return "    s_nop 0"
    return f"    v_mfma_f32_32x32x16_bf16 {d}, {a}, {b}, {cc}"
def vr(b, n): return f"v[{b}:{b+n-1}]"
def ar(b, n): return f"a[{b}:{b+n-1}]"

def mfma_group(fb, xb):
    G, H = (GA, HA) if fb == 'A' else (GB, HB)
    f = 0 if fb == 'A' else 1
    af = aAFA if fb == 'A' else aAFB
    out = [mfma(vr(G, 16), ar(aO, 4), ar(af, 4), "0")]
    gs_ = [mfma(vr(G, 16), ar(aX[xb] + 4*s, 4), ar(aWB + (s*2+f)*4, 4), vr(G, 16)) for s in range(4)]
    hs_ = [mfma(vr(H, 16), ar(aX[xb] + 4*s, 4), ar(aWV + (s*2+f)*4, 4), "0" if s == 0 else vr(H, 16)) for s in range(4)]
    if 'swapop' in X:
        gs_ = gs_
    if 'share' in X:
        for s in range(4): out += [gs_[s], hs_[s]]
    else:
        out += gs_ + hs_
    return out

def dma_issue():
    grp = []
    for k in range(4):
        ch = vCHA if k % 2 == 0 else vCHB
        g = [f"    v_and_or_b32 v{vSRC+k}, v{vSRC+k}, {sMSK22}, v{ch}"]
        g.append(f"    s_mov_b32 m0, {sM0B}" if k == 0 else "    s_add_u32 m0, m0, 1024")
        g.append("    s_nop 0")
        if 'nodma' not in X: g.append(f"    buffer_load_dwordx4 v{vSRC+k}, {SRD_X}, 0 offen lds")
        grp.append(g)
    return grp

def src_reads(o1):
    return [f"    ds_read2_b32 v[{vSRC}:{vSRC+1}], v{vSRC_RD} offset0:{32*o1} offset1:{32*o1+8}",
            f"    ds_read2_b32 v[{vSRC+2}:{vSRC+3}], v{vSRC_RD} offset0:{32*o1+16} offset1:{32*o1+24}"]

def reads_next(xb, o1=0):
    o = []
    for s in range(4):
        o.append(f"    ds_read_b128 {ar(aX[xb]+4*s,4)}, v{vXR[s]}")
    o.append(f"    ds_read_b32 v{vGA}, v{vGA_RD} offset:{16*o1}")
    o += src_reads(o1)
    o.append(f"    ds_read_b32 a{aO+2}, v{vEW_RD} offset:{128*o1}")
    return o

def after_reads(npar, o1=0):
    return [f"    v_bitop3_b32 v{vAFA}, v{vGA}, {sMSKA}, v{vAFC} bitop3:0x6a",
            f"    ds_read_b64_tr_b16 {ar(aAFA,2)}, v{vAFA}",
            f"    ds_read_b64_tr_b16 {ar(aAFB,2)}, v{vAFA} offset:64",
            f"    ds_read_b128 {vr(vGF[npar],4)}, v{vGF_RD} offset:{16*o1}",
            f"    ds_read_b128 {vr(vGK[npar],4)}, v{vGF_RD} offset:{GKT-GFT+16*o1}"]
def gf_fix(npar):
    return [f"    v_add_u32 v{vGF[npar]+i}, v{vGF[npar]+i}, v{vN4}" for i in range(4)]
def gf_fix_pk(npar):
    assert vN4 % 2 == 1
    return [f"    v_pk_add_f32 v[{vGF[npar]+i}:{vGF[npar]+i+1}], v[{vGF[npar]+i}:{vGF[npar]+i+1}], v[{vN4-1}:{vN4}] op_sel:[0,1] op_sel_hi:[1,1]" for i in (0, 2)]
def advance_pk():
    assert (vSRC_RD, vEW_RD, vGA_RD, vGF_RD) == (6, 7, 8, 9)
    return ["    v_pk_add_f32 v[6:7], v[6:7], s[90:91] op_sel:[0,0] op_sel_hi:[1,0]",
            "    v_pk_add_f32 v[8:9], v[8:9], s[90:91] op_sel:[0,1] op_sel_hi:[1,1]"]

def advance_addrs(m):
    return [f"    v_add_u32 v{vEW_RD}, {128*m}, v{vEW_RD}", f"    v_add_u32 v{vSRC_RD}, {128*m}, v{vSRC_RD}",
            f"    v_add_u32 v{vGA_RD}, {16*m}, v{vGA_RD}", f"    v_add_u32 v{vGF_RD}, {16*m}, v{vGF_RD}"]

def phase(fb, par, mf, ex1, ex2, preburst=()):
    G, H = (GA, HA) if fb == 'A' else (GB, HB)
    d = ACC[fb]
    nov = 'novalu' in X
    def run(op, mfs, mpos, ex):
        k = 0
        for j in range(17):
            while k < len(mfs) and mpos[k] == j:
                e(mfs[k]); k += 1
            for x in ex.get(j, []): e(x)
            if j < 16: e(f"    {op} v{G+j}, v{G+j}" if not nov else "    s_nop 0")
        assert k == len(mfs)
    run("v_exp_f32", mf[0:5], [0, 3, 6, 9, 12], ex1)
    for j in range(0, 16, 2):
        e(f"    v_pk_add_f32 v[{G+j}:{G+j+1}], v[{G+j}:{G+j+1}], 1.0 op_sel_hi:[1,0]" if not nov else "    s_nop 0")
    run("v_rcp_f32", mf[5:9], [0, 3, 6, 9], ex2)
    for x in preburst: e(x)
    f = 0 if fb == 'A' else 1
    clump = 'noclump' not in X
    xs = [34, 36, 60, 62]
    prev = d
    wr = []
    for i in range(4):
        g = G + 4*i; h = H + 4*i; k = vGK[par] + i
        u = vUT + 4*(i & 1); t = u + 2
        x = xs[i] if clump else vXP + 2*(i & 1)
        dst = (x if i < 3 else d) if clump else d
        if not nov:
            e(f"    v_pk_mul_f32 v[{t}:{t+1}], v[{g}:{g+1}], v[{h}:{h+1}]")
            e(f"    v_pk_add_f32 v[{u}:{u+1}], v[{g}:{g+1}], v[{g+2}:{g+3}]")
            e(f"    v_pk_fma_f32 v[{t}:{t+1}], v[{g+2}:{g+3}], v[{h+2}:{h+3}], v[{t}:{t+1}]")
            e(f"    v_add_f32 v{x}, v{u}, v{u+1}")
            e(f"    v_add_f32 v{x+1}, v{t}, v{t+1}")
            e(f"    v_pk_fma_f32 v[{dst}:{dst+1}], v[{prev}:{prev+1}], v[{k & ~1}:{(k & ~1)+1}], v[{x}:{x+1}] op_sel:[0,{k&1},0] op_sel_hi:[1,{k&1},1]")
            w = f"    ds_write2_b32 v{vGF[par]+i}, v{dst}, v{dst+1} offset0:{f*32} offset1:{64+f*32}"
            if 'nowr' not in X:
                if clump: wr.append(w)
                else: e(w)
            prev = dst
    for w in wr: e(w)

def tile_body(par):
    npar = 1 - par
    dm = dma_issue()
    ex1 = {1: ["    s_waitcnt vmcnt(0)"] + reads_next(npar, par)}
    ex2 = {1: ["    s_waitcnt lgkmcnt(0)"] + after_reads(npar, par), 4: dm[0], 7: dm[1], 10: dm[2], 12: dm[3]}
    if 'nodmaclump' not in X:
        ex2 = {1: ["    s_waitcnt lgkmcnt(0)"] + after_reads(npar, par), 4: dm[0] + dm[1] + dm[2] + dm[3]}
    PKI = 'nopki' not in X
    pre = []
    if PKI:
        exB1 = {}
        pre = ["    s_waitcnt lgkmcnt(0)"] + gf_fix_pk(npar) + (advance_pk() if par == 1 else [])
    else:
        if par == 1: ex2[14] = advance_addrs(2)
        exB1 = {2: gf_fix(npar)}
    pa, pb = 3 - 2*par, 2 - 2*par
    if 'prioAB' in X: pa, pb = 1, 0
    if 'prioBA' in X: pa, pb = 0, 1
    if 'prio2' in X: pa, pb = (1, 1) if par == 0 else (0, 0)
    if 'noprio' not in X: e(f"    s_setprio {pa}")
    phase('A', par, mfma_group('B', par), ex1, ex2, pre)
    if 'noprio' not in X: e(f"    s_setprio {pb}")
    mA = mfma_group('A', npar)
    mA[0] = ("    s_waitcnt lgkmcnt(4)\n" if 'nowr' not in X and 'novalu' not in X else "    s_waitcnt lgkmcnt(0)\n") + mA[0]
    phase('B', par, mA, exB1, {})

vLANE = 1
vTAB = (16, 17)
vLR, vREM = (18, 19), (20, 21)
vREC = 64
vA = 96
vRK = 112
def slot_list(ks):
    for k in ks:
        for r in range(2):
            for p in range(2):
                yield k, r, p, (2*k+r)*2 + p
def msk(q): return f"s[{sMASK+2*q}:{sMASK+2*q+1}]"

def slot_pass(name, fns):
    for fn in fns:
        for sl in slot_list([0, 1]):
            e(fn(*sl))
    for k in (2, 3):
        e(f"    s_cmp_le_u32 {sKM}, {k}\n    s_cbranch_scc1 {name}_DONE")
        for fn in fns:
            for sl in slot_list([k]):
                e(fn(*sl))
    e(f"{name}_DONE:")

def seg_masks():
    c("per-round segment limits and slot masks")
    for r in range(2):
        e(f"    v_sub_u32 v{vREM[r]}, v{vLR[r]}, v22")
    for k, r, p, q in slot_list(range(4)):
        e(f"    v_cmp_lt_i32 {msk(q)}, {8*k+p}, v{vREM[r]}")
    q20, q21, q30, q31 = 8, 10, 12, 14
    e(f"""    s_mov_b32 {sKM}, 2
    s_or_b64 s[52:53], {msk(q20)}, {msk(q21)}
    s_cmp_lg_u64 s[52:53], 0
    s_cselect_b32 {sKM}, 3, {sKM}
    s_or_b64 s[52:53], {msk(q30)}, {msk(q31)}
    s_cmp_lg_u64 s[52:53], 0
    s_cselect_b32 {sKM}, 4, {sKM}""")

PFN = 2 if 'pf2' in X else 0
def gen_k2():
    e(".globl k2_kernel\n.p2align 8\n.type k2_kernel,@function\nk2_kernel:")
    if DBG and 'vstart' in X:
        e(f"    s_memrealtime s[94:95]")
    e(f"""    s_cmp_ge_u32 s2, {NBINS}
    s_cbranch_scc1 K2_END
    s_load_dwordx2 {S_WS}, s[0:1], 88
    s_load_dwordx2 {S_X}, s[0:1], 0
    s_load_dwordx2 {S_OUT}, s[0:1], 72
    s_and_b32 {sB}, s2, 7
    s_lshl_b32 {sB}, {sB}, 5
    s_lshr_b32 s3, s2, 3
    s_add_u32 {sB}, {sB}, s3
    s_mul_i32 {sN0}, {sB}, {NB}
    s_sub_u32 {sNL}, {N}, {sN0}
    s_min_u32 {sNL}, {sNL}, {NB}
    v_lshrrev_b32 v2, 6, v0
    v_and_b32 v{vLANE}, 63, v0
    v_readfirstlane_b32 {sWV}, v2
    s_mov_b32 {sMSK22}, 0x3fffff
    s_mov_b32 {sMSKA}, 0x3fb8
    s_mov_b32 {sRND}, 0
    s_lshl_b32 s3, {sN0}, 7
    s_lshl_b32 s49, {sNL}, 7
    v_lshrrev_b32 v2, 2, v0
    v_lshlrev_b32 v3, 10, v2
    s_lshl_b32 s48, {sB}, 2
    s_add_u32 s48, s48, {WS_TAB}
    v_add_u32 v3, s48, v3
    v_add_u32 v4, {128*1024}, v3
    s_waitcnt lgkmcnt(0)
    s_mov_b32 s24, s6
    s_mov_b32 s25, s7
    s_mov_b32 s26, {WS_SIZE}
    s_mov_b32 s27, 0x00020000
    buffer_load_dword v{vTAB[0]}, v3, {SRD_WS}, 0 offen
    buffer_load_dword v{vTAB[1]}, v4, {SRD_WS}, 0 offen
    s_mov_b32 s12, s4
    s_mov_b32 s13, s5
    s_mov_b32 s14, {N*128}
    s_mov_b32 s15, 0x00020000
    s_add_u32 s16, s4, s3
    s_addc_u32 s17, s5, 0
    s_mov_b32 s18, s49
    s_mov_b32 s19, 0x00020000
    s_add_u32 s20, s8, s3
    s_addc_u32 s21, s9, 0
    s_mov_b32 s22, s49
    s_mov_b32 s23, 0x00020000""")
    stamp()
    if DBG and 'fine' not in X and 'fine3' not in X: e(f"    s_memrealtime s[98:99]\n    s_waitcnt lgkmcnt(0)\n    v_writelane_b32 v{vDBG}, s98, 14")
    if DBG and 'vstart' in X: e(f"    v_writelane_b32 v{vDBG}, s94, 13")
    if 'nobar0' not in X: e("    s_barrier")
    c("lane constants")
    e(f"""    s_lshr_b32 {sRHO}, {sWV}, 1
    s_and_b32 {sFB}, {sWV}, 1
    v_and_b32 v{vN}, 31, v{vLANE}
    v_lshrrev_b32 v{vH}, 5, v{vLANE}
    v_lshrrev_b32 v22, 4, v{vLANE}
    v_and_b32 v{vCHB}, 7, v{vLANE}
    v_xor_b32 v{vCHA}, v22, v{vCHB}
    v_lshlrev_b32 v{vCHA}, 4, v{vCHA}
    v_xor_b32 v{vCHB}, 64, v{vCHA}""")
    c("W fragments -> LDS (XST area), 4KB per wave")
    e(f"""    s_lshl_b32 s3, {sWV}, 12
    s_add_u32 {sM0B}, s3, {XST}
    s_add_u32 s48, s3, {ROWS}
    s_mov_b32 m0, s48
    v_lshlrev_b32 v3, 4, v{vLANE}
    s_add_u32 s3, s3, {WS_W}
    v_add_u32 v3, s3, v3""")
    for k in range(4):
        e(f"    buffer_load_dwordx4 v3, {SRD_WS}, 0 offen offset:{1024*k} lds")
    c("x_bin rows 16w..16w+15 -> LDS (swizzled)")
    e(f"""    s_lshl_b32 s3, {sWV}, 11
    s_add_u32 s48, s3, {XBS}
    s_mov_b32 m0, s48
    v_lshrrev_b32 v22, 3, v{vLANE}
    v_lshlrev_b32 v22, 7, v22
    v_add_u32 v22, s3, v22
    v_add_u32 v3, v22, v{vCHA}
    v_add_u32 v4, v22, v{vCHB}
    v_add_u32 v4, 1024, v4
    buffer_load_dwordx4 v3, {SRD_XB}, 0 offen lds
    s_add_u32 m0, m0, 1024
    v_lshlrev_b32 v7, 2, v{vLANE}
    buffer_load_dwordx4 v4, {SRD_XB}, 0 offen lds""")
    c("wc words")
    e(f"""    v_add_u32 v7, {WS_W+32768}, v7
    buffer_load_dword a{aAFA+2}, v7, {SRD_WS}, 0 offen
    buffer_load_dword a{aAFB+2}, v7, {SRD_WS}, 0 offen offset:256""")
    e(f"""    v_bfe_u32 v22, v{vN}, 1, 3
    v_xor_b32 v22, v22, v{vH}
    v_lshlrev_b32 v22, 4, v22
    v_lshl_add_u32 v22, v{vN}, 7, v22
    v_add_u32 v{vXR[0]}, {sM0B}, v22""")
    for s in range(1, 4):
        e(f"    v_xor_b32 v{vXR[s]}, {32*s}, v{vXR[0]}")
    e(f"""    v_bfe_u32 v22, v{vLANE}, 4, 1
    v_and_b32 v{vAFC}, 3, v{vLANE}
    v_lshlrev_b32 v{vAFC}, 3, v{vAFC}
    v_lshl_add_u32 v{vAFC}, v22, 5, v{vAFC}
    v_lshlrev_b32 v{vN4}, 2, v{vN}""")
    e(f"""    v_lshrrev_b32 v40, 3, v{vN}
    v_bfe_u32 v41, v{vN}, 2, 1
    v_cmp_eq_u32 vcc, v41, v{vH}
    v_mov_b32 v42, 0x3f80
    v_and_b32 v43, 1, v40
    v_cndmask_b32 v42, 0, v42, vcc
    v_lshlrev_b32 v43, 4, v43
    v_lshlrev_b32 v42, v43, v42
    v_cmp_gt_u32 vcc, 2, v40
    v_mov_b32 v45, 0
    s_nop 0
    v_cndmask_b32 v43, 0, v42, vcc
    v_cndmask_b32 v44, v42, 0, vcc
    v_accvgpr_write_b32 a{aO}, v43
    v_accvgpr_write_b32 a{aO+1}, v44
    v_accvgpr_write_b32 a{aO+3}, v45
    v_accvgpr_write_b32 a{aAFA+3}, v45
    v_accvgpr_write_b32 a{aAFB+3}, v45""")
    e("K2_ROUND_INIT:")
    c("LDS init: cnt = 0, headn = -1, flag = 0")
    e(f"""    v_lshlrev_b32 v40, 2, v0
    v_mov_b32 v41, 0
    v_cmp_gt_u32 vcc, 192, v0
    s_and_saveexec_b64 s[52:53], vcc
    ds_write_b32 v40, v41 offset:{CNT}
    v_cmp_gt_u32 vcc, 18, v0
    s_and_b64 exec, exec, vcc
    v_cmp_gt_u32 vcc, 16, v0
    v_mov_b32 v42, -1
    s_nop 0
    v_cndmask_b32 v42, 0, v42, vcc
    ds_write_b32 v40, v42 offset:{HEADN}
    s_mov_b64 exec, s[52:53]
    v_and_b32 v22, 3, v0
    v_lshlrev_b32 v22, 1, v22""")
    assert FLAG == HEADN + 64
    e(f"""    s_cmp_lg_u32 {sRND}, 0
    s_cbranch_scc1 K2_ROUND_N""")
    c("segment descriptors: segment r of this thread = (tid>>2) + 128 r ; c = tid&3")
    e(f"""    v_lshrrev_b32 v40, 2, v0
    v_add_u32 v41, 128, v40
    v_cmp_gt_u32 vcc, {NCH}, v41
    v_mul_u32_u24 v40, {CH}, v40
    v_mul_u32_u24 v41, {CH}, v41
    v_add_u32 v40, v40, v22
    v_add_u32 v41, v41, v22
    s_waitcnt vmcnt({8 if 'ordold' not in X else 0})
    v_and_b32 v42, 0xffff, v{vTAB[0]}
    v_lshrrev_b32 v43, 16, v{vTAB[0]}
    v_and_b32 v44, 0xffff, v{vTAB[1]}
    v_lshrrev_b32 v45, 16, v{vTAB[1]}
    v_sub_u32 v{vLEN[0]}, v43, v42
    v_sub_u32 v{vLEN[1]}, v45, v44
    v_add_lshl_u32 v{vBASE[0]}, v40, v42, 3
    v_add_lshl_u32 v{vBASE[1]}, v41, v44, 3
    v_cndmask_b32 v{vLEN[1]}, 0, v{vLEN[1]}, vcc
K2_ROUND_N:
    v_min_u32 v{vLR[0]}, 32, v{vLEN[0]}
    v_min_u32 v{vLR[1]}, 32, v{vLEN[1]}""")
    seg_masks()
    stamp()
    def rec_loads():
        c("record loads")
        for k in range(4):
            for r in range(2):
                q = (2*k+r)*2
                e(f"    s_mov_b64 exec, {msk(q)}")
                e(f"    buffer_load_dwordx4 {vr(vREC+(2*k+r)*4,4)}, v{vBASE[r]}, {SRD_WS}, 0 offen offset:{64*k}")
        e("    s_mov_b64 exec, -1")
        if 'fine2' in X: stamp_at(12)
    def w_stuff():
        c("x_bin A fragments, Wa'/Wu fragments")
        e(f"""    s_lshl_b32 s3, {sRHO}, 12
    s_add_u32 s3, s3, {XBS}
    s_sub_u32 s3, s3, {sM0B}""")
        for s in range(4):
            e(f"    v_add_u32 v{60+s}, s3, v{vXR[s]}")
        e(f"""    v_lshlrev_b32 v22, 4, v{vLANE}
    s_lshl_b32 s3, {sFB}, 10
    s_add_u32 s3, s3, {ROWS}
    v_add_u32 v23, s3, v22""")
        for s in range(4):
            e(f"    ds_read_b128 {vr(40+4*s,4)}, v{60+s}")
        for s in range(4):
            e(f"    ds_read_b128 {ar(112+4*s,4)}, v23 offset:{16384+2048*s}")
        for s in range(4):
            e(f"    ds_read_b128 {ar(64+4*s,4)}, v23 offset:{24576+2048*s}")
        c("A' address: node = 32rho+n, 8-byte unit (2i+h) ^ (node&7)")
        e(f"""    s_lshl_b32 s3, {sRHO}, 12
    s_lshl_b32 s49, {sFB}, 6
    s_add_u32 s3, s3, s49
    v_and_b32 v22, 7, v{vN}
    v_xor_b32 v22, v22, v{vH}
    v_lshlrev_b32 v22, 3, v22
    v_lshl_add_u32 v22, v{vN}, 7, v22
    v_add_u32 v60, s3, v22
    v_xor_b32 v61, 16, v60
    v_xor_b32 v62, 32, v60
    v_xor_b32 v63, 48, v60
    s_waitcnt lgkmcnt(4)""")
        for s in range(4):
            e(mfma(vr(vA,16), ar(112+4*s,4), vr(40+4*s,4), "0" if s == 0 else vr(vA,16)))
        e("    s_waitcnt lgkmcnt(0)")
        for s in range(4):
            e(mfma(ar(aU,16), ar(64+4*s,4), vr(40+4*s,4), "0" if s == 0 else ar(aU,16)))
        e("    s_nop 7")
        for r in range(0, 16, 2):
            e(f"    v_cvt_pk_bf16_f32 v{48+r//2}, v{vA+r}, v{vA+r+1}")
        for i in range(4):
            e(f"    ds_write_b64 v{60+i}, v[{48+2*i}:{49+2*i}] offset:{A_OFF}")
    e(f"""    s_cmp_lg_u32 {sRND}, 0
    s_cbranch_scc1 K2_LATER""")
    if 'ordold' in X:
        c("all early loads (table, W, x_bin, wc) have landed: vmcnt(0) above")
        e("    s_waitcnt lgkmcnt(0)\n    s_barrier")
        stamp()
        e(f"    s_cmp_ge_u32 {sWV}, 4\n    s_cbranch_scc1 K2_ORD_B")
        rec_loads()
        w_stuff()
        e("    s_branch K2_COUNT0")
        e("K2_ORD_B:")
        w_stuff()
        rec_loads()
        e("    s_branch K2_COUNT0")
    else:
        rec_loads()
        c("W / x_bin / wc loads are older than the 8 record loads")
        e("    s_waitcnt vmcnt(8) lgkmcnt(0)\n    s_barrier")
        stamp()
        w_stuff()
        e("    s_branch K2_COUNT0")
    e("K2_LATER:")
    rec_loads()
    e("K2_SKIPW:")
    e("    s_waitcnt vmcnt(0) lgkmcnt(0)\n    s_barrier")
    e("K2_COUNT0:")
    stamp()
    e("K2_COUNT:")
    c("counting pass (records arrive in k order)")
    e("    v_mov_b32 v40, 1")
    cfn = [lambda k, r, p, q: f"    v_lshrrev_b32 v{vA+q}, 22, v{vREC+(2*k+r)*4+2*p}",
           lambda k, r, p, q: f"    s_mov_b64 exec, {msk(q)}\n    ds_add_rtn_u32 v{vRK+q}, v{vA+q}, v40 offset:{CNT}",
           lambda k, r, p, q: "    s_mov_b64 exec, -1" if q % 4 == 3 else ""]
    for k in range(4):
        if k >= 2: e(f"    s_cmp_le_u32 {sKM}, {k}\n    s_cbranch_scc1 K2_CNT_DONE")
        e(f"    s_waitcnt vmcnt({PFN + 6 - 2*k})")
        if 'fine2' in X and k < 2: stamp_at(13 + k)
        for fn in cfn:
            for sl in slot_list([k]): e(fn(*sl))
    e("K2_CNT_DONE:")
    e("    s_mov_b64 exec, -1\n    s_waitcnt lgkmcnt(0)\n    s_barrier")
    stamp()
    c("scan over nodes (every wave redundantly)")
    e(f"""    v_lshlrev_b32 v40, 3, v{vLANE}
    ds_read_b64 v[42:43], v40 offset:{CNT}
    s_waitcnt lgkmcnt(0)
    v_add_u32 v44, 3, v42
    v_add_u32 v45, 3, v43
    v_lshrrev_b32 v44, 2, v44
    v_lshrrev_b32 v45, 2, v45
    v_add_u32 v46, v44, v45
    v_mov_b32 v47, v46""")
    dpp_scan("v47")
    e(f"""    v_sub_u32 v48, v47, v46
    v_add_u32 v49, v48, v44
    v_readlane_b32 {sG}, v47, 63
    v_lshlrev_b32 v50, 5, v48
    v_lshlrev_b32 v51, 5, v49
    v_add_u32 v50, {RECS}, v50
    v_add_u32 v51, {RECS}, v51
    s_cmp_le_u32 {sG}, {GMAX}
    s_cbranch_scc1 K2_FITS""")
    c("overflow: redo this round with 12 records per segment")
    e(f"""    s_barrier
    v_lshlrev_b32 v40, 2, v0
    v_mov_b32 v41, 0
    v_cmp_gt_u32 vcc, 192, v0
    s_and_saveexec_b64 s[52:53], vcc
    ds_write_b32 v40, v41 offset:{CNT}
    s_mov_b64 exec, s[52:53]
    v_min_u32 v{vLR[0]}, 12, v{vLEN[0]}
    v_min_u32 v{vLR[1]}, 12, v{vLEN[1]}
    v_and_b32 v22, 3, v0
    v_lshlrev_b32 v22, 1, v22""")
    seg_masks()
    e(f"""    s_waitcnt lgkmcnt(0)
    s_barrier
    s_branch K2_COUNT
K2_FITS:
    ds_write_b64 v40, v[48:49] offset:{GS}
    ds_write_b64 v40, v[50:51] offset:{GSA}
    s_add_u32 s3, {sG}, 31
    s_lshr_b32 s3, s3, 5
    s_max_u32 s3, s3, 2
    s_add_u32 {sLA}, s3, 1
    s_lshr_b32 {sLA}, {sLA}, 1
    s_lshr_b32 {sLB}, s3, 1
    s_cmp_lt_u32 {sWV}, 4
    s_cselect_b32 {sT}, {sLA}, {sLB}
    s_lshl_b32 {sLA}, {sLA}, 2
    s_lshl_b32 {sLB}, {sLB}, 2
    s_sub_u32 {sDD}, {sLA}, {sLB}
    s_lshl_b32 {sDD}, {sDD}, 3
    s_lshl_b32 {sCAP}, s3, 5
    v_cvt_f32_u32 v52, {sLA}
    v_cvt_f32_u32 v34, {sLB}
    v_rcp_f32 v52, v52
    v_rcp_f32 v34, v34
    s_lshl_b32 s3, {sLA}, 3
    v_cvt_f32_u32 v35, s3
    v_sub_f32 v35, 0.5, v35
    v_mov_b32 v36, 0x41000000
    v_fma_f32 v35, v35, v34, v36
    v_lshrrev_b32 v54, 2, v0
    v_lshlrev_b32 v40, 2, v54
    v_mul_f32 v53, 0.5, v52
    s_waitcnt lgkmcnt(0)""")
    if 'fine' in X: stamp()
    c("node data + scatter lookups")
    e(f"""    ds_read_b32 v42, v40 offset:{GS}
    ds_read_b32 v43, v40 offset:{GS+4}
    ds_read_b32 v44, v40 offset:{CNT}""")
    slot_pass("K2_S1", [lambda k, r, p, q: f"    s_mov_b64 exec, {msk(q)}\n    ds_read_b32 v{vA+q}, v{vA+q} offset:{GSA}"])
    e("    s_mov_b64 exec, -1")
    c("more-records flag")
    e(f"""    v_cmp_gt_u32 vcc, v{vLEN[0]}, v{vLR[0]}
    v_cmp_gt_u32 s[52:53], v{vLEN[1]}, v{vLR[1]}
    v_and_b32 v45, 3, v0
    s_nop 0
    s_or_b64 vcc, vcc, s[52:53]
    s_and_saveexec_b64 s[52:53], vcc
    v_mov_b32 v46, 1
    v_mov_b32 v47, {FLAG}
    ds_write_b32 v47, v46
    s_mov_b64 exec, s[52:53]""")
    if 'fine' in X: stamp()
    c("node jobs: thread (nu = tid>>2, q = tid&3)")
    e(f"""    v_cmp_gt_u32 vcc, {NB}, v54
    s_and_b64 exec, exec, vcc
    s_cbranch_execz K2_NODE_DONE
    v_lshlrev_b32 v46, 7, v54
    v_and_b32 v47, 7, v54
    v_lshl_or_b32 v46, v47, 3, v46
    v_mul_u32_u24 v47, {RS}, v54
    v_add_u32 v47, {ROWS}, v47
    s_mov_b64 s[54:55], exec
    s_waitcnt lgkmcnt(0)
    v_sub_u32 v43, v43, v42""")
    c("empty nodes: raise a flag, their rows are zeroed after the W fragments have been read")
    e(f"""    v_cmp_eq_u32 vcc, 0, v44
    s_and_b64 exec, exec, vcc
    v_mov_b32 v48, 1
    v_mov_b32 v49, {FLAG+4}
    ds_write_b32 v49, v48
    s_mov_b64 exec, s[54:55]""")
    c("pad slots in the last group")
    e(f"""    v_add_u32 v48, v44, v45
    v_lshlrev_b32 v49, 2, v43
    v_cmp_lt_u32 vcc, v48, v49
    v_lshlrev_b32 v49, 5, v42
    v_lshl_add_u32 v49, v48, 3, v49
    v_mov_b32 v50, 0
    v_mov_b32 v51, 0x3f800000
    s_and_b64 exec, exec, vcc
    ds_write_b64 v49, v[50:51] offset:{RECS}
    s_mov_b64 exec, s[54:55]""")
    c("stream of first / last group")
    e(f"""    v_add_u32 v48, v42, v43
    v_max_u32 v49, 1, v43
    v_add_u32 v49, v42, v49
    v_subrev_u32 v49, 1, v49
    s_lshl_b32 s3, {sLA}, 3
    v_cvt_f32_u32 v50, v42
    v_cvt_f32_u32 v51, v49
    v_fma_f32 v55, v50, v34, v35
    v_fma_f32 v56, v51, v34, v35
    v_fma_f32 v50, v50, v52, v53
    v_fma_f32 v51, v51, v52, v53
    v_cmp_gt_u32 vcc, s3, v42
    v_cmp_gt_u32 s[52:53], s3, v49
    v_cvt_u32_f32 v55, v55
    v_cvt_u32_f32 v56, v56
    v_cvt_u32_f32 v50, v50
    v_cvt_u32_f32 v51, v51
    v_cndmask_b32 v50, v55, v50, vcc
    v_cndmask_b32 v51, v56, v51, s[52:53]
    v_add_u32 v55, 1, v50
    v_mul_u32_u24 v56, {sLA}, v55
    v_mul_u32_u24 v57, {sLB}, v55
    v_add_u32 v57, {sDD}, v57
    v_min_u32 v56, v56, v57
    v_mul_u32_u24 v57, {RS}, v55
    v_add_u32 v57, {HEADS}, v57
    v_cmp_lt_u32 vcc, v50, v51
    v_lshlrev_b32 v58, 2, v55
    s_and_b64 exec, exec, vcc
    ds_write_b32 v58, v54 offset:{HEADN}
    s_mov_b64 exec, s[54:55]""")
    c("groups q, q+4, q+8, q+12 (fast path)")
    e(f"""    v_add_u32 v59, v42, v45
    v_mov_b32 v60, 1.0
    v_mov_b32 v61, 0""")
    for m in range(4):
        e(f"""    v_cmp_lt_u32 vcc, v59, v48
    s_and_b64 exec, exec, vcc
    v_cmp_ge_u32 vcc, v59, v56
    v_cmp_eq_u32 s[52:53], v59, v56
    v_cmp_eq_u32 s[88:89], v59, v42
    v_lshlrev_b32 v62, 2, v59
    v_cndmask_b32 v63, v47, v57, vcc
    s_or_b64 s[52:53], s[52:53], s[88:89]
    ds_write2st64_b32 v62, v46, v63 offset0:{GAT//256} offset1:{GFT//256}
    v_cndmask_b32 v63, v60, v61, s[52:53]
    v_add_u32 v59, 4, v59
    ds_write_b32 v62, v63 offset:{GKT}""")
    c("rare: more than 16 groups, or a node spanning more than two streams")
    e(f"""    s_mov_b64 exec, s[54:55]
    v_cmp_lt_u32 vcc, 16, v43
    v_add_u32 v59, 1, v50
    v_cmp_lt_u32 s[52:53], v59, v51
    s_nop 1
    s_or_b64 vcc, vcc, s[52:53]
    s_cbranch_vccz K2_NODE_DONE
    v_add_lshl_u32 v58, v42, v45, 2
    v_cmp_eq_u32 vcc, 0, v45
    v_mov_b32 v49, v45
    v_mov_b32 v55, 1.0
    v_mov_b32 v59, 0
    v_cndmask_b32 v56, 1.0, v59, vcc
K2_BULK:
    v_cmp_lt_u32 vcc, v49, v43
    s_and_b64 exec, exec, vcc
    s_cbranch_execz K2_BULK_DONE
    ds_write2st64_b32 v58, v46, v47 offset0:{GAT//256} offset1:{GFT//256}
    ds_write_b32 v58, v56 offset:{GKT}
    v_mov_b32 v56, v55
    v_add_u32 v58, 16, v58
    v_add_u32 v49, 4, v49
    s_branch K2_BULK
K2_BULK_DONE:
    s_mov_b64 exec, s[54:55]
    v_cmp_lt_u32 vcc, 0, v43
    s_and_b64 exec, exec, vcc
    s_cbranch_execz K2_NODE_DONE
K2_BND:
    v_cmp_lt_u32 vcc, v50, v51
    s_and_b64 exec, exec, vcc
    s_cbranch_execz K2_NODE_DONE
    v_add_u32 v50, 1, v50
    v_mul_u32_u24 v55, {sLA}, v50
    v_mul_u32_u24 v56, {sLB}, v50
    v_add_u32 v56, {sDD}, v56
    v_min_u32 v55, v55, v56
    v_add_u32 v61, 1, v50
    v_mul_u32_u24 v60, {sLA}, v61
    v_mul_u32_u24 v61, {sLB}, v61
    v_add_u32 v61, {sDD}, v61
    v_min_u32 v60, v60, v61
    v_mul_u32_u24 v56, {RS}, v50
    v_add_u32 v56, {HEADS}, v56
    v_lshlrev_b32 v57, 2, v50
    v_lshlrev_b32 v58, 2, v55
    v_mov_b32 v59, 0
    ds_write_b32 v57, v54 offset:{HEADN}
    ds_write_b32 v58, v59 offset:{GKT}
    v_min_u32 v60, v60, v48
    v_add_u32 v55, v55, v45
    s_mov_b64 s[52:53], exec
K2_BND2:
    v_cmp_lt_u32 vcc, v55, v60
    s_and_b64 exec, exec, vcc
    s_cbranch_execz K2_BND2_DONE
    v_lshlrev_b32 v58, 2, v55
    ds_write_b32 v58, v56 offset:{GFT}
    v_add_u32 v55, 4, v55
    s_branch K2_BND2
K2_BND2_DONE:
    s_mov_b64 exec, s[52:53]
    s_branch K2_BND
K2_NODE_DONE:
    s_mov_b64 exec, -1""")
    c("pad groups [G, 64T)")
    e(f"""    s_sub_u32 s3, {sCAP}, {sG}
    s_lshl_b32 s49, s3, 2
    v_cmp_gt_u32 vcc, s49, v0
    s_and_saveexec_b64 s[52:53], vcc
    s_cbranch_execz K2_PADG_DONE
    s_lshl_b32 s48, {sG}, 5
    v_lshlrev_b32 v48, 3, v0
    v_add_u32 v48, s48, v48
    v_mov_b32 v50, 0
    v_mov_b32 v51, 0x3f800000
    ds_write_b64 v48, v[50:51] offset:{RECS}
    v_cmp_gt_u32 vcc, s3, v0
    s_lshl_b32 s48, {sG}, 2
    v_lshlrev_b32 v48, 2, v0
    v_add_u32 v48, s48, v48
    v_mov_b32 v51, {HEADS}
    s_and_b64 exec, exec, vcc
    ds_write2st64_b32 v48, v50, v51 offset0:{GAT//256} offset1:{GFT//256}
    ds_write_b32 v48, v50 offset:{GKT}
K2_PADG_DONE:
    s_mov_b64 exec, s[52:53]
    v_lshlrev_b32 v41, 3, v{vLANE}
    v_add_u32 v41, {DUMMY}, v41
    s_waitcnt lgkmcnt(0)""")
    if 'fine' in X: stamp()
    c("scatter")
    slot_pass("K2_S3", [
        lambda k, r, p, q: f"    v_lshl_add_u32 v{vA+q}, v{vRK+q}, 3, v{vA+q}",
        lambda k, r, p, q: f"    s_mov_b64 exec, {msk(q)}\n    ds_write_b64 v{vA+q}, v[{vREC+(2*k+r)*4+2*p}:{vREC+(2*k+r)*4+2*p+1}]",
        lambda k, r, p, q: "    s_mov_b64 exec, -1" if q % 4 == 3 else ""])
    e("    s_mov_b64 exec, -1")
    if 'fine' in X: stamp()
    c("advance segment pointers for a possible next round; T-dependent addresses")
    for r in range(2):
        e(f"""    v_sub_u32 v{vLEN[r]}, v{vLEN[r]}, v{vLR[r]}
    v_lshl_add_u32 v{vBASE[r]}, v{vLR[r]}, 3, v{vBASE[r]}""")
    e(f"""    s_lshl_b32 s3, {sWV}, 1
    s_mul_i32 s48, s3, {sLA}
    s_mul_i32 s49, s3, {sLB}
    s_add_u32 s49, s49, {sDD}
    s_min_u32 s3, s48, s49
    s_lshl_b32 s48, s3, 5
    s_add_u32 s48, s48, {RECS}
    s_lshl_b32 s49, {sT}, 7
    v_mul_u32_u24 v41, s49, v{vH}
    v_add_u32 v41, s48, v41
    v_bfe_u32 v42, v{vLANE}, 3, 2
    v_lshl_add_u32 v{vSRC_RD}, v42, 3, v41
    v_bfe_u32 v42, v{vN}, 2, 1
    v_mul_u32_u24 v42, s49, v42
    v_add_u32 v42, s48, v42
    v_lshrrev_b32 v43, 3, v{vN}
    v_lshl_add_u32 v42, v43, 5, v42
    v_and_b32 v43, 3, v{vN}
    v_lshl_add_u32 v42, v43, 3, v42
    v_add_u32 v{vEW_RD}, 4, v42
    s_lshl_b32 s48, s3, 2
    s_lshl_b32 s49, {sT}, 4
    v_mul_u32_u24 v41, s49, v{vH}
    v_add_u32 v41, s48, v41
    v_add_u32 v{vGF_RD}, {GFT}, v41
    v_bfe_u32 v42, v{vLANE}, 2, 2
    v_lshl_add_u32 v41, v42, 2, v41
    v_add_u32 v{vGA_RD}, {GAT}, v41
    v_mov_b64 v[56:57], 0
    v_mov_b64 v[58:59], 0
    s_waitcnt lgkmcnt(0)
    s_barrier""")
    stamp()
    c("pipeline prologue")
    for x in src_reads(0): e(x)
    e(f"""    v_mov_b32 v40, {FLAG+4}
    ds_read_b32 v41, v40
    s_waitcnt lgkmcnt(0)""")
    for g in dma_issue():
        for x in g: e(x)
    e(f"    v_add_u32 v{vSRC_RD}, 128, v{vSRC_RD}")
    e(f"    v_readfirstlane_b32 s48, v41")
    rn = reads_next(0, 0)
    for x in rn[4:]: e(x)
    c("Wb'/Wv fragments (first round only) while the first gather is in flight")
    e(f"""    s_cmp_lg_u32 {sRND}, 0
    s_cbranch_scc1 K2_NOW2
    v_lshlrev_b32 v42, 4, v{vLANE}
    v_add_u32 v42, {ROWS}, v42""")
    for k in range(16):
        e(f"    ds_read_b128 {ar(4*k,4)}, v42 offset:{1024*k}")
    e("K2_NOW2:")
    e("    s_waitcnt lgkmcnt(0)")
    for x in after_reads(0, 0): e(x)
    e("    s_barrier")
    c("rare: zero the rows of nodes without edges")
    e(f"""    s_cmp_eq_u32 s48, 0
    s_cbranch_scc1 K2_NOEMPTY
    v_lshrrev_b32 v60, 2, v0
    v_lshlrev_b32 v61, 2, v60
    ds_read_b32 v62, v61 offset:{CNT}
    v_and_b32 v63, 3, v0
    v_mul_u32_u24 v52, {RS}, v60
    v_lshl_add_u32 v52, v63, 7, v52
    v_add_u32 v52, {ROWS}, v52
    v_mov_b64 v[48:49], 0
    v_mov_b64 v[50:51], 0
    s_waitcnt lgkmcnt(0)
    v_cmp_gt_u32 vcc, {NB}, v60
    v_cmp_eq_u32 s[52:53], 0, v62
    s_nop 1
    s_and_b64 vcc, vcc, s[52:53]
    s_and_saveexec_b64 s[52:53], vcc
    s_cbranch_execz K2_EMPTY2""")
    for k in range(8):
        e(f"    ds_write_b128 v52, v[48:51] offset:{16*k}")
    e(f"""K2_EMPTY2:
    s_mov_b64 exec, s[52:53]
    s_waitcnt lgkmcnt(0)
    s_barrier
K2_NOEMPTY:""")
    e("    s_waitcnt vmcnt(0)")
    for x in rn[:4]: e(x)
    e("    s_waitcnt lgkmcnt(0)")
    for g in dma_issue():
        for x in g: e(x)
    for x in advance_addrs(1): e(x)
    for x in gf_fix(0): e(x)
    for x in mfma_group('A', 0): e(x)
    stamp()
    if 'solo' in X:
        e(f"    s_cmp_ge_u32 {sWV}, 4\n    s_cbranch_scc1 K2_LOOP_END")
    e(f"""    s_nop 15
    s_mov_b32 s90, 256
    s_mov_b32 s91, 32
    s_mov_b32 {sCNT}, {sT}
.p2align 6
K2_LOOP:""")
    INLOOP[0] = True
    tile_body(0)
    e(f"""    s_sub_u32 {sCNT}, {sCNT}, 1
    s_cmp_eq_u32 {sCNT}, 0
    s_cbranch_scc1 K2_LOOP_END""")
    tile_body(1)
    INLOOP[0] = False
    e(f"""    s_sub_u32 {sCNT}, {sCNT}, 1
    s_cmp_lg_u32 {sCNT}, 0
    s_cbranch_scc1 K2_LOOP
K2_LOOP_END:
    s_setprio 0
    s_waitcnt vmcnt(0)
    s_lshl_b32 s3, {sWV}, 11
    v_lshrrev_b32 v40, 3, v{vLANE}
    v_lshlrev_b32 v40, 7, v40
    v_add_u32 v40, s3, v40
    v_add_u32 v41, v40, v{vCHB}
    v_add_u32 v40, v40, v{vCHA}
    v_add_u32 v41, 1024, v41
    s_mov_b32 m0, {sM0B}
    s_nop 0
    buffer_load_dwordx4 v40, {SRD_XB}, 0 offen lds
    s_add_u32 m0, m0, 1024
    s_nop 0
    buffer_load_dwordx4 v41, {SRD_XB}, 0 offen lds""")
    c("head fix-up, part 1 (head nodes are known since the sort)")
    e(f"""    v_lshlrev_b32 v40, 2, v{vLANE}
    ds_read_b32 v41, v40 offset:{HEADN}
    ds_read_b32 v42, v40 offset:{HEADN+4}
    v_mov_b32 v43, {FLAG}
    ds_read_b32 v44, v43
    s_lshl_b32 s3, {sWV}, 1
    v_add_u32 v45, s3, v{vH}
    v_lshlrev_b32 v46, 2, v45
    ds_read_b32 v47, v46 offset:{HEADN}
    v_mul_u32_u24 v45, {RS}, v45
    v_add_u32 v45, {HEADS}, v45
    v_add_u32 v45, v45, v{vN4}
    s_waitcnt lgkmcnt(0)
    v_readfirstlane_b32 {sMORE}, v44
    v_cmp_eq_u32 vcc, v41, v42
    v_cmp_le_i32 s[52:53], 0, v41
    v_mul_i32_i24 v46, {RS}, v47
    s_nop 0
    s_and_b64 vcc, vcc, s[52:53]
    s_and_b32 s54, vcc_lo, 0x7fff
    v_cmp_le_i32 s[88:89], 0, v47
    v_add_u32 v46, {ROWS}, v46
    v_add_u32 v47, v46, v{vN4}""")
    stamp()
    e("    s_barrier")
    stamp()
    c("head fix-up, part 2")
    e(f"""    s_cmp_lg_u32 s54, 0
    s_cbranch_scc1 K2_FIX_SLOW
    s_mov_b64 s[52:53], exec
    s_and_b64 exec, exec, s[88:89]
    s_cbranch_execz K2_FIX_DONE""")
    for q in range(4):
        e(f"""    ds_read_b32 v{16+q}, v45 offset:{128*q}
    ds_read_b32 v{20+q}, v47 offset:{128*q}""")
    e("    s_waitcnt lgkmcnt(0)")
    for q in range(4):
        e(f"""    v_add_f32 v{16+q}, v{16+q}, v{20+q}
    ds_write_b32 v47, v{16+q} offset:{128*q}""")
    e(f"""    s_branch K2_FIX_DONE
K2_FIX_SLOW:
    s_mov_b64 s[52:53], exec
    s_cmp_lg_u32 {sWV}, 0
    s_cbranch_scc1 K2_FIX_DONE
    s_mov_b32 s3, 0
K2_FIX_SL:
    v_readlane_b32 s49, v41, s3
    s_nop 3
    s_cmp_lt_i32 s49, 0
    s_cbranch_scc1 K2_FIX_SN
    s_mul_i32 s49, s49, {RS}
    s_add_u32 s49, s49, {ROWS}
    s_mul_i32 s54, s3, {RS}
    s_add_u32 s54, s54, {HEADS}
    v_lshlrev_b32 v45, 3, v{vLANE}
    v_add_u32 v46, s54, v45
    v_add_u32 v47, s49, v45
    ds_read_b64 v[16:17], v46
    ds_read_b64 v[18:19], v47
    s_waitcnt lgkmcnt(0)
    v_add_f32 v16, v16, v18
    v_add_f32 v17, v17, v19
    ds_write_b64 v47, v[16:17]
    s_waitcnt lgkmcnt(0)
K2_FIX_SN:
    s_add_u32 s3, s3, 1
    s_cmp_lt_u32 s3, 16
    s_cbranch_scc1 K2_FIX_SL
K2_FIX_DONE:
    s_mov_b64 exec, s[52:53]
    s_waitcnt vmcnt(0) lgkmcnt(0)
    s_barrier""")
    e(f"""    s_or_b32 s3, {sRND}, {sMORE}
    s_cmp_eq_u32 s3, 0
    s_cbranch_scc1 K2_EPI""")
    c("rare: several rounds. rows += saved (round>0); if more: save rows and restart")
    e(f"""    s_mul_i32 s3, {sB}, {NB*RS}
    s_add_u32 s3, s3, {WS_ACC}
    v_lshlrev_b32 v40, 4, v0
    v_add_u32 v41, {ROWS}, v40
    v_add_u32 v42, s3, v40
    s_mov_b32 s49, 0
K2_MR:
    v_cmp_gt_u32 vcc, {NB*RS}, v40
    s_and_saveexec_b64 s[52:53], vcc
    s_cbranch_execz K2_MR_N
    ds_read_b128 v[16:19], v41
    s_cmp_eq_u32 {sRND}, 0
    s_cbranch_scc1 K2_MR_A
    buffer_load_dwordx4 v[20:23], v42, {SRD_WS}, 0 offen
    s_waitcnt vmcnt(0) lgkmcnt(0)
    v_add_f32 v16, v16, v20
    v_add_f32 v17, v17, v21
    v_add_f32 v18, v18, v22
    v_add_f32 v19, v19, v23
    ds_write_b128 v41, v[16:19]
K2_MR_A:
    s_waitcnt lgkmcnt(0)
    s_cmp_eq_u32 {sMORE}, 0
    s_cbranch_scc1 K2_MR_N
    buffer_store_dwordx4 v[16:19], v42, {SRD_WS}, 0 offen
    s_waitcnt vmcnt(0)
K2_MR_N:
    s_mov_b64 exec, s[52:53]
    v_add_u32 v40, 8192, v40
    v_add_u32 v41, 8192, v41
    v_add_u32 v42, 8192, v42
    s_add_u32 s49, s49, 1
    s_cmp_lt_u32 s49, 7
    s_cbranch_scc1 K2_MR
    s_waitcnt vmcnt(0) lgkmcnt(0)
    s_barrier
    s_cmp_eq_u32 {sMORE}, 0
    s_cbranch_scc1 K2_EPI
    s_mov_b32 {sRND}, 1
    s_branch K2_ROUND_INIT""")
    e("K2_EPI:")
    stamp()
    c("wave (rho, fb): lane = node 32rho+n, registers = features 32fb + 8i+4h+j")
    DEN, NUM, XP, UU = 64, 80, 96, 112
    e(f"""    s_lshl_b32 s3, {sRHO}, 5
    v_add_u32 v2, s3, v{vN}
    v_mul_u32_u24 v3, {RS}, v2
    s_lshl_b32 s49, {sFB}, 7
    s_add_u32 s49, s49, {ROWS}
    v_lshl_add_u32 v3, v{vH}, 4, v3
    v_add_u32 v3, s49, v3""")
    for i in range(4):
        e(f"    ds_read_b128 v[{DEN+4*i}:{DEN+4*i+3}], v3 offset:{32*i}")
    c("x (residual): staged rows, chunk (4fb+i) ^ ((row>>1)&7)")
    e(f"""    v_bfe_u32 v4, v{vN}, 1, 3
    s_lshl_b32 s49, {sFB}, 2
    v_xor_b32 v4, s49, v4
    v_lshlrev_b32 v4, 4, v4
    v_lshl_add_u32 v4, v{vH}, 3, v4
    v_and_b32 v5, 15, v{vN}
    v_lshl_add_u32 v4, v5, 7, v4
    v_lshrrev_b32 v5, 4, v{vN}
    v_lshl_add_u32 v4, v5, 12, v4
    s_lshl_b32 s3, {sRHO}, 13
    s_add_u32 s3, s3, {XST}
    v_add_u32 v4, s3, v4
    v_xor_b32 v5, 16, v4
    v_xor_b32 v6, 32, v4
    v_xor_b32 v7, 48, v4""")
    for i in range(4):
        e(f"    ds_read_b128 v[{NUM+4*i}:{NUM+4*i+3}], v3 offset:{256+32*i}")
    for i in range(4):
        e(f"    ds_read_b64 v[{XP+2*i}:{XP+2*i+1}], v{4+i}")
    c("output staging address: row*128 + ((4fb+i) ^ (row&7))*16 + h*8")
    e(f"""    v_and_b32 v8, 7, v{vN}
    s_lshl_b32 s49, {sFB}, 2
    v_xor_b32 v8, s49, v8
    v_lshlrev_b32 v8, 4, v8
    v_lshl_add_u32 v8, v{vH}, 3, v8
    v_lshl_add_u32 v8, v2, 7, v8
    v_xor_b32 v9, 16, v8
    v_xor_b32 v10, 32, v8
    v_xor_b32 v11, 48, v8
    s_mov_b32 s48, {f32bits(1e-6):#x}
    s_mov_b32 s49, {f32bits(1e-6):#x}""")
    for r in range(16):
        e(f"    v_accvgpr_read_b32 v{UU+r}, a{aU+r}")
    e("    s_waitcnt lgkmcnt(8)")
    for r in range(0, 16, 2):
        e(f"    v_pk_add_f32 v[{DEN+r}:{DEN+r+1}], v[{DEN+r}:{DEN+r+1}], s[48:49]")
    for r in range(16):
        e(f"    v_rcp_f32 v{DEN+r}, v{DEN+r}")
    e("    s_waitcnt lgkmcnt(0)")
    for r in range(0, 16, 2):
        e(f"    v_pk_fma_f32 v[{UU+r}:{UU+r+1}], v[{NUM+r}:{NUM+r+1}], v[{DEN+r}:{DEN+r+1}], v[{UU+r}:{UU+r+1}]")
    for r in range(16):
        e(f"    v_max_f32 v{UU+r}, 0, v{UU+r}")
    for r in range(0, 16, 2):
        e(f"""    v_lshlrev_b32 v{DEN+r}, 16, v{XP+r//2}
    v_and_b32 v{DEN+r+1}, 0xffff0000, v{XP+r//2}""")
    for r in range(0, 16, 2):
        e(f"    v_pk_add_f32 v[{UU+r}:{UU+r+1}], v[{UU+r}:{UU+r+1}], v[{DEN+r}:{DEN+r+1}]")
    for r in range(0, 16, 2):
        e(f"    v_cvt_pk_bf16_f32 v{NUM+r//2}, v{UU+r}, v{UU+r+1}")
    for i in range(4):
        e(f"    ds_write_b64 v{8+i}, v[{NUM+2*i}:{NUM+2*i+1}] offset:{A_OFF}")
    OSP = '' if 'plainout' in X else 'sc1'
    e(f"""    v_lshlrev_b32 v5, 4, v0
    v_lshrrev_b32 v6, 3, v0
    v_and_b32 v7, 7, v6
    v_lshlrev_b32 v7, 4, v7
    v_xor_b32 v6, v5, v7
    v_add_u32 v7, 8192, v6
    s_waitcnt lgkmcnt(0)
    s_barrier
    ds_read_b128 v[64:67], v5 offset:{A_OFF}
    ds_read_b128 v[68:71], v5 offset:{A_OFF+8192}
    s_waitcnt lgkmcnt(1)
    buffer_store_dwordx4 v[64:67], v6, {SRD_OUT}, 0 offen {OSP}
    s_waitcnt lgkmcnt(0)
    buffer_store_dwordx4 v[68:71], v7, {SRD_OUT}, 0 offen {OSP}""")
    stamp()
    if DBG and 'fine' not in X: e(f"    s_waitcnt vmcnt(0)\n    s_memrealtime s[98:99]\n    s_waitcnt lgkmcnt(0)\n    v_writelane_b32 v{vDBG}, s98, 15")
    stamp_flush(sWV, 1)
    e("K2_END:\n    s_endpgm\nK2_CODE_END:")

def desc(name, nv, acc, ns):
    return f""".amdhsa_kernel {name}
  .amdhsa_next_free_vgpr {nv}
  .amdhsa_next_free_sgpr {ns}
  .amdhsa_accum_offset {acc}
  .amdhsa_group_segment_fixed_size 0
  .amdhsa_kernarg_size 96
  .amdhsa_user_sgpr_count 2
  .amdhsa_user_sgpr_kernarg_segment_ptr 1
  .amdhsa_system_sgpr_workgroup_id_x 1
  .amdhsa_float_denorm_mode_32 3
.end_amdhsa_kernel"""

def main(out):
    hdr = open('gather_scatter__edge_featured_mpnn_gatedgcn__graph.s.ref').read().split('\n')
    head = [x for x in hdr if x.startswith(';') and '@launch' not in x and 'Override launch' not in x and 'grid=ceil' not in x]
    for x in head: e(x)
    e(f"; @launch kernel=k1_kernel grid=({NCH+8},1,1) block=(448,1,1) lds={K1_LDS}")
    e(f"; @launch kernel=k2_kernel grid=({NBINS},1,1) block=(512,1,1) lds={K2_LDS}")
    e('.amdgcn_target "amdgcn-amd-amdhsa--gfx950"')
    e(".text")
    gen_k1()
    gen_k2()
    e('.section .rodata,"a"\n.p2align 6')
    e(desc("k1_kernel", 96, 96, 40))
    e(desc("k2_kernel", 256, 128, 100))
    open(out, 'w').write("\n".join(L) + "\n")

if __name__ == "__main__":
    main(sys.argv[1] if len(sys.argv) > 1 else "gather_scatter__edge_featured_mpnn_gatedgcn__graph.s")
```
